```python
import torch

def _softmax(x, axis=-1):
    return torch.softmax(x, dim=axis)

def _gelu(x):
    return torch.nn.functional.gelu(x, approximate='tanh')

def _silu(x):
    return torch.nn.functional.silu(x)

def _sigmoid(x):
    return torch.sigmoid(x)

def _layernorm(x, axis=-1, eps=1e-05):
    m = x.mean(dim=axis, keepdim=True)
    v = x.var(dim=axis, keepdim=True, unbiased=False)
    return (x - m) / torch.sqrt(v + eps)

def _scatter_add(tgt, idx, src, axis=0):
    return tgt.clone().index_add_(axis, idx, src)

def _segment_sum(src, seg, n):
    out = torch.zeros((n,) + src.shape[1:], dtype=src.dtype)
    return out.index_add_(0, seg, src)

def _pad(x, pw):
    flat = tuple((v for pair in reversed(pw) for v in pair))
    return torch.nn.functional.pad(x, flat)
kernel_name = 'gather_scatter__tensor_product_equiv_mace__graph'

def setup_inputs():

    _w = lambda a: (lambda t: t.to(torch.bfloat16) if t.is_floating_point() else t)(torch.as_tensor(a))
    N, deg = (10000, 32)
    Lmax, C, De = (1, 128, 16)
    M = (Lmax + 1) ** 2
    E = N * deg
    src = (lambda lo, hi, *s: torch.randint(lo, hi, s))(0, N, E).to(torch.int64)
    dst = (lambda lo, hi, *s: torch.randint(lo, hi, s))(0, N, E).to(torch.int64)
    r = (lambda *s: torch.randn(*s, dtype=torch.bfloat16) * 0.05)(E, 3).to(float)
    r = r / (torch.linalg.norm(r, dim=-1, keepdim=True).to(float) + 1e-06)
    rx, ry, rz = (r[:, 0].clone(), r[:, 1].clone(), r[:, 2].clone())
    x2, y2, z2 = (rx * rx, ry * ry, rz * rz)
    sh_list = [torch.ones_like(rx), rx, ry, rz, rx * ry, ry * rz, 2.0 * z2 - x2 - y2, rx * rz, x2 - y2, ry * (3.0 * x2 - y2), rx * ry * rz, ry * (4.0 * z2 - x2 - y2), rz * (2.0 * z2 - 3.0 * x2 - 3.0 * y2), rx * (4.0 * z2 - x2 - y2), rz * (x2 - y2), rx * (x2 - 3.0 * y2)]
    sh16 = torch.stack(sh_list, dim=-1).to(float)
    pad = max(0, M - 16)
    sh_full = torch.cat([sh16, torch.zeros((E, pad), dtype=float)], dim=-1)[:, :M]
    cg = ((lambda *s: torch.randn(*s, dtype=torch.bfloat16) * 0.05)(M, M, M) * (1.0 / float(M))).to(float)
    return {'x': _w(((lambda *s: torch.randn(*s, dtype=torch.bfloat16) * 0.05)(N, M, C) * 0.3).to(float)), 'src': _w(src), 'dst': _w(dst), 'sh': _w(sh_full.to(float)), 'edge_attr': _w(((lambda *s: torch.randn(*s, dtype=torch.bfloat16) * 0.05)(E, De) * 0.3).to(float)), 'cg': _w(cg), 'w_r': _w(((lambda *s: torch.randn(*s, dtype=torch.bfloat16) * 0.05)(De, C) * (1.0 / float(De) ** 0.5)).to(float)), 'w_out': _w(((lambda *s: torch.randn(*s, dtype=torch.bfloat16) * 0.05)(C, C) * (1.0 / float(C) ** 0.5)).to(float))}

def reference(x, src, dst, sh, edge_attr, cg, w_r, w_out):
    N = x.shape[0]
    M = x.shape[1]
    C = x.shape[2]
    h = x[src]
    tp = torch.einsum('uvw,euc,ev->ewc', cg, h, sh)
    rw = edge_attr @ w_r
    msg = tp * rw[:, None, :]
    msg2 = msg.reshape(-1, M * C)
    agg = _segment_sum(msg2, dst, N).reshape(N, M, C)
    out = torch.einsum('nmc,cd->nmd', agg, w_out)
    return out
```

```python
import re

_REG = re.compile(r"\b([vsa])(\d+)\b|\b([vsa])\[(\d+):(\d+)\]|\b(vcc|exec|m0|exec_lo|exec_hi|vcc_lo|vcc_hi)\b")


def regs_of(op):
    out = set()
    for m in _REG.finditer(op):
        if m.group(1):
            out.add((m.group(1), int(m.group(2))))
        elif m.group(3):
            for i in range(int(m.group(4)), int(m.group(5)) + 1):
                out.add((m.group(3), i))
        else:
            n = m.group(6)
            out.add(("x", n.split("_")[0]))
    return out


def split_ops(s):
    ops, depth, cur = [], 0, ""
    for ch in s:
        if ch in "[(":
            depth += 1
        if ch in "])":
            depth -= 1
        if ch == "," and depth == 0:
            ops.append(cur.strip())
            cur = ""
        else:
            cur += ch
    if cur.strip():
        ops.append(cur.strip())
    return ops


def mfma_passes(mn):
    if "4x4x4" in mn:
        return 2
    if "16x16x" in mn:
        return 4
    if "32x32x" in mn:
        return 8
    raise ValueError(mn)


class Ins:
    def __init__(self, text, idx_range=None):
        self.text = text
        t = text.split(";")[0].strip()
        parts = t.split(None, 1)
        self.mn = parts[0]
        rest = parts[1] if len(parts) > 1 else ""
        ops = split_ops(rest)
        self.ops = ops
        mn = self.mn
        self.is_mfma = mn.startswith(("v_mfma", "v_smfmac"))
        self.is_valu = mn.startswith("v_") and not self.is_mfma
        self.is_salu = mn.startswith("s_")
        self.is_ds = mn.startswith("ds_")
        self.is_vmem = mn.startswith("buffer_") or mn.startswith("global_")
        self.is_dpp = "_dpp" in mn or "quad_perm" in t or "row_" in t
        self.is_lds_dma = self.is_vmem and (t.endswith(" lds") or "load_lds" in mn)
        self.w, self.r = set(), set()
        R = [regs_of(o) for o in ops]
        if self.is_mfma:
            self.w = R[0]
            self.a, self.b, self.c = R[1], R[2], R[3]
            if mn.startswith("v_smfmac"):
                self.b, self.c = R[2] | R[3], R[0]
            self.r = self.a | self.b | self.c
            self.passes = mfma_passes(mn)
        elif self.is_valu:
            nd = 1
            if mn.startswith(("v_add_co", "v_addc_co", "v_sub_co", "v_subb_co", "v_mad_u64")):
                nd = 2
            for x in R[:nd]:
                self.w |= x
            for x in R[nd:]:
                self.r |= x
            if mn.startswith(("v_fmac", "v_writelane", "v_permlane")) or self.is_dpp or "sdwa" in mn:
                self.r |= R[0]
            if mn.startswith("v_permlane"):
                self.w |= R[1]
            if mn.startswith("v_cmpx"):
                self.w.add(("x", "exec"))
            if idx_range is not None:
                self.w |= idx_range
                self.r |= idx_range
        elif self.is_ds:
            if mn.startswith("ds_read") or "_rtn" in mn or "permute" in mn or "swizzle" in mn:
                self.w = R[0]
                for x in R[1:]:
                    self.r |= x
            else:
                for x in R:
                    self.r |= x
        elif self.is_vmem:
            if "load" in mn and not self.is_lds_dma:
                self.w = R[0]
                for x in R[1:]:
                    self.r |= x
            else:
                for x in R:
                    self.r |= x
            self.wide_store = ("store_dwordx3" in mn or "store_dwordx4" in mn)
            if self.wide_store:
                self.sdata = R[0] if mn.startswith("buffer_") else R[1]
        elif self.is_salu:
            if mn.startswith(("s_cmp", "s_cbranch", "s_branch", "s_waitcnt", "s_nop", "s_barrier", "s_endpgm", "s_setprio", "s_bitcmp")):
                for x in R:
                    self.r |= x
            elif mn.startswith("s_set_gpr_idx"):
                for x in R:
                    self.r |= x
                self.w.add(("x", "m0"))
            else:
                if R:
                    self.w = set(R[0])
                for x in R[1:]:
                    self.r |= x
                if "saveexec" in mn:
                    self.w.add(("x", "exec"))

    def states(self):
        if self.mn == "s_nop":
            return int(self.ops[0], 0) + 1
        return 1


def need(p, c):
    n = 0
    pv = {r for r in p.w if r[0] in "va"}
    ps = {r for r in p.w if r[0] == "s" or r == ("x", "vcc")}
    if p.is_valu:
        if c.is_mfma and pv & c.r:
            n = max(n, 2)
        if c.is_valu:
            if c.mn.startswith(("v_readlane", "v_readfirstlane")) and pv & c.r:
                n = max(n, 1)
            if c.mn.startswith("v_permlane") and pv & c.r:
                n = max(n, 2)
            if ps & c.r:
                n = max(n, 4 if c.mn.startswith(("v_readlane", "v_writelane")) else 2)
            if ("x", "exec") in p.w:
                if c.is_dpp:
                    n = max(n, 5)
                if c.mn.startswith(("v_readlane", "v_readfirstlane", "v_writelane", "v_permlane")):
                    n = max(n, 4)
                if ("x", "exec") in c.r:
                    n = max(n, 2)
            if p.mn.startswith("v_dot") and pv & (c.r | c.w):
                same = p.mn == c.mn and not (pv & (regs_of(c.ops[1]) | regs_of(c.ops[2])))
                if not same:
                    n = max(n, 3)
            if ("sdwa" in p.mn or "op_sel" in p.text and not p.mn.startswith("v_pk")) and pv & (c.r | c.w):
                n = max(n, 1)
        if c.is_mfma and ("x", "exec") in p.w:
            n = max(n, 4)
        if c.is_vmem and ps & c.r:
            n = max(n, 5)
        if c.is_salu and ps & c.r:
            n = max(n, 1)
    if c.is_valu and c.is_dpp and pv & c.r and (p.is_valu or p.is_mfma):
        n = max(n, 2)
    if p.is_mfma:
        k = {2: 0, 4: 1, 8: 2}[p.passes]
        if c.is_mfma:
            if pv & (c.a | c.b):
                n = max(n, (5, 8, 12)[k])
            if pv & c.c:
                if p.w == c.c and p.passes == c.passes:
                    n = max(n, (2, 0, 0)[k])
                else:
                    n = max(n, (4, 6, 10)[k])
            elif pv & c.w:
                n = max(n, (4, 6, 10)[k])
        elif (c.is_valu or c.is_ds or c.is_vmem) and pv & (c.r | c.w):
            n = max(n, (5, 8, 12)[k])
        if c.is_valu and p.c & c.w:
            n = max(n, (1, 3, 7)[k])
    if p.is_salu and ("x", "m0") in p.w and c.is_lds_dma:
        n = max(n, 1)
    if p.is_vmem and getattr(p, "wide_store", False) and p.sdata & c.w:
        n = max(n, 2)
    return n


class Emitter:
    def __init__(self):
        self.lines = []
        self.hist = []
        self.idx_range = None
        self.in_idx = False
        self.nops = 0

    def raw(self, s):
        self.lines.append(s)

    def label(self, name, pad=0):
        self.lines.append(name + ":")
        if pad:
            self("s_nop %d" % (pad - 1))

    def __call__(self, *texts):
        for text in texts:
            self._one(text)

    def _one(self, text):
        if text.startswith(".") or text.startswith(";"):
            self.lines.append(text)
            return
        ins = Ins(text, self.idx_range if self.in_idx else None)
        dist = 0
        pad = 0
        for p in reversed(self.hist):
            n = need(p, ins)
            if n > dist:
                pad = max(pad, n - dist)
            dist += p.states()
            if dist >= 20:
                break
        if pad:
            nop = Ins("s_nop %d" % (pad - 1))
            self.lines.append("    " + nop.text)
            self.hist.append(nop)
            self.nops += 1
        self.lines.append("    " + text)
        self.hist.append(ins)
        self.hist = self.hist[-24:]
        if ins.mn == "s_set_gpr_idx_on":
            self.in_idx = True
        if ins.mn == "s_set_gpr_idx_off":
            self.in_idx = False

    def text(self):
        return "\n".join(self.lines) + "\n"
```

```python
import sys, os
sys.path.insert(0, os.path.dirname(os.path.abspath(__file__)))
from emit import Emitter

NAME = "gather_scatter__tensor_product_equiv_mace__graph"
N, E = 10000, 320000
CH, NCH, CS = 1250, 256, 1280
WS_TAB, WS_W, WS_SK, WS_EA, WS_TS = 0, 0x80000, 0x100000, 0x500000, 0x2000000
WS_FL = 0x90000
CAPW, GAP = 224, 16
CAP = 8 * CAPW
SPIN = 200000

DEF = dict(PPOS=0, KE=2, B4P=1, RWZ=3, DH=0, FL=1, FRP=0, FP=1, FQ=2, NREP=8, LAL=-1, XPOS=0, PQP=1, NB5=1, AGP=2, ENP=0, PW=0, WFT=1, WFK=6, LASTPOL='sc1', EPRIO=0, BIAS=30, SCH=2, ALIGN=0, PRIO=1, DIAGW=0, DIAGK=0, DIAGAT='tab', D=6, TS=0, DBG=0, APOL="nt", AEA="00011", BEA="001223", SKBAR=1, ABAR=2, XPF=18, CPF=2, MU=7, OUTPOL="sc1", LDPOL="sc1", WST=3, WOST=3, ACCZ=2, CPOS=2, WGN=0)

PART39 = [[3, 11, 21, 31, 36], [5, 8, 20, 27, 38], [0, 6, 7, 13, 39], [9, 14, 18, 25, 34], [10, 16, 19, 24, 32], [4, 12, 26, 29, 33], [1, 17, 23, 28, 37], [2, 15, 22, 30, 35]]
PART40 = [[1, 10, 15, 30, 39], [2, 9, 21, 28, 37], [4, 14, 22, 27, 31], [6, 12, 18, 24, 35], [3, 8, 16, 29, 38], [5, 13, 17, 26, 34], [0, 20, 23, 32, 36], [7, 11, 19, 25, 33]]
PARTS = {0: (PART39, PART40)}
PARTS[12] = ([[12, 16, 24, 26, 30], [8, 14, 15, 31, 36], [2, 10, 23, 34, 37], [5, 17, 18, 22, 38], [0, 1, 7, 19, 39], [3, 11, 20, 29, 35], [6, 9, 25, 27, 32], [4, 13, 21, 28, 33]],
    [[9, 12, 19, 28, 32], [3, 10, 22, 29, 37], [7, 8, 23, 26, 36], [0, 18, 20, 34, 38], [5, 6, 14, 21, 39], [4, 11, 16, 24, 35], [1, 15, 25, 27, 31], [2, 13, 17, 30, 33]])
PARTS[20] = ([[13, 17, 24, 26, 31], [4, 16, 25, 29, 36], [5, 19, 23, 28, 35], [1, 6, 8, 10, 39], [7, 9, 20, 27, 32], [3, 12, 14, 33, 34], [2, 15, 18, 22, 37], [0, 11, 21, 30, 38]],
    [[11, 12, 17, 20, 38], [3, 16, 26, 28, 34], [8, 10, 19, 29, 36], [7, 14, 25, 27, 31], [6, 13, 15, 24, 30], [0, 9, 22, 23, 39], [2, 4, 21, 32, 35], [1, 5, 18, 33, 37]])
PARTS[30] = ([[12, 16, 25, 29, 32], [0, 5, 9, 20, 39], [1, 18, 27, 34, 37], [7, 19, 22, 30, 35], [2, 6, 24, 26, 36], [4, 11, 13, 31, 33], [10, 15, 17, 21, 28], [3, 8, 14, 23, 38]],
    [[6, 9, 26, 28, 37], [1, 11, 24, 35, 38], [5, 17, 23, 31, 33], [8, 12, 21, 29, 36], [2, 4, 15, 22, 39], [7, 10, 14, 18, 34], [0, 16, 20, 30, 32], [3, 13, 19, 25, 27]])
PARTS[40] = ([[7, 13, 28, 29, 37], [10, 17, 22, 30, 36], [1, 4, 6, 23, 39], [9, 19, 26, 31, 33], [5, 12, 15, 18, 35], [2, 11, 16, 27, 34], [0, 8, 24, 25, 38], [3, 14, 20, 21, 32]],
    [[8, 17, 25, 31, 32], [3, 19, 22, 28, 38], [6, 15, 18, 33, 37], [2, 14, 24, 29, 39], [0, 12, 21, 27, 34], [1, 9, 13, 26, 36], [5, 7, 10, 23, 35], [4, 11, 16, 20, 30]])
PARTS[50] = ([[2, 19, 28, 35, 37], [0, 6, 11, 24, 39], [15, 17, 27, 29, 34], [1, 20, 30, 32, 38], [4, 7, 18, 23, 33], [9, 10, 12, 21, 31], [5, 13, 16, 25, 26], [3, 8, 14, 22, 36]],
    [[7, 15, 27, 30, 36], [8, 18, 19, 28, 38], [4, 14, 31, 33, 35], [6, 13, 20, 29, 39], [2, 3, 22, 23, 34], [0, 11, 12, 26, 37], [1, 9, 17, 24, 32], [5, 10, 16, 21, 25]])
PARTS[-10] = ([[5, 13, 17, 28, 34], [7, 12, 16, 30, 32], [1, 9, 25, 26, 38], [11, 14, 18, 22, 33], [0, 2, 10, 20, 39], [3, 6, 23, 35, 37], [15, 19, 21, 24, 29], [4, 8, 27, 31, 36]],
    [[0, 13, 22, 31, 37], [3, 8, 20, 28, 35], [4, 12, 16, 27, 34], [9, 11, 14, 18, 36], [5, 7, 19, 23, 39], [2, 15, 26, 30, 32], [6, 10, 17, 24, 38], [1, 21, 25, 29, 33]])
PARTS[-20] = ([[7, 13, 19, 20, 34], [6, 10, 23, 28, 30], [2, 5, 27, 29, 36], [0, 15, 22, 26, 38], [4, 11, 25, 31, 37], [1, 3, 9, 12, 39], [14, 18, 21, 24, 33], [8, 16, 17, 32, 35]],
    [[5, 9, 16, 20, 36], [8, 10, 15, 21, 33], [3, 7, 22, 25, 34], [4, 14, 18, 26, 28], [6, 12, 17, 29, 37], [0, 11, 23, 35, 39], [2, 19, 27, 30, 32], [1, 13, 24, 31, 38]])


def vr(a, n):
    return f"v[{a}:{a+n-1}]" if n > 1 else f"v{a}"


def sr(a, n=4):
    return f"s[{a}:{a+n-1}]"


def scan_dpp(e, v, full):
    for k in (1, 2, 4, 8):
        e(f"v_add_u32_dpp v{v}, v{v}, v{v} row_shr:{k} row_mask:0xf bank_mask:0xf")
    e(f"v_add_u32_dpp v{v}, v{v}, v{v} row_bcast:15 row_mask:0xa bank_mask:0xf")
    if full:
        e(f"v_add_u32_dpp v{v}, v{v}, v{v} row_bcast:31 row_mask:0xc bank_mask:0xf")


class TS:
    last = None

    def __init__(self, e, on, pair, vreg):
        self.e, self.on, self.pair, self.v, self.names = e, on, pair, vreg, []
        TS.last = self

    diag = None

    def stamp(self, name):
        if self.diag and self.diag[0] == name:
            self.e("s_memrealtime s[4:5]", "s_waitcnt lgkmcnt(0)", f"s_sub_u32 s4, s4, s{self.pair}", f"s_mul_i32 s{self.pair+1}, s4, {self.diag[1]}")
        if self.on and (self.on == 1 or name in str(self.on).split(",") or name in ("start", "end")):
            e, p = self.e, self.pair
            e(f"s_memrealtime s[{p}:{p+1}]", "s_waitcnt lgkmcnt(0)", f"v_writelane_b32 v{self.v}, s{p}, {len(self.names)}")
            self.names.append(name)


class VQ:
    def __init__(self, e):
        self.e, self.q = e, []

    def op(self, tag, text):
        self.e(text)
        self.q.append(tag)

    def n(self, tag):
        idx = max(i for i, t in enumerate(self.q) if t == tag)
        return len(self.q) - 1 - idx

    def wait(self, tag, extra=""):
        self.e(f"s_waitcnt vmcnt({self.n(tag)}) {extra}".strip())


def gen(P):
    e = Emitter()
    vq = VQ(e)
    D = P["D"]
    R = 8
    MAP, CNT2, WB, DEG, TOT, NODEOF, START, WR, WO = 0, 8192, 13312, 14336, 15360, 15616, 16384, 17408, 46080
    LIST = WO + 32768
    SHST = LIST + (CAP + 8 * GAP + 128) * 4
    EAST = SHST + CAP * 8
    assert SHST + CAP * 8 <= EAST
    ZERO = EAST + CAP * 32
    LDS = ZERO + 64
    AGL = 0
    ACNT, ASTART, AINV, ASKS = 23552, 24576, 25600, 30720
    assert ASKS + CS * 12 <= WO and LDS <= 163840
    LANE, X16, RLEN, RBASE, RG0, ONE, PFV = 1, 2, 3, 4, 5, 6, 7
    T = 8
    ACC, RW, XR, TP, AGN, PQ, EA0, EA1, WRF, CGF, ENT = 16, 64, 96, 128, 144, 160, 164, 168, 172, 188, 192
    MP, MQ = CGF + 2, CGF + 3
    SIX, ZAD = EA1, EA1 + 1
    eAG, eFR, eST, eWF, NOD = [208, 209, 210, 211, 212], 213, 214, 215, 205
    NK = P["WFK"]
    assert NK == 6
    WF = [216 + 4 * q for q in range(NK)] + [XR + 4 * q for q in range(8)] + [AGN, AGN + 4]
    K, KN, LA, LB, EAC, LAC, LBC, RT, TSV = 196, 197, 198, 199, 200, 201, 202, 203, 204
    cODD, cMAPW, cMAP1, cMAP2, cL12, cDEG, cSH, cR21, cROW, cTIE, cBIN, cNOD, cLST, c380 = range(240, 254)
    cFLG = 195
    e.idx_range = {("v", i) for i in range(ACC, ACC + 48)}
    sX, sTAB, sSK, sEA, sA0, sA1, sOUT = 16, 20, 24, 28, 32, 36, 40
    sB, sNB, sNCNT, sN, sROFF, sNR, sNV, sBASE, sEM, sCNT, sT, sT2 = 44, 45, 46, 47, 48, 49, 50, 51, 52, 53, 54, 55
    sNODE = 56
    sOFF = 61
    sTAG, sTAG2 = 62, 63
    SK = 64
    sV = 80
    sM0, sEO = 86, 87
    sASG = [90, 91, 92, 93, 94]
    sNW, sK4 = 95, 98
    sA2, sTSP = 96, 100
    sFL = 88
    ts = TS(e, P["TS"], sTSP, TSV)
    if P["DIAGW"]:
        ts.diag = (P["DIAGAT"], P["DIAGK"])
    apol, ldpol = P["APOL"], P["LDPOL"]
    astage = [int(c) for c in str(P["AEA"]).zfill(5)]
    bstage = [int(c) for c in str(P["BEA"]).zfill(6)]

    def srd(s, lo, hi, off, size):
        if off is None:
            e(f"s_mov_b32 s{s}, s{lo}", f"s_mov_b32 s{s+1}, s{hi}")
        else:
            e(f"s_add_u32 s{s}, s{lo}, {off}", f"s_addc_u32 s{s+1}, s{hi}, 0")
        e(f"s_mov_b32 s{s+2}, {size}", f"s_mov_b32 s{s+3}, 0x20000")

    def init_round(first):
        e(f"v_lshlrev_b32 v{T+3}, 2, v0", f"v_mov_b32 v{T+4}, 0x00700000", f"v_mov_b32 v{T+5}, 0")
        for i in range(4):
            e(f"ds_write_b32 v{T+3}, v{T+4} offset:{MAP + i*2048}")
        for i in range(4 if first else 3):
            e(f"ds_write_b32 v{T+3}, v{T+5} offset:{CNT2 + i*2048}")

    DSTV, SRCV, SHV, BK, BA, RK, NL, KEY, CT, ST, PS = 64, 68, 72, 80, 84, 88, 92, 96, 100, 104, 108
    TABV = 112
    OUTV = 128
    IV = 156
    CGR = 120
    if P["TS"]:
        e("s_memrealtime s[92:93]")
    e("s_cmp_ge_u32 s2, 256", "s_cbranch_scc1 L_done")
    e("s_load_dwordx4 s[4:7], s[0:1], 8")
    e("s_load_dwordx4 s[8:11], s[0:1], 24")
    e("s_load_dwordx2 s[14:15], s[0:1], 80")
    e(f"s_load_dwordx2 s[{SK}:{SK+1}], s[0:1], 0")
    e(f"s_load_dwordx2 s[{SK+2}:{SK+3}], s[0:1], 40")
    e(f"s_load_dwordx4 s[{SK+4}:{SK+7}], s[0:1], 48")
    e("s_load_dwordx2 s[12:13], s[0:1], 64")

    def cpf():
        e(f"s_getpc_b64 s[{sV}:{sV+1}]")
        e.label("L_pc")
        e(f"s_and_b32 s{sB}, s2, 0xf8", f"s_lshl_b32 s{sB}, s{sB}, 6")
        e(f"v_and_b32 v{T+3}, 0x180, v{T+2}", f"v_add_u32 v{T+3}, s{sB}, v{T+3}", f"v_min_u32 v{T+3}, L_end-L_pc, v{T+3}")
        e(f"v_mov_b32 v{TABV+1}, s{sV+1}", f"v_add_co_u32 v{TABV}, vcc, s{sV}, v{T+3}", f"v_addc_co_u32 v{TABV+1}, vcc, 0, v{TABV+1}, vcc")
        vq.op("cpf", f"global_load_dword v{TSV+1}, {vr(TABV,2)}, off")

    def srd_hi(s, size):
        e(f"s_mov_b32 s{s+2}, {size}", f"s_mov_b32 s{s+3}, 0x20000")

    def srd_lo(s, lo, off):
        e(f"s_add_u32 s{s}, s{lo}, {off}", f"s_addc_u32 s{s+1}, s{lo+1}, 0")

    e(f"v_lshlrev_b32 v{T+2}, 3, v0")
    if P["CPF"] == 2:
        cpf()
    e(f"v_lshrrev_b32 v{T}, 6, v0", f"v_and_b32 v{LANE}, 63, v0", f"v_lshlrev_b32 v{T+1}, 2, v0", f"v_mov_b32 v{T+5}, 0")
    e(f"v_readfirstlane_b32 s3, v{T}")
    e(f"ds_write_b32 v{T+1}, v{T+5} offset:{ACNT}", f"ds_write_b32 v{T+1}, v{T+5} offset:{AINV+3072}")
    e(f"s_mul_i32 s{sT}, s2, {CH*4}", f"s_mul_i32 s{sT2}, s2, {CH*8}", f"s_mul_i32 s{sOFF}, s2, {CH*32}")
    e(f"v_lshlrev_b32 v{X16}, 4, v{LANE}", f"v_lshlrev_b32 v{T+7}, 4, v0", f"v_mov_b32 v{ONE}, 1")
    e(f"s_lshl_b32 s{sEM}, s3, 10", f"s_add_u32 s{sEM}, s{sEM}, {EAST}", f"s_movk_i32 s{sCNT}, 4096", f"s_movk_i32 s{sNV}, 8192")
    srd_hi(sA0, CH * 4); srd_hi(sA1, CH * 4); srd_hi(sA2, CH * 8); srd_hi(sEA, CH * 32)
    if P["DIAGW"]:
        e(f"s_memrealtime s[{sTSP}:{sTSP+1}]")
    e("s_waitcnt lgkmcnt(0)")
    if P["TS"]:
        e(f"v_writelane_b32 v{TSV}, s92, 0")
        ts.names.append("first")
    ts.stamp("start")
    srd_lo(sA0, 6, f"s{sT}")
    for i in range(3):
        o = f"0 offen offset:{2048*i}" if i < 2 else f"s{sCNT} offen"
        vq.op("dst", f"buffer_load_dword v{DSTV+i}, v{T+1}, {sr(sA0)}, {o} {apol}")
    srd_lo(sA1, 4, f"s{sT}")
    if P["ABAR"] == 2:
        e("s_barrier")
    for i in range(3):
        o = f"0 offen offset:{2048*i}" if i < 2 else f"s{sCNT} offen"
        vq.op("src", f"buffer_load_dword v{SRCV+i}, v{T+1}, {sr(sA1)}, {o} {apol}")
    e(f"s_load_dword s{sTAG}, s[14:15], {WS_W}")
    if P["CPF"] == 1:
        cpf()
    srd_lo(sA2, 8, f"s{sT2}")
    srd_lo(sEA, 10, f"s{sOFF}")
    if P["ABAR"] == 1:
        e("s_barrier")
    for i, o in enumerate(("0", f"s{sCNT}", f"s{sNV}")):
        vq.op("sh", f"buffer_load_dwordx2 {vr(SHV+2*i,2)}, v{T+2}, {sr(sA2)}, {o} offen {apol}")

    def aea(p):
        for i in range(5):
            if astage[i] == p:
                e(f"s_add_u32 m0, s{sEM}, {8192*i}", f"s_mov_b32 s{sT}, {8192*i}")
                vq.op("ea", f"buffer_load_dwordx4 v{T+7}, {sr(sEA)}, s{sT} offen {apol} lds")
        if P["WST"] == p:
            weights()
        if P["WOST"] == p:
            wout()

    def weights():
        e("s_cmp_lt_u32 s3, 4")
        e(f"s_cselect_b32 s{sX}, s{SK+4}, s{SK+2}", f"s_cselect_b32 s{sX+1}, s{SK+5}, s{SK+3}", f"s_movk_i32 s{sT}, 128",
          f"s_cselect_b32 s{sX+2}, s{sCNT}, s{sT}", f"s_mov_b32 s{sX+3}, 0x20000")
        e(f"s_min_u32 s{sT}, s3, 5", f"s_lshl_b32 s{sT}, s{sT}, 10", f"s_add_u32 m0, s{sT}, {WR}", f"s_and_b32 s{sT}, s{sT}, 0xc00")
        vq.op("w", f"buffer_load_dwordx4 v{X16}, {sr(sX)}, s{sT} offen lds")

    def wout():
        srd(sOUT, SK + 6, SK + 7, None, 32768)
        e(f"s_lshl_b32 s{sT2}, s3, 12", f"s_add_u32 m0, s{sT2}, {WO}")
        for i in range(4):
            vq.op("w", f"buffer_load_dwordx4 v{X16}, {sr(sOUT)}, s{sT2} offen offset:{i*1024} lds")

    aea(0)
    if not P["ABAR"]:
        e("s_barrier")
    e(f"s_mov_b32 s{SK+8}, 109951168", f"s_movk_i32 s{SK+9}, 625", f"s_movk_i32 s{SK+10}, 838")
    e(f"v_cmp_gt_u32 s[{sV+4}:{sV+5}], {CH-1024}, v0") if CH - 1024 <= 64 else e(f"s_movk_i32 s{sT}, {CH-1024}", f"v_cmp_gt_u32 s[{sV+4}:{sV+5}], s{sT}, v0")
    srd(sTAB, 14, 15, None, (WS_FL + 0x10000) if P["DH"] else WS_W + 64)
    init_round(True)
    if P["ACCZ"] == 9:
        for i in range(48):
            e(f"v_mov_b32 v{ACC+i}, 0")
    vq.wait("dst")
    ts.stamp("dst")
    for k in range(3):
        e(f"v_mul_hi_u32 v{BK+k}, v{DSTV+k}, s{SK+8}")
    for k in range(3):
        e(f"v_lshlrev_b32 v{BA+k}, 2, v{BK+k}")
        if k == 2:
            e(f"s_mov_b64 exec, s[{sV+4}:{sV+5}]")
        e(f"ds_add_rtn_u32 v{RK+k}, v{BA+k}, v{ONE} offset:{ACNT}")
    e("s_mov_b64 exec, -1")
    e("s_waitcnt lgkmcnt(0)", "s_barrier")
    ts.stamp("hist")
    e(f"ds_read_b128 {vr(CT,4)}, v{X16} offset:{ACNT}")
    e(f"s_mul_i32 s{sTAG}, s{sTAG}, 0x9e3779b1", f"s_add_u32 s{sTAG}, s{sTAG}, 0x7f4a7c15")
    e(f"s_mul_i32 s{sTAG2}, s{sTAG}, 0x85ebca6b", f"s_and_b32 s{sTAG2}, s{sTAG2}, 0xffc00000")
    aea(1)
    for k in range(3):
        e(f"v_mad_u32_u24 v{NL+k}, v{BK+k}, s{SK+9}, 15", f"v_lshrrev_b32 v{NL+k}, 4, v{NL+k}", f"v_sub_u32 v{NL+k}, v{DSTV+k}, v{NL+k}")
    e("s_waitcnt lgkmcnt(0)")
    e(f"v_add_u32 v{T+3}, v{CT}, v{CT+1}", f"v_add3_u32 v{T+3}, v{T+3}, v{CT+2}, v{CT+3}", f"v_mov_b32 v{T+4}, v{T+3}")
    scan_dpp(e, T + 4, True)
    e(f"v_sub_u32 v{ST}, v{T+4}, v{T+3}")
    for k in range(3):
        e(f"v_add_u32 v{ST+1+k}, v{ST+k}, v{CT+k}")
    e(f"ds_write_b128 v{X16}, {vr(ST,4)} offset:{ASTART}")
    for k in range(3):
        e(f"ds_read_b32 v{PS+k}, v{BA+k} offset:{ASTART}")
    vq.wait("src")
    for k in range(3):
        e(f"v_mul_u32_u24 v{KEY+k}, s{SK+10}, v{SRCV+k}", f"v_bfe_u32 v{KEY+k}, v{KEY+k}, 18, 5")
        e(f"v_lshl_or_b32 v{KEY+k}, v{NL+k}, 5, v{KEY+k}",
          f"v_lshlrev_b32 v{KEY+k}, 21, v{KEY+k}", f"v_lshl_or_b32 v{KEY+k}, v{SRCV+k}, 7, v{KEY+k}")
    e(f"v_lshlrev_b32 v{NL}, 5, v0", f"v_add_u32 v{NL+1}, {512*32}, v{NL}", f"v_add_u32 v{NL+2}, {1024*32}, v{NL}")
    e(f"s_mov_b32 s{sT2}, {ASKS}")
    vq.wait("sh", "lgkmcnt(0)")
    for k in range(3):
        e(f"v_add_u32 v{PS+k}, v{PS+k}, v{RK+k}")
        e(f"v_lshlrev_b32 v{BA+k}, 2, v{PS+k}", f"v_mad_u32_u24 v{PS+k}, v{PS+k}, 12, s{sT2}")
        if k == 2:
            e(f"s_mov_b64 exec, s[{sV+4}:{sV+5}]")
        e(f"ds_write_b32 v{BA+k}, v{NL+k} offset:{AINV}")
        e(f"ds_write2_b32 v{PS+k}, v{SHV+2*k}, v{SHV+2*k+1} offset0:0 offset1:1")
        e(f"ds_write_b32 v{PS+k}, v{KEY+k} offset:8")
    e("s_mov_b64 exec, -1")
    aea(2)
    e(f"s_lshl_b32 s{sT}, s3, 7", f"v_lshl_add_u32 v{T+3}, v{LANE}, 3, s{sT}")
    e(f"ds_read_b64 {vr(CT,2)}, v{T+3} offset:{ACNT}", f"ds_read_b64 {vr(ST,2)}, v{T+3} offset:{ASTART}")
    e(f"s_mul_i32 s{sT}, s2, {CS*12}", f"s_add_u32 s{sT}, s{sT}, {WS_SK}")
    srd(sA0, 14, 15, f"s{sT}", CS * 12)
    e(f"s_mul_i32 s{sT}, s2, {CS*32}", f"s_add_u32 s{sT}, s{sT}, {WS_EA}")
    srd(sA1, 14, 15, f"s{sT}", CH * 32)
    e(f"v_lshrrev_b32 v{T+3}, 1, v0", f"v_lshlrev_b32 v{T+3}, 2, v{T+3}")
    e(f"v_and_b32 v{T+4}, 1, v0", f"v_lshlrev_b32 v{T+4}, 4, v{T+4}", f"v_add_u32 v{T+4}, {EAST}, v{T+4}", f"v_add_u32 v{T+6}, {ASKS}, v{T+7}")
    e("s_waitcnt lgkmcnt(0)", "s_barrier")
    ts.stamp("scat")
    e(f"ds_read_b128 {vr(OUTV,4)}, v{T+6}", f"ds_read_b128 {vr(OUTV+4,4)}, v{T+6} offset:8192")
    for i in range(5):
        e(f"ds_read_b32 v{IV+i}, v{T+3} offset:{AINV + i*1024}")

    def skst():
        vq.op("skst", f"buffer_store_dwordx4 {vr(OUTV,4)}, v{T+7}, {sr(sA0)}, 0 offen sc1")
        vq.op("skst", f"buffer_store_dwordx4 {vr(OUTV+4,4)}, v{T+7}, {sr(sA0)}, s{sNV} offen sc1")
    DH = P["DH"]
    if DH == 1:
        e("s_waitcnt lgkmcnt(5)")
        skst()
    aea(3)
    if DH == 2:
        e("s_waitcnt lgkmcnt(5)")
        skst()

    def frag_r(F0, t0, t1, t2):
        e(f"v_lshrrev_b32 v{t0}, 5, v{LANE}", f"v_lshlrev_b32 v{t0}, 10, v{t0}", f"v_and_b32 v{t1}, 15, v{LANE}", f"v_lshl_add_u32 v{t0}, v{t1}, 4, v{t0}")
        for i in range(8):
            e(f"ds_read_b128 {vr(F0+4*i,4)}, v{t0} offset:{WR + 2048*(i//4) + 256*(i%4)}")
        e(f"v_lshrrev_b32 v{t0}, 4, v{LANE}", f"v_lshlrev_b32 v{t0}, 5, v{t0}", f"v_and_b32 v{t1}, 3, v{LANE}", f"v_lshl_add_u32 v{t0}, v{t1}, 1, v{t0}")
        for v in range(4):
            e(f"ds_read_u16 v{F0+32+v}, v{t0} offset:{WR + 4096 + 8*v}")
        e(f"v_bfe_i32 v{t2}, v{LANE}, 4, 1", f"v_and_b32 v{t2}, 0x02020202, v{t2}", f"v_add_u32 v{t2}, 0x05040100, v{t2}")
        e("s_waitcnt lgkmcnt(0)")
        for h in range(2):
            for t in range(2):
                for ip in range(4):
                    e(f"v_perm_b32 v{WRF+8*h+2*ip+t}, v{F0+4*(2*ip+1)+t+2*h}, v{F0+4*(2*ip)+t+2*h}, v{t2}")
        e(f"v_lshl_or_b32 v{CGF}, v{F0+33}, 16, v{F0+32}", f"v_lshl_or_b32 v{CGF+1}, v{F0+35}, 16, v{F0+34}")

    def frag_o(F0, F1, t0, t1, sM):
        e(f"v_and_b32 v{t1}, 7, v{LANE}", f"v_lshrrev_b32 v{t0}, 4, v{LANE}", f"v_lshlrev_b32 v{t0}, 13, v{t0}", f"v_lshl_add_u32 v{t0}, v{t1}, 4, v{t0}",
          f"v_and_b32 v{t1}, 8, v{LANE}", f"s_and_b32 s{sM}, s3, 3", f"s_lshl_b32 s{sM}, s{sM}, 8", f"s_lshr_b32 s{sM+1}, s3, 2", f"s_lshl_b32 s{sM+1}, s{sM+1}, 7",
          f"s_add_u32 s{sM}, s{sM}, s{sM+1}", f"s_add_u32 s{sM}, s{sM}, {WO}", f"v_add3_u32 v{t0}, v{t0}, v{t1}, s{sM}")
        for ip in range(4):
            e(f"ds_read2st64_b64 {vr(F0+4*ip,4)}, v{t0} offset0:{4*ip} offset1:{4*ip+2}")
        e(f"s_mov_b32 s{sM}, 0x05040100", f"s_mov_b32 s{sM+1}, 0x07060302")
        for ip in range(4):
            e(f"s_waitcnt lgkmcnt({3-ip})")
            for t in range(4):
                e(f"v_perm_b32 v{F1+4*t+ip}, v{F0+4*ip+2+t//2}, v{F0+4*ip+t//2}, s{sM+t%2}")

    def consts():
        e(f"s_and_b32 s{sB}, s2, 7", f"s_lshl_b32 s{sB}, s{sB}, 5", f"s_lshr_b32 s{sT}, s2, 3", f"s_add_u32 s{sB}, s{sB}, s{sT}")
        e(f"s_mul_i32 s{sNB}, s{sB}, 625", f"s_add_u32 s{sNCNT}, s{sNB}, 640", f"s_add_u32 s{sNB}, s{sNB}, 15",
          f"s_lshr_b32 s{sNB}, s{sNB}, 4", f"s_lshr_b32 s{sNCNT}, s{sNCNT}, 4", f"s_sub_u32 s{sNCNT}, s{sNCNT}, s{sNB}")
        e(f"v_bfe_i32 v{SIX}, v{LANE}, 2, 1", f"v_and_b32 v{SIX}, 0xaaaa, v{SIX}", f"v_add_u32 v{SIX}, 0x4444, v{SIX}")
        e(f"v_mov_b32 v{ZAD}, {ZERO}", f"v_and_b32 v{T+3}, 60, v{T+1}", f"v_add_u32 v{T+3}, v{T+3}, v{ZAD}", f"ds_write_b32 v{T+3}, v{T+5}")
        e(f"v_and_b32 v{T+3}, 4, v{LANE}", f"v_lshlrev_b32 v{T+3}, 2, v{T+3}", f"v_mov_b32 v{T+4}, 0xffff", f"v_lshlrev_b32 v{T+4}, v{T+3}, v{T+4}")
        e(f"v_bfe_i32 v{T+3}, v{LANE}, 3, 1", f"v_and_b32 v{MQ}, v{T+3}, v{T+4}", f"v_xor_b32 v{MP}, v{MQ}, v{T+4}")
        if P["PQP"]:
            e(f"v_mov_b32 v{T+3}, 0x0c0c0c0c", f"v_mov_b32 v{T+4}, 0x03020302")
            e(f"v_bfi_b32 v254, v{MP}, v{T+4}, v{T+3}", f"v_bfi_b32 v255, v{MQ}, v{T+4}, v{T+3}", f"v_mov_b32 v{T+4}, 0x01000100")
            e(f"v_bfi_b32 v{MP}, v{MP}, v{T+4}, v{T+3}", f"v_bfi_b32 v{MQ}, v{MQ}, v{T+4}, v{T+3}")
        e(f"v_lshrrev_b32 v{EAC}, 5, v{LANE}", f"v_lshlrev_b32 v{EAC}, 4, v{EAC}", f"v_add_u32 v{EAC}, {EAST}, v{EAC}")
        e(f"v_and_b32 v{LAC}, 15, v{LANE}", f"v_lshlrev_b32 v{LAC}, 2, v{LAC}")
        e(f"v_bfe_u32 v{T+3}, v{LANE}, 3, 2", f"v_and_b32 v{T+4}, 3, v{LANE}", f"v_lshl_add_u32 v{T+3}, v{T+3}, 2, v{T+4}", f"v_lshlrev_b32 v{LBC}, 2, v{T+3}")
        e(f"v_bfe_i32 v{cODD}, v0, 0, 1", f"s_lshl_b32 s{sT}, s3, 10", f"v_and_b32 v{cMAPW}, 4, v{cODD}", f"v_add_u32 v{cMAPW}, s{sT}, v{cMAPW}")
        e(f"v_lshl_add_u32 v{cMAP1}, v{LANE}, 2, s{sT}", f"v_lshrrev_b32 v{cMAP2}, 1, v{LANE}", f"v_lshl_add_u32 v{cMAP2}, v{cMAP2}, 2, s{sT}")
        e(f"v_mul_u32_u24 v{cL12}, 12, v{LANE}", f"v_and_b32 v{cDEG}, 12, v{cMAP1}", f"v_and_b32 v{cBIN}, 124, v{cMAP1}")
        e(f"s_mul_i32 s{sT}, s3, {CAPW}", f"v_add_u32 v{cR21}, s{sT}, v{LANE}", f"v_lshlrev_b32 v{cSH}, 3, v{cR21}", f"v_add_u32 v{cSH}, {SHST}, v{cSH}", f"v_lshlrev_b32 v{cR21}, 21, v{cR21}")
        e(f"s_mul_i32 s{sT}, s3, 640", f"v_add_u32 v{cROW}, s{sT}, v{cBIN}", f"v_sub_u32 v{cTIE}, 63, v{LANE}")
        e(f"s_getreg_b32 s{sM0}, hwreg(HW_REG_XCC_ID, 0, 3)", f"s_lshl_b32 s{sT}, s{sM0}, 4", f"v_subrev_u32 v{cBIN}, s{sT}, v{cBIN}", f"v_and_b32 v{cBIN}, 124, v{cBIN}")
        e(f"v_min_u32 v{cNOD}, 39, v{LANE}", f"v_lshlrev_b32 v{cNOD}, 7, v{cNOD}", f"v_mov_b32 v{c380}, 0x380")
        e(f"v_lshrrev_b32 v{cLST}, 3, v{LANE}", f"v_mul_u32_u24 v{cLST}, {GAP*4}, v{cLST}", f"v_add_u32 v{cLST}, {LIST}, v{cLST}")
        e(f"s_lshr_b32 s{sEO}, s3, 1", f"s_mul_i32 s{sEO}, s{sEO}, 3", f"s_min_u32 s{sEO}, s{sEO}, 8", f"s_mul_i32 s{sT}, s{sEO}, 4608")
        e(f"v_and_b32 v{T+3}, 15, v{LANE}", f"v_lshrrev_b32 v{T+4}, 4, v{LANE}")
        e(f"v_mul_u32_u24 v{eFR}, 288, v{T+3}", f"v_lshl_add_u32 v{eFR}, v{T+4}, 4, v{eFR}", f"v_add_u32 v{eFR}, s{sT}, v{eFR}")
        e(f"v_lshrrev_b32 v{T+4}, 3, v{LANE}", f"v_lshlrev_b32 v{T+4}, 9, v{T+4}", f"v_and_b32 v{T+3}, 7, v{LANE}", f"v_lshl_add_u32 v{eST}, v{T+3}, 4, v{T+4}")
        e(f"s_lshl_b32 s{sEO}, s{sEO}, 12", f"s_and_b32 s{sT}, s3, 1", f"s_lshl_b32 s{sT}, s{sT}, 7", f"s_add_u32 s{sEO}, s{sEO}, s{sT}",
          f"s_lshl_b32 s{sT}, s{sT}, 7", f"s_add_u32 s{sT}, s{sT}, {WO}", f"v_add_u32 v{eWF}, s{sT}, v{X16}")
        e(f"s_cmp_eq_u32 s{sNCNT}, 40")
        tabs = []
        for part in PARTS[P["BIAS"]]:
            t = [0] * 40
            for w, p in enumerate(part):
                for sl, r in enumerate(p):
                    t[r] = w * 8 + sl
            tabs.append([sum(t[5 * q + i] << (6 * i) for i in range(5)) for q in range(8)])
        e(f"v_mov_b32 v{RT}, 0")
        for q in range(8):
            e(f"s_mov_b32 s{sT}, {tabs[0][q]}", f"s_cselect_b32 s{sT}, {tabs[1][q]}, s{sT}")
            m = 31 << (5 * q)
            e(f"s_mov_b32 exec_lo, {m & 0xffffffff}", f"s_mov_b32 exec_hi, {m >> 32}", f"v_mov_b32 v{RT}, s{sT}")
        e("s_mov_b64 exec, -1")
        e(f"v_mul_u32_u24 v{T+3}, 52, v{LANE}", f"v_lshrrev_b32 v{T+3}, 8, v{T+3}", f"v_mad_i32_i24 v{T+3}, v{T+3}, -5, v{LANE}",
          f"v_mul_u32_u24 v{T+3}, 6, v{T+3}", f"v_lshrrev_b32 v{RT}, v{T+3}, v{RT}")
        e(f"v_and_b32 v{T+3}, 7, v{RT}", f"v_bfe_u32 v{RT}, v{RT}, 3, 3", f"v_lshlrev_b32 v{T+3}, 12, v{T+3}", f"v_lshl_or_b32 v{RT}, v{RT}, 7, v{T+3}")
        srd(sSK, 14, 15, WS_SK, NCH * CS * 12)

    def extra(pos):
        if P["CPOS"] == pos:
            consts()
        if P["ACCZ"] == pos:
            for i in range(48):
                e(f"v_mov_b32 v{ACC+i}, 0")

    e("s_waitcnt lgkmcnt(0)")
    for i in range(5):
        e(f"v_add_u32 v{IV+i}, v{T+4}, v{IV+i}")
    for k in range(2):
        e(f"v_lshl_or_b32 v{TABV+2*k}, v{CT+k}, 11, v{ST+k}", f"v_or_b32 v{TABV+2*k}, s{sTAG2}, v{TABV+2*k}", f"v_mov_b32 v{TABV+2*k+1}, s{sTAG}")
    extra(0)

    def publish():
        e("s_mov_b64 exec, 0xffff")
        vq.op("tab", f"buffer_store_dwordx4 {vr(TABV,4)}, v{X16}, {sr(sTAB)}, s{sT} offen sc1")
        e("s_mov_b64 exec, -1")

    if DH:
        e(f"s_lshl_b32 s{sT}, s2, 3", f"s_add_u32 s{sT}, s{sT}, s3", f"s_lshl_b32 s{sT}, s{sT}, 8")
    e(f"s_waitcnt vmcnt({min(vq.n('w') + P['WGN'], vq.n('ea'))})")
    e("s_barrier")
    ts.stamp("land")
    if DH in (1, 2):
        publish()
    for i in range(5):
        e(f"ds_read_b128 {vr(OUTV+8+4*i,4)}, v{IV+i}")
    extra(1)
    ts.stamp("guard")
    if DH in (0, 3):
        skst()
    for i in range(5):
        if DH == 3 and i == P["KE"]:
            extra(4)
            e(f"s_lshl_b32 s{sT}, s2, 3", f"s_add_u32 s{sT}, s{sT}, s3", f"s_lshl_b32 s{sT}, s{sT}, 8")
            vq.wait("skst")
            e("s_barrier")
            ts.stamp("skdr")
            publish()
        e(f"s_mov_b32 s{sT}, {8192*i}", f"s_waitcnt lgkmcnt({4-i})")
        vq.op("st", f"buffer_store_dwordx4 {vr(OUTV+8+4*i,4)}, v{T+7}, {sr(sA1)}, s{sT} offen sc1")
    if DH == 3 and P["KE"] == 5:
        extra(4)
        e(f"s_lshl_b32 s{sT}, s2, 3", f"s_add_u32 s{sT}, s{sT}, s3", f"s_lshl_b32 s{sT}, s{sT}, 8")
        vq.wait("skst")
        e("s_barrier")
        ts.stamp("skdr")
        publish()
    aea(4)
    ts.stamp("issued")

    extra(2)
    e(f"s_lshl_b32 s{sT}, s2, 3", f"s_add_u32 s{sT}, s{sT}, s3", f"s_lshl_b32 s{sT}, s{sT}, 8")
    srd(sX, SK, SK + 1, None, N * 1024)
    srd(sEA, 14, 15, WS_EA, NCH * CS * 32)
    if P["XPF"]:
        n = P["XPF"]
        e(f"s_and_b32 s{sBASE}, s{sM0}, 7", f"s_mul_i32 s{sBASE}, s{sBASE}, {1252*1024}", f"s_and_b32 s{sT2}, s2, 0xf8",
          f"s_add_u32 s{sT2}, s{sT2}, s3", f"s_mul_i32 s{sT2}, s{sT2}, {n*128}", f"s_add_u32 s{sBASE}, s{sBASE}, s{sT2}")
        e(f"v_min_u32 v{PFV}, {n-1}, v{LANE}", f"v_lshlrev_b32 v{PFV}, 7, v{PFV}")
    xpf = f"buffer_load_dword v{PFV}, v{PFV}, {sr(sX)}, s{sBASE} offen"
    PL = 206
    PL2 = 170
    poll1 = f"buffer_load_dwordx2 {vr(PL,2)}, v{T+2}, {sr(sTAB)}, s{sNR} offen sc1"

    def tagcheck(pl=PL):
        e(f"v_xor_b32 v{T+3}, s{sTAG2}, v{pl}", f"v_xor_b32 v{T+4}, s{sTAG}, v{pl+1}", f"v_and_or_b32 v{T+3}, v{T+3}, s{sT2}, v{T+4}")
        e(f"v_cmpx_ne_u32 vcc, 0, v{T+3}")

    def outsrd():
        e(f"s_lshl_b32 s{sT}, s{sNB}, 10", f"s_add_u32 s{sOUT}, s12, s{sT}", f"s_addc_u32 s{sOUT+1}, s13, 0",
          f"s_lshl_b32 s{sOUT+2}, s{sNCNT}, 10", f"s_mov_b32 s{sOUT+3}, 0x20000")

    def rwzero():
        for i in range(32):
            e(f"v_mov_b32 v{RW+i}, 0")

    def pollsetup():
        e(f"v_lshrrev_b32 v{T+1}, 1, v0", f"v_lshlrev_b32 v{T+2}, 11, v{T+1}", f"s_lshl_b32 s{sNR}, s{sB}, 3")
        e(f"v_mul_u32_u24 v{RG0}, {CS}, v{T+1}", f"s_mov_b32 s{sROFF}, 0", f"s_mov_b32 s{sCNT}, {SPIN}", f"s_mov_b32 s{sT2}, 0xffc00000")
        e(f"s_mul_i32 s{sEM}, s3, {CAPW*32}", f"s_add_u32 s{sEM}, s{sEM}, {EAST}", f"s_movk_i32 s{sK4}, 4096")

    def wofrag_write():
        for t in range(4):
            e(f"ds_write_b128 v{T}, {vr(144+4*t,4)} offset:{WO + 1024*t}")

    if not DH:
        if P["XPF"] and P["XPOS"] < 0:
            e(f"s_waitcnt vmcnt({-P['XPOS']-1})", xpf, "s_waitcnt vmcnt(1)", "s_barrier")
        else:
            e("s_waitcnt vmcnt(0)", "s_barrier")
        ts.stamp("drained")
        publish()
        if P["XPF"] and P["XPOS"] == 0:
            e(xpf)
        outsrd()
        frag_r(RW, T, T + 1, T + 2)
        if P["XPF"] and P["XPOS"] == 1:
            e(xpf)
        frag_o(128, 144, T, T + 1, SK + 8)
        rwzero()
        e(f"s_lshl_b32 s{sT}, s3, 12", f"v_add_u32 v{T}, s{sT}, v{X16}")
        extra(3)
        if P["XPF"] and P["XPOS"] == 3:
            e("s_waitcnt vmcnt(0)")
        if P["XPF"] and P["XPOS"] >= 2:
            e(xpf)
        pollsetup()
        e(f"s_waitcnt vmcnt({P['PW']})", "s_barrier")
        ts.stamp("frag")
        e(poll1)
        wofrag_write()
        e("s_waitcnt vmcnt(0)")
    else:
        outsrd()
        if P["FRP"] == 0:
            frag_r(RW, T, T + 1, T + 2)
            frag_o(128, 144, T, T + 1, SK + 8)
            rwzero()
        extra(3)
        e(f"s_lshl_b32 s{sT}, s3, 11", f"s_lshl_b32 s{sNR}, s2, 3", f"s_add_u32 s{sT}, s{sT}, s{sNR}", f"s_add_u32 s{sFL}, s{sT}, {WS_FL}")
        e(f"v_mov_b32 v{PL2}, s{sTAG2}", f"v_mov_b32 v{PL2+1}, s{sTAG}", f"v_mov_b32 v{T+3}, 0")
        pollsetup()
        e(f"s_lshl_b32 s{sT}, s3, 12", f"v_add_u32 v{T}, s{sT}, v{X16}")
        if P["PPOS"] == 0:
            ts.stamp("frag")
            e(poll1)
            e("s_waitcnt vmcnt(1)", "s_barrier")
        else:
            e("s_waitcnt vmcnt(0)", "s_barrier")
        ts.stamp("drained")
        n_after = 0
        if P["FL"]:
            e("s_mov_b64 exec, 1")
            e(f"buffer_store_dwordx2 {vr(PL2,2)}, v{T+3}, {sr(sTAB)}, s{sFL} offen sc1")
            e("s_mov_b64 exec, -1")
            n_after += 1
        if P["PPOS"] == 1:
            e(poll1)
            n_after = 0
        if P["XPF"] and P["XPOS"] == 0:
            e(xpf)
            n_after += 1
        if P["FRP"] == 0:
            wofrag_write()
        if P["FRP"] == 2:
            frag_r(RW, T, T + 1, T + 3)
            frag_o(XR, XR + 16, T, T + 1, SK + 8)
            rwzero()
        if P["PPOS"] == 2:
            e(poll1)
            n_after = 0
        e(f"s_lshr_b32 s{sFL}, s{sB}, 5", f"s_lshl_b32 s{sFL}, s{sFL}, 11", f"s_add_u32 s{sFL}, s{sFL}, {WS_FL}")
        e(f"v_lshrrev_b32 v{cFLG}, 1, v0", f"v_lshlrev_b32 v{cFLG}, 3, v{cFLG}")
        if P["PPOS"]:
            ts.stamp("frag")
        e(f"s_waitcnt vmcnt({n_after})")
    tagcheck()
    e("s_cbranch_execnz L_poll")
    e.label("L_polled")
    e("s_mov_b64 exec, -1")
    ts.stamp("tab")
    G1, G2, SKR, RNK, CA = TP + 8, TP + 12, TP + 20, TP, TP + 4
    MU = P["MU"]
    sVm = [sV, sV + 2, sV + 4, sA2]

    m0st = [None]

    def bea1(i):
        if m0st[0] != i // 4 or i == 6:
            e(f"s_add_u32 m0, s{sEM}, {4096*(i//4)}")
        m0st[0] = i // 4
        vq.op("ea", f"buffer_load_dwordx4 v{G2+i}, {sr(sEA)}, {'0' if i < 4 else 's%d' % sK4} offen offset:{1024*(i%4)} {ldpol} lds")

    def bea(p):
        if DH and P["FL"]:
            if p == P["FP"]:
                vq.op("fp", f"buffer_load_dwordx2 {vr(PL2,2)}, v{cFLG}, {sr(sTAB)}, s{sFL} offen sc1")
            if p == P["FQ"]:
                ts.stamp("fq0")
                vq.wait("fp")
                e(f"v_xor_b32 v{T+3}, s{sTAG2}, v{PL2}", f"v_xor_b32 v{T+4}, s{sTAG}, v{PL2+1}", f"v_or_b32 v{T+3}, v{T+3}, v{T+4}")
                e(f"v_cmp_ne_u32 vcc, 0, v{T+3}", "s_cbranch_vccnz L_fpoll")
                e.label("L_flagged")
                ts.stamp("fq1")
                e(f"s_cmp_gt_i32 s{sNW}, 192", "s_cbranch_scc1 L_r1e")
                e.label("L_r1eb")
                m0st[0] = None
        for i in range(6):
            if bstage[i] == p:
                bea1(i)
        if DH and P["XPF"] and P["XPOS"] == 5 and p == max(bstage, key=lambda q: ORDER.index(q)):
            e(xpf)
    ORDER = [0, 1, 2, 6, 3, 4]
    if DH and P["FL"]:
        assert all(ORDER.index(q) >= ORDER.index(P["FQ"]) for q in bstage), "edge_attr loads before the flag check"
        assert ORDER.index(P["FP"]) <= ORDER.index(P["FQ"])

    def skld(i):
        e(f"v_mad_u32_u24 v{G1+i}, v{G1+i}, 12, v{cL12}")
        vq.op(f"sk{i}", f"buffer_load_dwordx3 {vr(SKR+4*i,3)}, v{G1+i}, {sr(sSK)}, 0 offen offset:{768*i} {ldpol}")

    cmps = [f"v_cmp_lt_i32 s[{SK+2*i}:{SK+2*i+1}], {2*i}, v{T+2}" for i in range(MU + 1)]
    e(f"v_bfe_u32 v{RLEN}, v{PL}, 11, 11", f"v_and_b32 v{RBASE}, v{RLEN}, v{cODD}", f"v_add_u32 v{T+2}, v{RLEN}, v{cODD}")
    fill = [f"v_and_b32 v{T+3}, 0x7ff, v{PL}"] + cmps + [f"v_add_u32 v{RG0}, v{RG0}, v{T+3}"]
    e(fill.pop(0))
    for mod in ("row_shr:1 row_mask:0xf", "row_shr:2 row_mask:0xf", "row_shr:4 row_mask:0xf", "row_shr:8 row_mask:0xf", "row_bcast:15 row_mask:0xa", "row_bcast:31 row_mask:0xc"):
        e(f"v_add_u32_dpp v{RBASE}, v{RBASE}, v{RBASE} {mod} bank_mask:0xf")
        e(*fill[:2]); fill = fill[2:]
    e(f"v_readlane_b32 s{sNW}, v{RBASE}, 63")
    e(f"v_mov_b32_dpp v{RBASE}, v{RBASE} quad_perm:[0,0,2,2] row_mask:0xf bank_mask:0xf")
    e(f"v_sub_u32 v{RG0}, v{RG0}, v{RBASE}")
    e(f"v_lshl_add_u32 v{T}, v{RBASE}, 2, v{cMAPW}")
    e(f"s_cmp_gt_u32 s{sNW}, {CAPW}", "s_cbranch_scc1 L_clip")
    e.label("L_mapw")
    for i in range(MU):
        e(f"s_mov_b64 exec, s[{SK+2*i}:{SK+2*i+1}]")
        e(f"ds_write_b32 v{T}, v{RG0} offset:{8*i}")
    e("s_mov_b64 exec, -1")
    e(f"s_cmp_lg_u64 s[{SK+2*MU}:{SK+2*MU+1}], 0", "s_cbranch_scc1 L_map2")
    for i in range(3):
        e(f"ds_read_b32 v{G1+i}, v{cMAP1} offset:{256*i}")
    for i in range(6):
        e(f"ds_read_b32 v{G2+i}, v{cMAP2} offset:{128*i}")
    e(f"s_cmp_gt_i32 s{sNW}, 192", "s_cbranch_scc1 L_r1")
    e.label("L_r1b")
    e("s_waitcnt lgkmcnt(6)")
    ts.stamp("map")
    for i in range(3):
        skld(i)
    e(f"v_mov_b32 v{T+3}, s{sNW}", "s_mov_b64 exec, 1", f"ds_max_i32 v{T+5}, v{T+3} offset:{TOT}", "s_mov_b64 exec, -1")
    e("s_waitcnt lgkmcnt(1)")
    for i in range(6):
        e(f"v_lshl_add_u32 v{G2+i}, v{G2+i}, 5, v{X16}")
    if P["SKBAR"]:
        e("s_barrier")
    ts.stamp("skiss")
    if DH and P["XPF"] and P["XPOS"] == 6:
        vq.op("xpf", xpf)
    bea(0)
    if DH and P["FRP"] == 1:
        e(f"s_cmp_lg_u32 s{sROFF}, 0", "s_cbranch_scc1 L_nofrag")
        frag_r(RW, T, T + 1, T + 2)
        frag_o(XR, XR + 16, T, T + 1, SK + 8)
        rwzero()
        e.label("L_nofrag")
    assert 5 not in bstage
    e(f"s_min_i32 s{sT}, s{sNW}, {CAPW}")
    for i in range(4):
        e(f"v_cmp_gt_i32 s[{sVm[i]}:{sVm[i]+1}], s{sT}, v{LANE}", f"s_sub_i32 s{sT}, s{sT}, 64")
    e(f"s_mov_b32 s{sT2}, 0x1fff80", f"s_mul_i32 s{sOFF}, s3, 5")
    assert P["SKBAR"]
    late_wf = DH and P["FRP"] in (1, 2)
    if not late_wf:
        for q in range(NK):
            e(f"ds_read_b128 {vr(WF[q],4)}, v{eWF} offset:{1024*q}")

    def count(i):
        key = SKR + 4 * i + 2
        e(f"v_lshrrev_b32 v{CA+i}, 21, v{key}", f"v_lshlrev_b32 v{CA+i}, 2, v{CA+i}")
        e(f"v_lshrrev_b32 v{T+3}, 26, v{key}", f"v_lshl_or_b32 v{T+3}, v{T+3}, 4, v{cDEG}")
        e(f"s_mov_b64 exec, s[{sVm[i]}:{sVm[i]+1}]")
        e(f"ds_add_rtn_u32 v{RNK+i}, v{CA+i}, v{ONE} offset:{CNT2}")
        e(f"ds_add_u32 v{T+3}, v{ONE} offset:{DEG}")
        e("s_mov_b64 exec, -1")

    def entry(i):
        key = SKR + 4 * i + 2
        if i == 3:
            e("s_mov_b32 exec_hi, 0")
        e(f"ds_write_b64 v{cSH}, {vr(SKR+4*i,2)} offset:{512*i}")
        if i == 3:
            e("s_mov_b32 exec_hi, -1")
        e(f"v_and_or_b32 v{key}, v{key}, s{sT2}, v{cR21}")
        if i:
            e(f"v_add_u32 v{key}, {64*i << 21}, v{key}")

    for i in range(3):
        vq.wait(f"sk{i}")
        if i == 0:
            ts.stamp("sk")
        count(i)
    e(f"s_cmp_gt_i32 s{sNW}, 192", "s_cbranch_scc1 L_r2")
    e.label("L_r2b")
    ts.stamp("atom")
    e(f"s_or_b32 s{sT}, s2, s3", "s_cbranch_scc0 L_tag")
    e.label("L_tagged")
    bea(1)
    for j in range(1, 5):
        e(f"s_add_u32 s{SK+j}, s{sOFF}, {j}")
    e("s_waitcnt lgkmcnt(0)", "s_barrier")
    ts.stamp("b1")
    CN, CAD = XR, XR + 8
    e(f"s_cmp_lg_u32 s{sROFF}, 0", "s_cbranch_scc1 L_rank2")
    if late_wf:
        e(f"s_lshl_b32 s{sT}, s3, 12", f"v_add_u32 v{T}, s{sT}, v{X16}")
        for t in range(4):
            e(f"ds_write_b128 v{T}, {vr(XR+16+4*t,4)} offset:{WO + 1024*t}")
    e(f"ds_read_b128 {vr(CAD,4)}, v{X16} offset:{DEG}")
    for j in range(5):
        e(f"ds_read_b32 v{CN+j}, v{cROW} offset:{CNT2 + 128*j}")
    e(f"ds_read_b32 v{T+6}, v{T+5} offset:{TOT}")
    if P["ENP"] == 0:
        for i in range(3):
            entry(i)
    e(f"s_waitcnt lgkmcnt({9 if P['ENP'] == 0 else 6})")
    e(f"v_add_u32 v{T+1}, v{CAD}, v{CAD+1}", f"v_add3_u32 v{T+1}, v{T+1}, v{CAD+2}, v{CAD+3}")
    e(f"v_lshl_or_b32 v{T+1}, v{T+1}, 6, v{cTIE}")
    for j in range(5):
        e(f"v_readlane_b32 s{SK+j}, v{T+1}, s{SK+j if j else sOFF}")
    for j in range(5):
        e(f"v_cmp_lt_u32 s[{SK+6+2*j}:{SK+7+2*j}], s{SK+j}, v{T+1}")
    for j in range(5):
        e(f"s_bcnt1_i32_b64 s{SK+j}, s[{SK+6+2*j}:{SK+7+2*j}]")
    e(f"s_waitcnt lgkmcnt({3 if P['ENP'] == 0 else 0})")
    for j in range(5):
        e(f"v_readlane_b32 s{sASG[j]}, v{RT}, s{SK+j}")
    e(f"v_readfirstlane_b32 s{sN}, v{T+6}")
    e.label("L_ranked")
    e("s_mov_b32 exec_hi, 0")
    for j in range(5):
        e(f"v_and_or_b32 v{CAD+j}, s{sASG[j]}, v{c380}, v{cBIN}")
        e(f"ds_add_rtn_u32 v{CN+j}, v{CAD+j}, v{CN+j} offset:{WB}")
    for j in range(5):
        e(f"v_or_b32 v{CAD+j}, s{sASG[j]}, v{cBIN}")
    e(f"s_lshl_b32 s{sT}, s3, 3", f"s_add_u32 s{sOFF}, s{sT}, 7")
    for j in range(5):
        if j in (0, 2):
            e(f"s_waitcnt lgkmcnt({3 if j == 0 else 2})")
        e(f"v_lshl_or_b32 v{CN+j}, v{CN+j}, 16, v{CAD+j}")
        e(f"ds_write_b32 v{cROW}, v{CN+j} offset:{CNT2 + 128*j}")
    e("s_mov_b32 exec_hi, -1")
    ts.stamp("rank")
    bea(2)
    if P["ENP"] == 1:
        for i in range(3):
            entry(i)
    e(f"s_waitcnt lgkmcnt({3 if P['ENP'] == 1 else 0})", "s_barrier")
    ts.stamp("b2")
    e(f"ds_read_b128 {vr(CN,4)}, v{X16} offset:{WB}")
    for i in range(3):
        e(f"ds_read_b32 v{CA+i}, v{CA+i} offset:{CNT2}")
    bea(6)
    e("s_waitcnt lgkmcnt(3)")
    e(f"v_add_u32 v{T+1}, v{CN}, v{CN+1}", f"v_add3_u32 v{T+1}, v{T+1}, v{CN+2}, v{CN+3}", f"v_mov_b32 v{T+2}, v{T+1}")
    e("s_waitcnt lgkmcnt(0)")

    def place(i):
        key = SKR + 4 * i + 2
        return [f"v_bfe_u32 v{T+7}, v{CA+i}, 12, 3", f"v_or_b32 v{key}, v{T+7}, v{key}", f"v_and_b32 v{G1+i}, 0x3ff, v{CA+i}",
                f"v_lshrrev_b32 v{CA+i}, 16, v{CA+i}", f"v_add_u32 v{CA+i}, v{CA+i}, v{RNK+i}"]

    fill = place(0) + place(1) + place(2)
    e(fill.pop(0))
    for mod in ("row_shr:1 row_mask:0xf", "row_shr:2 row_mask:0xf", "row_shr:4 row_mask:0xf", "row_shr:8 row_mask:0xf", "row_bcast:15 row_mask:0xa", "row_bcast:31 row_mask:0xc"):
        e(f"v_add_u32_dpp v{T+2}, v{T+2}, v{T+2} {mod} bank_mask:0xf")
        e(*fill[:2]); fill = fill[2:]
    e(f"v_sub_u32 v{T+1}, v{T+2}, v{T+1}")
    e(f"v_lshl_add_u32 v{CAD}, v{T+1}, 2, v{cLST}")
    for k in range(3):
        e(f"v_lshl_add_u32 v{CAD+1+k}, v{CN+k}, 2, v{CAD+k}")
    e(f"ds_write_b128 v{X16}, {vr(CAD,4)} offset:{START}")
    for i in range(3):
        e(f"ds_read_b32 v{G1+i}, v{G1+i} offset:{START}")
    e(*fill)
    e(f"v_readlane_b32 s{sNV}, v{T+2}, s{sOFF}", f"v_readlane_b32 s{sCNT}, v{T+1}, s{sT}", f"v_readlane_b32 s{sBASE}, v{CAD}, s{sT}")
    e(f"v_mov_b32 v{T+6}, {(0x3fff << 7) | 5}")
    e(f"s_sub_u32 s{sNV}, s{sNV}, s{sCNT}", f"s_lshl2_add_u32 s{sT2}, s{sNV}, s{sBASE}", f"v_add_u32 v{T+1}, s{sT2}, v{LAC}")
    e(f"ds_write_b32 v{T+1}, v{T+6}")
    assert D == 6
    sP0 = sT
    e(f"s_add_u32 s{sCNT}, s{sNV}, 15", f"s_lshr_b32 s{sCNT}, s{sCNT}, 4", f"s_sub_u32 s{sP0}, 0, s{sNV}", f"s_and_b32 s{sP0}, s{sP0}, 14",
      f"s_sub_u32 s{sCNT}, s{sCNT}, 1", f"s_cmp_gt_i32 s{sCNT}, 0", f"s_cselect_b32 s{sP0}, s{sP0}, 0", f"s_lshl_b32 s{sOFF}, s{sP0}, 2",
      f"s_sub_u32 s{sBASE}, s{sBASE}, s{sOFF}")

    def scatter(i):
        e(f"s_mov_b64 exec, s[{sVm[i]}:{sVm[i]+1}]")
        e(f"ds_write_b32 v{CA+i}, v{SKR+4*i+2}")

    e("s_waitcnt lgkmcnt(1)")
    for i in range(3):
        e(f"v_lshl_add_u32 v{CA+i}, v{CA+i}, 2, v{G1+i}")
    for i in range(3):
        scatter(i)
    e("s_mov_b64 exec, -1")
    e(f"s_cmp_gt_i32 s{sNW}, 192", "s_cbranch_scc1 L_r3")
    e.label("L_r3b")
    bea(3)
    ts.stamp("list")
    e(f"v_add_u32 v{LA}, s{sBASE}, v{LAC}", f"v_add_u32 v{LB}, s{sBASE}, v{LBC}",
      f"s_and_b32 s{sOFF}, s{sOFF}, 32", f"v_add_u32 v{T+4}, s{sOFF}, v{LA}", f"s_and_b32 s{SK+8}, s{sP0}, 6")
    e(f"s_mov_b32 s{sT2}, 0x00fffc38", f"s_mov_b32 s{sNR}, 0xffffff00", f"s_mov_b32 s{sBASE}, {SHST}")
    if P["PRIO"] == 1:
        e("s_cmp_lt_u32 s3, 4", "s_cbranch_scc1 L_np", "s_setprio 1")
        e.label("L_np")
    e("s_waitcnt lgkmcnt(0)", "s_barrier")
    ts.stamp("b4")
    if P["B4P"] == 0:
        bea(4)
    e(f"ds_read_b32 v{K}, v{T+4}", f"ds_read_b32 v{ENT+2}, v{LB}", f"ds_read_b32 v{KN}, v{LA} offset:{4*D}", f"ds_read_b32 v{NOD}, v{cNOD} offset:{CNT2}")
    if P["B4P"] == 1:
        bea(4)
    e(f"s_cmp_eq_u32 s{sNV}, 0", "s_cbranch_scc1 L_empty")

    def agaddr():
        e(f"v_lshlrev_b32 v{T+4}, 2, v{LANE}", f"s_lshl_b32 s{sOFF}, s3, 7")
        e(f"v_and_b32 v{NOD}, 0x7380, v{NOD}", f"v_xor_b32 v{NOD}, s{sOFF}, v{NOD}")
        e(f"v_alignbit_b32 v{NOD}, v{NOD}, v{NOD}, 12")
        m = [f"s[{q}:{q+1}]" for q in sVm] + ["vcc"]
        for j in range(5):
            e(f"v_cmp_eq_u32 {m[j]}, {j}, v{NOD}")
        for j in range(5):
            e(f"s_ff1_i32_b64 s{sNODE+j}, {m[j]}", f"s_mul_i32 s{sNODE+j}, s{sNODE+j}, 1152", f"v_add_u32 v{eAG[j]}, s{sNODE+j}, v{T+4}")

    AL = P["ALIGN"]

    def al():
        if AL:
            e(".p2align 3")

    def ea_reads():
        e(f"v_lshrrev_b32 v{T}, 21, v{ENT+2}", f"v_lshl_add_u32 v{T+3}, v{T}, 3, s{sBASE}", f"v_lshl_add_u32 v{T}, v{T}, 5, v{EAC}")
        e(f"ds_read_b64 {vr(ENT,2)}, v{T+3}")
        e(f"ds_read_b128 {vr(EA0,4)}, v{T}")

    def wfr(*qs):
        for q in qs:
            e(f"ds_read_b128 {vr(WF[q],4)}, v{eWF} offset:{1024*q}")

    def zq(q):
        e(f"ds_read_b128 {vr(RW+4*q,4)}, v{ZAD}", f"ds_read_b128 {vr(RW+16+4*q,4)}, v{ZAD}")

    def pq(j):
        p = PQ + 2 * (j % 2)
        if P["PQP"]:
            pr = [f"v_perm_b32 v{p}, v{T+1}, v{T+1}, v{(MP, 254)[j%2]}", f"v_perm_b32 v{p+1}, v{T+1}, v{T+1}, v{(MQ, 255)[j%2]}"]
            return pr if j % 2 else [f"v_cvt_pk_bf16_f32 v{T+1}, v{AGN+j}, v{AGN+j+1}"] + pr
        return [f"v_cvt_pk_bf16_f32 v{T+1+j%2}, v{AGN+j}, v{AGN+j}", f"v_and_b32 v{p}, v{MP}, v{T+1+j%2}", f"v_and_b32 v{p+1}, v{MQ}, v{T+1+j%2}"]

    def head(kind):
        if P["PRIO"] in (4, 5) and kind != "first":
            e("s_setprio 3")
        e(f"s_waitcnt lgkmcnt({0 if kind == 'first' else 2})"); al()
        for q in range(4):
            e(f"v_mfma_f32_4x4x4_16b_bf16 {vr(AGN+4*q,4)}, {vr(ENT,2)}, {vr(CGF,2)}, 0 cbsz:4 abid:{2*q}")
        e(f"v_lshlrev_b32 v{K}, 3, v{KN}", f"v_and_b32 v{K}, s{sT2}, v{K}")
        rd = []
        if kind != "last":
            e(f"v_add_u32 v{LA}, 64, v{LA}", f"v_add_u32 v{LB}, 64, v{LB}")
            rd = [f"ds_read_b32 v{KN}, v{LA} offset:{4*D}", f"ds_read_b32 v{ENT+2}, v{LB}"]
        if kind != "first":
            e("s_waitcnt lgkmcnt(0)"); al()
        groups = [rd + (pq(0) if kind != "first" else []), []]
        for h in range(2):
            e(f"v_smfmac_f32_32x32x32_bf16 {vr(RW+16*h,16)}, {vr(EA0,4)}, {vr(WRF+8*h,8)}, v{SIX}")
            e(*groups[h])

    def pks(j):
        t = TP + 8 * (j % 2)
        for h in range(2):
            r = RW + 16 * h + j
            rp = r & ~1
            sel = "op_sel:[0,1,0] op_sel_hi:[1,1,1]" if r & 1 else "op_sel_hi:[1,0,1]"
            for q in range(2):
                a = ACC + 4 * h + 2 * q
                e(f"v_pk_fma_f32 {vr(a,2)}, {vr(t+4*h+2*q,2)}, {vr(rp,2)}, {vr(a,2)} {sel}")

    def mf(j, h):
        t, p, s = TP + 8 * (j % 2), PQ + 2 * (j % 2), XR + 4 * (j % R)
        e(f"v_mfma_f32_16x16x16_bf16 {vr(t+4*h,4)}, {vr(p,2)}, {vr(s+2*h,2)}, 0")

    def rl(q, lane):
        e(f"v_readlane_b32 s{SK + q % 8}, v{K}, {lane}")

    def sand(q):
        e(f"s_and_b32 s{sOFF}, s{SK + q % 8}, s{sNR}")

    def xl(q):
        e(f"buffer_load_dwordx4 {vr(XR + 4 * (q % R),4)}, v{X16}, {sr(sX)}, s{sOFF} offen")

    def body(last):
        for j in range(0, 16, 2):
            ld = not last or j + D < 16
            if not last or j == 0:
                e.label(f"L_{'f' if last else 'j'}{j}")
            nx = pq(j + 1)
            if P["PRIO"] == 4 and j % 4 == 0 and j:
                e(f"s_setprio {3 - j // 4}")
            if P["PRIO"] == 5:
                e(f"s_setprio {3 - (j // 2) % 4}")
            e(f"s_waitcnt vmcnt({D-1 if ld else 15-j})"); al()
            mf(j, 0)
            if ld:
                rl(j + D, j)
            e(*nx[:1]); mf(j, 1); e(*nx[1:])
            if ld and P["SCH"] == 2:
                sand(j + D); e(f"s_waitcnt vmcnt({D-2})"); xl(j + D)
            elif ld:
                sand(j + D); xl(j + D); e(f"s_waitcnt vmcnt({D-1})")
            else:
                e(f"s_waitcnt vmcnt({14-j})"); al()
            nx = pq(j + 2) if j < 14 else []
            mf(j + 1, 0)
            if ld:
                rl(j + 1 + D, j + 1)
            e(*nx[:1]); mf(j + 1, 1); e(*nx[1:])
            if last and j == 2 and P["AGP"] == 2:
                agaddr(); al()
            if j == 2 and not last:
                e("s_waitcnt lgkmcnt(0)")
                ea_reads(); al()
            if ld:
                sand(j + 1 + D)
            e(f"s_set_gpr_idx_on s{SK + j % 8}, gpr_idx(SRC2,DST)")
            xl(j + 1 + D) if ld else al()
            pks(j)
            e(f"s_set_gpr_idx_idx s{SK + (j + 1) % 8}")
            if j == 14 and not last:
                e(f"s_sub_u32 s{sCNT}, s{sCNT}, 1")
            al()
            pks(j + 1)
            if j % 4 == 2 and not last:
                zq(j // 4)
            if last and j >= 6 and P["WFT"]:
                wfr(*((14, 15) if j == 6 else (j - 2, j - 1)))
            e("s_set_gpr_idx_off")

    e("s_waitcnt lgkmcnt(3)")
    e(f"v_lshlrev_b32 v{K}, 3, v{K}", f"v_and_b32 v{K}, s{sT2}, v{K}")
    if late_wf:
        wfr(*range(NK))
    NB5 = P["NB5"]

    def pair(q):
        rl(q, q); rl(q + 1, q + 1)
        sand(q); xl(q); sand(q + 1); xl(q + 1)

    for q in (2, 4, 6):
        e(f"s_cmp_eq_u32 s{SK+8}, {q}", f"s_cbranch_scc1 L_p{q}")
    for q0 in (0, 2, 4, 6):
        e.label(f"L_p{q0}")
        for i in range(NB5):
            pair(q0 + 2 * i)
        if P["AGP"] == 0:
            e("s_waitcnt lgkmcnt(0)")
            agaddr()
        e(f"s_waitcnt vmcnt({2*NB5 + (1 if DH and P['XPF'] and P['XPOS'] == 5 else 0)}) lgkmcnt(0)", "s_barrier")
        ea_reads()
        for i in range(NB5, 3):
            pair(q0 + 2 * i)
        if q0 < 6:
            e("s_branch L_pd")
    e.label("L_pd")
    if P["AGP"] == 1:
        agaddr()
    ts.stamp("b5")
    head("first")
    e(f"s_set_gpr_idx_on s{sP0}, gpr_idx(SRC0,SRC1)")
    e.idx_range, keep = {("v", i) for i in range(AGN, AGN + 16)}, e.idx_range
    e(pq(0)[0])
    e.idx_range = keep
    e("s_set_gpr_idx_off")
    e(*pq(0)[1:])
    e("s_waitcnt lgkmcnt(0)")
    ea_reads()
    e(f"s_cmp_eq_u32 s{sCNT}, 0", "s_cbranch_scc1 L_f0")
    for j in range(0, 14, 2):
        e(f"s_cmp_eq_u32 s{sP0}, {j}", f"s_cbranch_scc1 L_j{j}")
        if j % 4 == 2:
            zq(j // 4)
    e("s_branch L_j14")
    if P["LAL"] < 0:
        e(".p2align 3")
    else:
        e(".p2align 6")
        for _ in range(P["LAL"] // 4):
            e.raw("    s_nop 0")
    e.label("L_loop")
    head("mid")
    body(False)
    e(f"s_cmp_lg_u32 s{sCNT}, 0", "s_cbranch_scc1 L_loop")
    head("last")
    body(True)
    e.label("L_swept")
    ts.stamp("swept")
    e(f"s_add_u32 s{sROFF}, s{sROFF}, {CAPW}", f"s_cmp_lt_u32 s{sROFF}, s{sN}", "s_cbranch_scc1 L_again")
    AF, DD, OB, OT = ACC, 160, 64, 80
    if P["EPRIO"] >= 0:
        e(f"s_setprio {P['EPRIO']}")
    for s in range(5):
        for w in range(4):
            e(f"v_cvt_pk_bf16_f32 v{RW+4*s+w}, v{ACC+8*s+w}, v{ACC+8*s+4+w}")
        for w in (0, 2):
            e(f"ds_write2_b32 v{eAG[s]}, v{RW+4*s+w}, v{RW+4*s+w+1} offset0:{72*w} offset1:{72*w+72}")
    NPRE = 16
    if not P["WFT"]:
        wfr(*range(NK, 16))
    e(f"s_waitcnt lgkmcnt({0 if P['WFT'] else NPRE - NK})", "s_barrier")
    ts.stamp("agb")
    lq = [f"w{q}" for q in range(NPRE)]

    def lop(tag, text):
        e(text); lq.append(tag)

    def lwait(*tags):
        n = len(lq) - 1 - max(lq.index(t) for t in tags)
        e(f"s_waitcnt lgkmcnt({min(n, 15)})")

    def afrag(k, ss=range(4)):
        for s in ss:
            lop(f"a{k}{s}", f"ds_read_b128 {vr(AF+16*k+4*s,4)}, v{eFR} offset:{AGL + 4608*k + 64*s}")

    def post(k, pol=P['OUTPOL']):
        d, o = DD + 16 * (k % 2), OB + 8 * (k % 2)
        x = []
        for r in range(2):
            for c in range(2):
                x.append(f"v_cvt_pk_bf16_f32 v{o+4*r+c}, v{d+8*c+r}, v{d+8*c+4+r}")
                x.append(f"v_cvt_pk_bf16_f32 v{OT+2*r+c}, v{d+8*c+r}, v{d+8*c+4+r}")
                x.append(f"v_cvt_pk_bf16_f32 v{o+4*r+2+c}, v{d+8*c+r+2}, v{d+8*c+4+r+2}")
            for c in range(2):
                x.append(f"v_mov_b32_dpp v{o+4*r+c}, v{o+4*r+2+c} row_ror:8 row_mask:0xf bank_mask:0xc")
            for c in range(2):
                x.append(f"v_mov_b32_dpp v{o+4*r+2+c}, v{OT+2*r+c} row_ror:8 row_mask:0xf bank_mask:0x3")
            x.append(f"buffer_store_dwordx4 {vr(o+4*r,4)}, v{eST}, {sr(sOUT)}, s{sEO} offen offset:{256*r} {pol}")
        x.append(f"s_add_u32 s{sEO}, s{sEO}, 4096")
        return x

    def tile(k, pend):
        d = DD + 16 * (k % 2)
        for s in range(4):
            if k == 0:
                lwait(f"a0{s}", f"w{4*s+3}")
            elif s == 0:
                lwait(f"a{k}3")
            for t in range(4):
                c = "0" if s == 0 else vr(d + 4 * t, 4)
                e(f"v_mfma_f32_16x16x32_bf16 {vr(d+4*t,4)}, {vr(AF+16*k+4*s,4)}, {vr(WF[4*s+t],4)}, {c}")
                if 4 * s + t >= 4:
                    e(*pend[:2]); pend = pend[2:]
            if k == 0 and s == 0:
                afrag(1)
            if k == 0 and s == 1:
                afrag(2)
        e(*pend)

    for s in range(4):
        afrag(0, [s])
        for q in range(max(NPRE, 4 * s), 4 * s + 4):
            lop(f"w{q}", f"ds_read_b128 {vr(WF[q],4)}, v{eWF} offset:{1024*q}")
    tile(0, [])
    tile(1, post(0))
    e("s_cmp_ge_u32 s3, 4", "s_cbranch_scc1 L_two")
    tile(2, post(1))
    e(*post(2, P['LASTPOL']))
    e.label("L_stored")
    ts.stamp("stored")
    if P["DIAGW"] and P["DIAGAT"] == "fin":
        e("s_waitcnt vmcnt(0)")
        ts.stamp("fin")
    if P["DIAGW"]:
        e(f"s_add_u32 s6, s{sTSP+1}, {P['DIAGW']}", "s_min_u32 s6, s6, 30000")
        e.label("L_diag")
        e("s_memrealtime s[4:5]", "s_waitcnt lgkmcnt(0)", f"s_sub_u32 s4, s4, s{sTSP}", "s_cmp_lt_u32 s4, s6", "s_cbranch_scc1 L_diag")
    if P["TS"]:
        e("s_waitcnt vmcnt(0)")
        ts.stamp("end")
        e(f"s_lshl_b32 s{sT}, s2, 3", f"s_add_u32 s{sT}, s{sT}, s3", f"s_lshl_b32 s{sT}, s{sT}, 8", f"s_add_u32 s{sT}, s{sT}, {WS_TS}")
        e(f"v_lshl_add_u32 v{T}, v{LANE}, 2, s{sT}", f"global_store_dword v{T}, v{TSV}, s[14:15]")
        if P["DBG"]:
            e(f"s_cmp_lg_u32 s2, {P['DBG']}", "s_cbranch_scc1 L_done", "s_cmp_lg_u32 s3, 0", "s_cbranch_scc1 L_done")
            e("s_load_dwordx2 s[4:5], s[0:1], 72", f"v_readlane_b32 s{sT}, v{TSV}, 0", f"v_lshlrev_b32 v{T}, 2, v{LANE}")
            e(f"v_subrev_u32 v{TSV}, s{sT}, v{TSV}", "s_waitcnt lgkmcnt(0)", f"global_store_dword v{T}, v{TSV}, s[4:5]")
    e.label("L_done")
    e("s_endpgm")
    e.label("L_again")
    e("s_waitcnt vmcnt(0) lgkmcnt(0)", "s_barrier")
    init_round(False)
    for i in range(32):
        e(f"v_mov_b32 v{RW+i}, 0")
    e(f"v_add_u32 v{RLEN}, v{RLEN}, v{RBASE}", f"v_subrev_u32 v{RLEN}, {CAPW}, v{RLEN}", f"v_max_i32 v{RLEN}, 0, v{RLEN}")
    e(f"v_subrev_u32 v{RBASE}, {CAPW}, v{RBASE}", f"v_max_i32 v{RBASE}, 0, v{RBASE}", f"v_sub_u32 v{RLEN}, v{RLEN}, v{RBASE}")
    e(f"v_add_u32 v{RG0}, {CAPW}, v{RG0}", f"s_sub_i32 s{sNW}, s{sNW}, {CAPW}", f"v_lshl_add_u32 v{T}, v{RBASE}, 2, v{cMAPW}")
    e("s_waitcnt lgkmcnt(0)", "s_barrier")
    e.label("L_clip")
    e(f"v_add_u32 v{T+2}, v{RBASE}, v{RLEN}", f"v_min_i32 v{T+2}, {CAPW}, v{T+2}", f"v_sub_u32 v{T+2}, v{T+2}, v{RBASE}", f"v_add_u32 v{T+2}, v{T+2}, v{cODD}")
    e.label("L_masks")
    e(*cmps)
    e("s_nop 0", "s_branch L_mapw")
    e.label("L_map2")
    e(f"v_add_u32 v{T}, {8*MU}, v{T}", f"v_subrev_u32 v{T+2}, {2*MU}, v{T+2}")
    e("s_branch L_masks")
    e.label("L_r1")
    e(f"ds_read_b32 v{G1+3}, v{cMAP1} offset:768", f"ds_read_b32 v{G2+6}, v{cMAP2} offset:768")
    e("s_waitcnt lgkmcnt(0)")
    skld(3)
    for i in (6,):
        e(f"v_lshl_add_u32 v{G2+i}, v{G2+i}, 5, v{X16}")
        if not (DH and P["FL"]):
            bea1(i)
    e("s_branch L_r1b")
    if DH and P["FL"]:
        e.label("L_r1e")
        bea1(6)
        e("s_branch L_r1eb")
        e.label("L_fpoll")
        e(f"s_mov_b32 s{SK+13}, {SPIN}")
        e.label("L_fpoll2")
        e(f"buffer_load_dwordx2 {vr(PL2,2)}, v{cFLG}, {sr(sTAB)}, s{sFL} offen sc1", f"s_sub_u32 s{SK+13}, s{SK+13}, 1", "s_cbranch_scc1 L_done", "s_waitcnt vmcnt(0)")
        e(f"v_xor_b32 v{T+3}, s{sTAG2}, v{PL2}", f"v_xor_b32 v{T+4}, s{sTAG}, v{PL2+1}", f"v_or_b32 v{T+3}, v{T+3}, v{T+4}")
        e(f"v_cmp_ne_u32 vcc, 0, v{T+3}", "s_cbranch_vccnz L_fpoll2", "s_branch L_flagged")
    e.label("L_r2")
    count(3)
    entry(3)
    e("s_branch L_r2b")
    e.label("L_r3")
    e(f"ds_read_b32 v{CA+3}, v{CA+3} offset:{CNT2}", "s_waitcnt lgkmcnt(0)")
    e(*place(3))
    e(f"ds_read_b32 v{G1+3}, v{G1+3} offset:{START}", "s_waitcnt lgkmcnt(0)")
    e(f"v_lshl_add_u32 v{CA+3}, v{CA+3}, 2, v{G1+3}")
    scatter(3)
    e("s_mov_b64 exec, -1", "s_branch L_r3b")
    e.label("L_tag")
    e(f"v_mov_b32 v{T+3}, s{sTAG}", f"s_mov_b32 s{sT}, {WS_W}")
    e(f"buffer_store_dword v{T+3}, v{cMAP1}, {sr(sTAB)}, s{sT} offen sc1")
    e("s_branch L_tagged")
    e.label("L_empty")
    e("s_waitcnt vmcnt(0) lgkmcnt(0)", "s_barrier")
    agaddr()
    if late_wf:
        wfr(*range(NK))
    if P["WFT"]:
        wfr(*range(NK, 16))
    e("s_branch L_swept")
    e.label("L_two", pad=8)
    e(*post(1, P['LASTPOL']))
    e("s_branch L_stored")
    e.label("L_poll")
    e(poll1, f"s_sub_u32 s{sCNT}, s{sCNT}, 1", "s_cbranch_scc1 L_done", "s_waitcnt vmcnt(0)")
    tagcheck()
    e("s_cbranch_execnz L_poll", "s_branch L_polled")
    e.label("L_rank2")
    for j in range(5):
        e(f"ds_read_b32 v{CN+j}, v{cROW} offset:{CNT2 + 128*j}")
    if P["ENP"] == 0:
        for i in range(3):
            entry(i)
    e("s_waitcnt lgkmcnt(0)")
    e.label("L_end")
    e("s_branch L_ranked")
    return e.text(), LDS, 256, 102


HEADER = """; Kernarg layout for this problem (88 bytes, ptrs only, base s[0:1]):
"""


def generate(**kw):
    P = dict(DEF)
    P.update(kw)
    k, lds, v, s = gen(P)
    n = NAME + "_kernel"
    out = HEADER
    out += f"; @launch grid=(256,1,1) block=(512,1,1) lds={lds}\n"
    out += '.amdgcn_target "amdgcn-amd-amdhsa--gfx950"\n.text\n'
    out += f".globl {n}\n.p2align 8\n.type {n},@function\n{n}:\n{k}"
    out += '.section .rodata,"a"\n'
    out += (f".p2align 6\n.amdhsa_kernel {n}\n  .amdhsa_next_free_vgpr {v}\n  .amdhsa_next_free_sgpr {s}\n"
            f"  .amdhsa_accum_offset {(v+3)//4*4}\n  .amdhsa_group_segment_fixed_size 0\n  .amdhsa_kernarg_size 88\n"
            f"  .amdhsa_user_sgpr_count 2\n  .amdhsa_user_sgpr_kernarg_segment_ptr 1\n  .amdhsa_system_sgpr_workgroup_id_x 1\n"
            f"  .amdhsa_float_denorm_mode_32 3\n.end_amdhsa_kernel\n")
    return out


if __name__ == "__main__":
    kw = {}
    for a in sys.argv[1:]:
        k, v = a.split("=", 1)
        kw[k] = int(v) if v.lstrip("-").isdigit() else v
    sys.stdout.write(generate(**kw))
```

```python
import sys, os
sys.path.insert(0, os.path.dirname(os.path.abspath(__file__)))
from emit import Emitter

NAME = "gather_scatter__tensor_product_equiv_mace__graph"
N, E = 10000, 320000
CH, NCH, CS = 1250, 256, 1280
WS_TAB, WS_W, WS_SK, WS_EA, WS_TS = 0, 0x80000, 0x100000, 0x500000, 0x2000000
WS_FL = 0x90000
CAPW, GAP = 224, 16
CAP = 8 * CAPW
SPIN = 200000

DEF = dict(XPOL="", WSO=0, XP2=0, XQ=3, PPOS=0, KE=2, B4P=1, RWZ=3, DH=0, FL=1, FRP=0, FP=1, FQ=2, NREP=8, LAL=-1, XPOS=0, PQP=1, NB5=1, AGP=2, ENP=0, PW=0, WFT=1, WFK=6, LASTPOL='sc1', EPRIO=0, BIAS=30, SCH=2, ALIGN=0, PRIO=1, DIAGW=0, DIAGK=0, DIAGAT='tab', D=6, TS=0, DBG=0, APOL="nt", AEA="00011", BEA="001223", SKBAR=1, ABAR=2, XPF=18, CPF=2, MU=7, OUTPOL="sc1", LDPOL="sc1", WST=3, WOST=3, ACCZ=2, CPOS=2, WGN=0)

PART39 = [[3, 11, 21, 31, 36], [5, 8, 20, 27, 38], [0, 6, 7, 13, 39], [9, 14, 18, 25, 34], [10, 16, 19, 24, 32], [4, 12, 26, 29, 33], [1, 17, 23, 28, 37], [2, 15, 22, 30, 35]]
PART40 = [[1, 10, 15, 30, 39], [2, 9, 21, 28, 37], [4, 14, 22, 27, 31], [6, 12, 18, 24, 35], [3, 8, 16, 29, 38], [5, 13, 17, 26, 34], [0, 20, 23, 32, 36], [7, 11, 19, 25, 33]]
PARTS = {0: (PART39, PART40)}
PARTS[12] = ([[12, 16, 24, 26, 30], [8, 14, 15, 31, 36], [2, 10, 23, 34, 37], [5, 17, 18, 22, 38], [0, 1, 7, 19, 39], [3, 11, 20, 29, 35], [6, 9, 25, 27, 32], [4, 13, 21, 28, 33]],
    [[9, 12, 19, 28, 32], [3, 10, 22, 29, 37], [7, 8, 23, 26, 36], [0, 18, 20, 34, 38], [5, 6, 14, 21, 39], [4, 11, 16, 24, 35], [1, 15, 25, 27, 31], [2, 13, 17, 30, 33]])
PARTS[20] = ([[13, 17, 24, 26, 31], [4, 16, 25, 29, 36], [5, 19, 23, 28, 35], [1, 6, 8, 10, 39], [7, 9, 20, 27, 32], [3, 12, 14, 33, 34], [2, 15, 18, 22, 37], [0, 11, 21, 30, 38]],
    [[11, 12, 17, 20, 38], [3, 16, 26, 28, 34], [8, 10, 19, 29, 36], [7, 14, 25, 27, 31], [6, 13, 15, 24, 30], [0, 9, 22, 23, 39], [2, 4, 21, 32, 35], [1, 5, 18, 33, 37]])
PARTS[30] = ([[12, 16, 25, 29, 32], [0, 5, 9, 20, 39], [1, 18, 27, 34, 37], [7, 19, 22, 30, 35], [2, 6, 24, 26, 36], [4, 11, 13, 31, 33], [10, 15, 17, 21, 28], [3, 8, 14, 23, 38]],
    [[6, 9, 26, 28, 37], [1, 11, 24, 35, 38], [5, 17, 23, 31, 33], [8, 12, 21, 29, 36], [2, 4, 15, 22, 39], [7, 10, 14, 18, 34], [0, 16, 20, 30, 32], [3, 13, 19, 25, 27]])
PARTS[40] = ([[7, 13, 28, 29, 37], [10, 17, 22, 30, 36], [1, 4, 6, 23, 39], [9, 19, 26, 31, 33], [5, 12, 15, 18, 35], [2, 11, 16, 27, 34], [0, 8, 24, 25, 38], [3, 14, 20, 21, 32]],
    [[8, 17, 25, 31, 32], [3, 19, 22, 28, 38], [6, 15, 18, 33, 37], [2, 14, 24, 29, 39], [0, 12, 21, 27, 34], [1, 9, 13, 26, 36], [5, 7, 10, 23, 35], [4, 11, 16, 20, 30]])
PARTS[50] = ([[2, 19, 28, 35, 37], [0, 6, 11, 24, 39], [15, 17, 27, 29, 34], [1, 20, 30, 32, 38], [4, 7, 18, 23, 33], [9, 10, 12, 21, 31], [5, 13, 16, 25, 26], [3, 8, 14, 22, 36]],
    [[7, 15, 27, 30, 36], [8, 18, 19, 28, 38], [4, 14, 31, 33, 35], [6, 13, 20, 29, 39], [2, 3, 22, 23, 34], [0, 11, 12, 26, 37], [1, 9, 17, 24, 32], [5, 10, 16, 21, 25]])
PARTS[-10] = ([[5, 13, 17, 28, 34], [7, 12, 16, 30, 32], [1, 9, 25, 26, 38], [11, 14, 18, 22, 33], [0, 2, 10, 20, 39], [3, 6, 23, 35, 37], [15, 19, 21, 24, 29], [4, 8, 27, 31, 36]],
    [[0, 13, 22, 31, 37], [3, 8, 20, 28, 35], [4, 12, 16, 27, 34], [9, 11, 14, 18, 36], [5, 7, 19, 23, 39], [2, 15, 26, 30, 32], [6, 10, 17, 24, 38], [1, 21, 25, 29, 33]])
PARTS[-20] = ([[7, 13, 19, 20, 34], [6, 10, 23, 28, 30], [2, 5, 27, 29, 36], [0, 15, 22, 26, 38], [4, 11, 25, 31, 37], [1, 3, 9, 12, 39], [14, 18, 21, 24, 33], [8, 16, 17, 32, 35]],
    [[5, 9, 16, 20, 36], [8, 10, 15, 21, 33], [3, 7, 22, 25, 34], [4, 14, 18, 26, 28], [6, 12, 17, 29, 37], [0, 11, 23, 35, 39], [2, 19, 27, 30, 32], [1, 13, 24, 31, 38]])


def vr(a, n):
    return f"v[{a}:{a+n-1}]" if n > 1 else f"v{a}"


def sr(a, n=4):
    return f"s[{a}:{a+n-1}]"


def scan_dpp(e, v, full):
    for k in (1, 2, 4, 8):
        e(f"v_add_u32_dpp v{v}, v{v}, v{v} row_shr:{k} row_mask:0xf bank_mask:0xf")
    e(f"v_add_u32_dpp v{v}, v{v}, v{v} row_bcast:15 row_mask:0xa bank_mask:0xf")
    if full:
        e(f"v_add_u32_dpp v{v}, v{v}, v{v} row_bcast:31 row_mask:0xc bank_mask:0xf")


class TS:
    last = None

    def __init__(self, e, on, pair, vreg):
        self.e, self.on, self.pair, self.v, self.names = e, on, pair, vreg, []
        TS.last = self

    diag = None

    def stamp(self, name):
        if self.diag and self.diag[0] == name:
            self.e("s_memrealtime s[4:5]", "s_waitcnt lgkmcnt(0)", f"s_sub_u32 s4, s4, s{self.pair}", f"s_mul_i32 s{self.pair+1}, s4, {self.diag[1]}")
        if self.on and (self.on == 1 or name in str(self.on).split(",") or name in ("start", "end")):
            e, p = self.e, self.pair
            e(f"s_memrealtime s[{p}:{p+1}]", "s_waitcnt lgkmcnt(0)", f"v_writelane_b32 v{self.v}, s{p}, {len(self.names)}")
            self.names.append(name)


class VQ:
    def __init__(self, e):
        self.e, self.q = e, []

    def op(self, tag, text):
        self.e(text)
        self.q.append(tag)

    def n(self, tag):
        idx = max(i for i, t in enumerate(self.q) if t == tag)
        return len(self.q) - 1 - idx

    def wait(self, tag, extra=""):
        self.e(f"s_waitcnt vmcnt({self.n(tag)}) {extra}".strip())


def gen(P):
    e = Emitter()
    vq = VQ(e)
    D = P["D"]
    R = 8
    MAP, CNT2, WB, DEG, TOT, NODEOF, START, WR, WO = 0, 8192, 13312, 14336, 15360, 15616, 16384, 17408, 46080
    LIST = WO + 32768
    SHST = LIST + (CAP + 8 * GAP + 128) * 4
    EAST = SHST + CAP * 8
    assert SHST + CAP * 8 <= EAST
    ZERO = EAST + CAP * 32
    LDS = ZERO + 64
    AGL = 0
    ACNT, ASTART, AINV, ASKS = 23552, 24576, 25600, 30720
    assert ASKS + CS * 12 <= WO and LDS <= 163840
    LANE, X16, RLEN, RBASE, RG0, ONE, PFV = 1, 2, 3, 4, 5, 6, 7
    T = 8
    ACC, RW, XR, TP, AGN, PQ, EA0, EA1, WRF, CGF, ENT = 16, 64, 96, 128, 144, 160, 164, 168, 172, 188, 192
    MP, MQ = CGF + 2, CGF + 3
    SIX, ZAD = EA1, EA1 + 1
    eAG, eFR, eST, eWF, NOD = [208, 209, 210, 211, 212], 213, 214, 215, 205
    NK = P["WFK"]
    assert NK == 6
    WF = [216 + 4 * q for q in range(NK)] + [XR + 4 * q for q in range(8)] + [AGN, AGN + 4]
    K, KN, LA, LB, EAC, LAC, LBC, RT, TSV = 196, 197, 198, 199, 200, 201, 202, 203, 204
    cODD, cMAPW, cMAP1, cMAP2, cL12, cDEG, cSH, cR21, cROW, cTIE, cBIN, cNOD, cLST, c380 = range(240, 254)
    cFLG = 195
    e.idx_range = {("v", i) for i in range(ACC, ACC + 48)}
    sX, sTAB, sSK, sEA, sA0, sA1, sOUT = 16, 20, 24, 28, 32, 36, 40
    sB, sNB, sNCNT, sN, sROFF, sNR, sNV, sBASE, sEM, sCNT, sT, sT2 = 44, 45, 46, 47, 48, 49, 50, 51, 52, 53, 54, 55
    sNODE = 56
    sOFF = 61
    sTAG, sTAG2 = 62, 63
    SK = 64
    sV = 80
    sM0, sEO = 86, 87
    sASG = [90, 91, 92, 93, 94]
    sNW, sK4 = 95, 98
    sA2, sTSP = 96, 100
    sFL = 88
    ts = TS(e, P["TS"], sTSP, TSV)
    if P["DIAGW"]:
        ts.diag = (P["DIAGAT"], P["DIAGK"])
    apol, ldpol = P["APOL"], P["LDPOL"]
    astage = [int(c) for c in str(P["AEA"]).zfill(5)]
    bstage = [int(c) for c in str(P["BEA"]).zfill(6)]

    def srd(s, lo, hi, off, size):
        if off is None:
            e(f"s_mov_b32 s{s}, s{lo}", f"s_mov_b32 s{s+1}, s{hi}")
        else:
            e(f"s_add_u32 s{s}, s{lo}, {off}", f"s_addc_u32 s{s+1}, s{hi}, 0")
        e(f"s_mov_b32 s{s+2}, {size}", f"s_mov_b32 s{s+3}, 0x20000")

    def init_round(first):
        e(f"v_lshlrev_b32 v{T+3}, 2, v0", f"v_mov_b32 v{T+4}, 0x00700000", f"v_mov_b32 v{T+5}, 0")
        for i in range(4):
            e(f"ds_write_b32 v{T+3}, v{T+4} offset:{MAP + i*2048}")
        for i in range(4 if first else 3):
            e(f"ds_write_b32 v{T+3}, v{T+5} offset:{CNT2 + i*2048}")

    DSTV, SRCV, SHV, BK, BA, RK, NL, KEY, CT, ST, PS = 64, 68, 72, 80, 84, 88, 92, 96, 100, 104, 108
    TABV = 112
    OUTV = 128
    IV = 156
    CGR = 120
    if P["TS"]:
        e("s_memrealtime s[92:93]")
    e("s_cmp_ge_u32 s2, 256", "s_cbranch_scc1 L_done")
    e("s_load_dwordx4 s[4:7], s[0:1], 8")
    e("s_load_dwordx4 s[8:11], s[0:1], 24")
    e("s_load_dwordx2 s[14:15], s[0:1], 80")
    e(f"s_load_dwordx2 s[{SK}:{SK+1}], s[0:1], 0")
    e(f"s_load_dwordx2 s[{SK+2}:{SK+3}], s[0:1], 40")
    e(f"s_load_dwordx4 s[{SK+4}:{SK+7}], s[0:1], 48")
    e("s_load_dwordx2 s[12:13], s[0:1], 64")

    def cpf():
        e(f"s_getpc_b64 s[{sV}:{sV+1}]")
        e.label("L_pc")
        e(f"s_and_b32 s{sB}, s2, 0xf8", f"s_lshl_b32 s{sB}, s{sB}, 6")
        e(f"v_and_b32 v{T+3}, 0x180, v{T+2}", f"v_add_u32 v{T+3}, s{sB}, v{T+3}", f"v_min_u32 v{T+3}, L_end-L_pc, v{T+3}")
        e(f"v_mov_b32 v{TABV+1}, s{sV+1}", f"v_add_co_u32 v{TABV}, vcc, s{sV}, v{T+3}", f"v_addc_co_u32 v{TABV+1}, vcc, 0, v{TABV+1}, vcc")
        vq.op("cpf", f"global_load_dword v{TSV+1}, {vr(TABV,2)}, off")

    def srd_hi(s, size):
        e(f"s_mov_b32 s{s+2}, {size}", f"s_mov_b32 s{s+3}, 0x20000")

    def srd_lo(s, lo, off):
        e(f"s_add_u32 s{s}, s{lo}, {off}", f"s_addc_u32 s{s+1}, s{lo+1}, 0")

    e(f"v_lshlrev_b32 v{T+2}, 3, v0")
    if P["CPF"] == 2:
        cpf()
    e(f"v_lshrrev_b32 v{T}, 6, v0", f"v_and_b32 v{LANE}, 63, v0", f"v_lshlrev_b32 v{T+1}, 2, v0", f"v_mov_b32 v{T+5}, 0")
    e(f"v_readfirstlane_b32 s3, v{T}")
    e(f"ds_write_b32 v{T+1}, v{T+5} offset:{ACNT}", f"ds_write_b32 v{T+1}, v{T+5} offset:{AINV+3072}")
    e(f"s_mul_i32 s{sT}, s2, {CH*4}", f"s_mul_i32 s{sT2}, s2, {CH*8}", f"s_mul_i32 s{sOFF}, s2, {CH*32}")
    e(f"v_lshlrev_b32 v{X16}, 4, v{LANE}", f"v_lshlrev_b32 v{T+7}, 4, v0", f"v_mov_b32 v{ONE}, 1")
    e(f"s_lshl_b32 s{sEM}, s3, 10", f"s_add_u32 s{sEM}, s{sEM}, {EAST}", f"s_movk_i32 s{sCNT}, 4096", f"s_movk_i32 s{sNV}, 8192")
    srd_hi(sA0, CH * 4); srd_hi(sA1, CH * 4); srd_hi(sA2, CH * 8); srd_hi(sEA, CH * 32)
    if P["DIAGW"]:
        e(f"s_memrealtime s[{sTSP}:{sTSP+1}]")
    e("s_waitcnt lgkmcnt(0)")
    if P["WSO"]:
        e(f"s_add_u32 s14, s14, {P['WSO'] << 20}", "s_addc_u32 s15, s15, 0")
    if P["TS"]:
        e(f"v_writelane_b32 v{TSV}, s92, 0")
        ts.names.append("first")
    ts.stamp("start")
    srd_lo(sA0, 6, f"s{sT}")
    for i in range(3):
        o = f"0 offen offset:{2048*i}" if i < 2 else f"s{sCNT} offen"
        vq.op("dst", f"buffer_load_dword v{DSTV+i}, v{T+1}, {sr(sA0)}, {o} {apol}")
    srd_lo(sA1, 4, f"s{sT}")
    if P["ABAR"] == 2:
        e("s_barrier")
    for i in range(3):
        o = f"0 offen offset:{2048*i}" if i < 2 else f"s{sCNT} offen"
        vq.op("src", f"buffer_load_dword v{SRCV+i}, v{T+1}, {sr(sA1)}, {o} {apol}")
    e(f"s_load_dword s{sTAG}, s[14:15], {WS_W}")
    if P["CPF"] == 1:
        cpf()
    srd_lo(sA2, 8, f"s{sT2}")
    srd_lo(sEA, 10, f"s{sOFF}")
    if P["ABAR"] == 1:
        e("s_barrier")
    for i, o in enumerate(("0", f"s{sCNT}", f"s{sNV}")):
        vq.op("sh", f"buffer_load_dwordx2 {vr(SHV+2*i,2)}, v{T+2}, {sr(sA2)}, {o} offen {apol}")

    def aea(p):
        for i in range(5):
            if astage[i] == p:
                e(f"s_add_u32 m0, s{sEM}, {8192*i}", f"s_mov_b32 s{sT}, {8192*i}")
                vq.op("ea", f"buffer_load_dwordx4 v{T+7}, {sr(sEA)}, s{sT} offen {apol} lds")
        if P["WST"] == p:
            weights()
        if P["WOST"] == p:
            wout()

    def weights():
        e("s_cmp_lt_u32 s3, 4")
        e(f"s_cselect_b32 s{sX}, s{SK+4}, s{SK+2}", f"s_cselect_b32 s{sX+1}, s{SK+5}, s{SK+3}", f"s_movk_i32 s{sT}, 128",
          f"s_cselect_b32 s{sX+2}, s{sCNT}, s{sT}", f"s_mov_b32 s{sX+3}, 0x20000")
        e(f"s_min_u32 s{sT}, s3, 5", f"s_lshl_b32 s{sT}, s{sT}, 10", f"s_add_u32 m0, s{sT}, {WR}", f"s_and_b32 s{sT}, s{sT}, 0xc00")
        vq.op("w", f"buffer_load_dwordx4 v{X16}, {sr(sX)}, s{sT} offen lds")

    def wout():
        srd(sOUT, SK + 6, SK + 7, None, 32768)
        e(f"s_lshl_b32 s{sT2}, s3, 12", f"s_add_u32 m0, s{sT2}, {WO}")
        for i in range(4):
            vq.op("w", f"buffer_load_dwordx4 v{X16}, {sr(sOUT)}, s{sT2} offen offset:{i*1024} lds")

    aea(0)
    if not P["ABAR"]:
        e("s_barrier")
    e(f"s_mov_b32 s{SK+8}, 109951168", f"s_movk_i32 s{SK+9}, 625", f"s_movk_i32 s{SK+10}, 838")
    e(f"v_cmp_gt_u32 s[{sV+4}:{sV+5}], {CH-1024}, v0") if CH - 1024 <= 64 else e(f"s_movk_i32 s{sT}, {CH-1024}", f"v_cmp_gt_u32 s[{sV+4}:{sV+5}], s{sT}, v0")
    srd(sTAB, 14, 15, None, (WS_FL + 0x10000) if P["DH"] else WS_W + 64)
    init_round(True)
    if P["ACCZ"] == 9:
        for i in range(48):
            e(f"v_mov_b32 v{ACC+i}, 0")
    vq.wait("dst")
    ts.stamp("dst")
    for k in range(3):
        e(f"v_mul_hi_u32 v{BK+k}, v{DSTV+k}, s{SK+8}")
    for k in range(3):
        e(f"v_lshlrev_b32 v{BA+k}, 2, v{BK+k}")
        if k == 2:
            e(f"s_mov_b64 exec, s[{sV+4}:{sV+5}]")
        e(f"ds_add_rtn_u32 v{RK+k}, v{BA+k}, v{ONE} offset:{ACNT}")
    e("s_mov_b64 exec, -1")
    e("s_waitcnt lgkmcnt(0)", "s_barrier")
    ts.stamp("hist")
    e(f"ds_read_b128 {vr(CT,4)}, v{X16} offset:{ACNT}")
    e(f"s_mul_i32 s{sTAG}, s{sTAG}, 0x9e3779b1", f"s_add_u32 s{sTAG}, s{sTAG}, 0x7f4a7c15")
    e(f"s_mul_i32 s{sTAG2}, s{sTAG}, 0x85ebca6b", f"s_and_b32 s{sTAG2}, s{sTAG2}, 0xffc00000")
    aea(1)
    for k in range(3):
        e(f"v_mad_u32_u24 v{NL+k}, v{BK+k}, s{SK+9}, 15", f"v_lshrrev_b32 v{NL+k}, 4, v{NL+k}", f"v_sub_u32 v{NL+k}, v{DSTV+k}, v{NL+k}")
    e("s_waitcnt lgkmcnt(0)")
    e(f"v_add_u32 v{T+3}, v{CT}, v{CT+1}", f"v_add3_u32 v{T+3}, v{T+3}, v{CT+2}, v{CT+3}", f"v_mov_b32 v{T+4}, v{T+3}")
    scan_dpp(e, T + 4, True)
    e(f"v_sub_u32 v{ST}, v{T+4}, v{T+3}")
    for k in range(3):
        e(f"v_add_u32 v{ST+1+k}, v{ST+k}, v{CT+k}")
    e(f"ds_write_b128 v{X16}, {vr(ST,4)} offset:{ASTART}")
    for k in range(3):
        e(f"ds_read_b32 v{PS+k}, v{BA+k} offset:{ASTART}")
    vq.wait("src")
    for k in range(3):
        e(f"v_mul_u32_u24 v{KEY+k}, s{SK+10}, v{SRCV+k}", f"v_bfe_u32 v{KEY+k}, v{KEY+k}, 18, 5")
        e(f"v_lshl_or_b32 v{KEY+k}, v{NL+k}, 5, v{KEY+k}",
          f"v_lshlrev_b32 v{KEY+k}, 21, v{KEY+k}", f"v_lshl_or_b32 v{KEY+k}, v{SRCV+k}, 7, v{KEY+k}")
    e(f"v_lshlrev_b32 v{NL}, 5, v0", f"v_add_u32 v{NL+1}, {512*32}, v{NL}", f"v_add_u32 v{NL+2}, {1024*32}, v{NL}")
    e(f"s_mov_b32 s{sT2}, {ASKS}")
    vq.wait("sh", "lgkmcnt(0)")
    for k in range(3):
        e(f"v_add_u32 v{PS+k}, v{PS+k}, v{RK+k}")
        e(f"v_lshlrev_b32 v{BA+k}, 2, v{PS+k}", f"v_mad_u32_u24 v{PS+k}, v{PS+k}, 12, s{sT2}")
        if k == 2:
            e(f"s_mov_b64 exec, s[{sV+4}:{sV+5}]")
        e(f"ds_write_b32 v{BA+k}, v{NL+k} offset:{AINV}")
        e(f"ds_write2_b32 v{PS+k}, v{SHV+2*k}, v{SHV+2*k+1} offset0:0 offset1:1")
        e(f"ds_write_b32 v{PS+k}, v{KEY+k} offset:8")
    e("s_mov_b64 exec, -1")
    aea(2)
    e(f"s_lshl_b32 s{sT}, s3, 7", f"v_lshl_add_u32 v{T+3}, v{LANE}, 3, s{sT}")
    e(f"ds_read_b64 {vr(CT,2)}, v{T+3} offset:{ACNT}", f"ds_read_b64 {vr(ST,2)}, v{T+3} offset:{ASTART}")
    e(f"s_mul_i32 s{sT}, s2, {CS*12}", f"s_add_u32 s{sT}, s{sT}, {WS_SK}")
    srd(sA0, 14, 15, f"s{sT}", CS * 12)
    e(f"s_mul_i32 s{sT}, s2, {CS*32}", f"s_add_u32 s{sT}, s{sT}, {WS_EA}")
    srd(sA1, 14, 15, f"s{sT}", CH * 32)
    e(f"v_lshrrev_b32 v{T+3}, 1, v0", f"v_lshlrev_b32 v{T+3}, 2, v{T+3}")
    e(f"v_and_b32 v{T+4}, 1, v0", f"v_lshlrev_b32 v{T+4}, 4, v{T+4}", f"v_add_u32 v{T+4}, {EAST}, v{T+4}", f"v_add_u32 v{T+6}, {ASKS}, v{T+7}")
    e("s_waitcnt lgkmcnt(0)", "s_barrier")
    ts.stamp("scat")
    e(f"ds_read_b128 {vr(OUTV,4)}, v{T+6}", f"ds_read_b128 {vr(OUTV+4,4)}, v{T+6} offset:8192")
    for i in range(5):
        e(f"ds_read_b32 v{IV+i}, v{T+3} offset:{AINV + i*1024}")

    def skst():
        vq.op("skst", f"buffer_store_dwordx4 {vr(OUTV,4)}, v{T+7}, {sr(sA0)}, 0 offen sc1")
        vq.op("skst", f"buffer_store_dwordx4 {vr(OUTV+4,4)}, v{T+7}, {sr(sA0)}, s{sNV} offen sc1")
    DH = P["DH"]
    if DH == 1:
        e("s_waitcnt lgkmcnt(5)")
        skst()
    aea(3)
    if DH == 2:
        e("s_waitcnt lgkmcnt(5)")
        skst()

    def frag_r(F0, t0, t1, t2):
        e(f"v_lshrrev_b32 v{t0}, 5, v{LANE}", f"v_lshlrev_b32 v{t0}, 10, v{t0}", f"v_and_b32 v{t1}, 15, v{LANE}", f"v_lshl_add_u32 v{t0}, v{t1}, 4, v{t0}")
        for i in range(8):
            e(f"ds_read_b128 {vr(F0+4*i,4)}, v{t0} offset:{WR + 2048*(i//4) + 256*(i%4)}")
        e(f"v_lshrrev_b32 v{t0}, 4, v{LANE}", f"v_lshlrev_b32 v{t0}, 5, v{t0}", f"v_and_b32 v{t1}, 3, v{LANE}", f"v_lshl_add_u32 v{t0}, v{t1}, 1, v{t0}")
        for v in range(4):
            e(f"ds_read_u16 v{F0+32+v}, v{t0} offset:{WR + 4096 + 8*v}")
        e(f"v_bfe_i32 v{t2}, v{LANE}, 4, 1", f"v_and_b32 v{t2}, 0x02020202, v{t2}", f"v_add_u32 v{t2}, 0x05040100, v{t2}")
        e("s_waitcnt lgkmcnt(0)")
        for h in range(2):
            for t in range(2):
                for ip in range(4):
                    e(f"v_perm_b32 v{WRF+8*h+2*ip+t}, v{F0+4*(2*ip+1)+t+2*h}, v{F0+4*(2*ip)+t+2*h}, v{t2}")
        e(f"v_lshl_or_b32 v{CGF}, v{F0+33}, 16, v{F0+32}", f"v_lshl_or_b32 v{CGF+1}, v{F0+35}, 16, v{F0+34}")

    def frag_o(F0, F1, t0, t1, sM):
        e(f"v_and_b32 v{t1}, 7, v{LANE}", f"v_lshrrev_b32 v{t0}, 4, v{LANE}", f"v_lshlrev_b32 v{t0}, 13, v{t0}", f"v_lshl_add_u32 v{t0}, v{t1}, 4, v{t0}",
          f"v_and_b32 v{t1}, 8, v{LANE}", f"s_and_b32 s{sM}, s3, 3", f"s_lshl_b32 s{sM}, s{sM}, 8", f"s_lshr_b32 s{sM+1}, s3, 2", f"s_lshl_b32 s{sM+1}, s{sM+1}, 7",
          f"s_add_u32 s{sM}, s{sM}, s{sM+1}", f"s_add_u32 s{sM}, s{sM}, {WO}", f"v_add3_u32 v{t0}, v{t0}, v{t1}, s{sM}")
        for ip in range(4):
            e(f"ds_read2st64_b64 {vr(F0+4*ip,4)}, v{t0} offset0:{4*ip} offset1:{4*ip+2}")
        e(f"s_mov_b32 s{sM}, 0x05040100", f"s_mov_b32 s{sM+1}, 0x07060302")
        for ip in range(4):
            e(f"s_waitcnt lgkmcnt({3-ip})")
            for t in range(4):
                e(f"v_perm_b32 v{F1+4*t+ip}, v{F0+4*ip+2+t//2}, v{F0+4*ip+t//2}, s{sM+t%2}")

    def consts():
        e(f"s_and_b32 s{sB}, s2, 7", f"s_lshl_b32 s{sB}, s{sB}, 5", f"s_lshr_b32 s{sT}, s2, 3", f"s_add_u32 s{sB}, s{sB}, s{sT}")
        e(f"s_mul_i32 s{sNB}, s{sB}, 625", f"s_add_u32 s{sNCNT}, s{sNB}, 640", f"s_add_u32 s{sNB}, s{sNB}, 15",
          f"s_lshr_b32 s{sNB}, s{sNB}, 4", f"s_lshr_b32 s{sNCNT}, s{sNCNT}, 4", f"s_sub_u32 s{sNCNT}, s{sNCNT}, s{sNB}")
        e(f"v_bfe_i32 v{SIX}, v{LANE}, 2, 1", f"v_and_b32 v{SIX}, 0xaaaa, v{SIX}", f"v_add_u32 v{SIX}, 0x4444, v{SIX}")
        e(f"v_mov_b32 v{ZAD}, {ZERO}", f"v_and_b32 v{T+3}, 60, v{T+1}", f"v_add_u32 v{T+3}, v{T+3}, v{ZAD}", f"ds_write_b32 v{T+3}, v{T+5}")
        e(f"v_and_b32 v{T+3}, 4, v{LANE}", f"v_lshlrev_b32 v{T+3}, 2, v{T+3}", f"v_mov_b32 v{T+4}, 0xffff", f"v_lshlrev_b32 v{T+4}, v{T+3}, v{T+4}")
        e(f"v_bfe_i32 v{T+3}, v{LANE}, 3, 1", f"v_and_b32 v{MQ}, v{T+3}, v{T+4}", f"v_xor_b32 v{MP}, v{MQ}, v{T+4}")
        if P["PQP"]:
            e(f"v_mov_b32 v{T+3}, 0x0c0c0c0c", f"v_mov_b32 v{T+4}, 0x03020302")
            e(f"v_bfi_b32 v254, v{MP}, v{T+4}, v{T+3}", f"v_bfi_b32 v255, v{MQ}, v{T+4}, v{T+3}", f"v_mov_b32 v{T+4}, 0x01000100")
            e(f"v_bfi_b32 v{MP}, v{MP}, v{T+4}, v{T+3}", f"v_bfi_b32 v{MQ}, v{MQ}, v{T+4}, v{T+3}")
        e(f"v_lshrrev_b32 v{EAC}, 5, v{LANE}", f"v_lshlrev_b32 v{EAC}, 4, v{EAC}", f"v_add_u32 v{EAC}, {EAST}, v{EAC}")
        e(f"v_and_b32 v{LAC}, 15, v{LANE}", f"v_lshlrev_b32 v{LAC}, 2, v{LAC}")
        e(f"v_bfe_u32 v{T+3}, v{LANE}, 3, 2", f"v_and_b32 v{T+4}, 3, v{LANE}", f"v_lshl_add_u32 v{T+3}, v{T+3}, 2, v{T+4}", f"v_lshlrev_b32 v{LBC}, 2, v{T+3}")
        e(f"v_bfe_i32 v{cODD}, v0, 0, 1", f"s_lshl_b32 s{sT}, s3, 10", f"v_and_b32 v{cMAPW}, 4, v{cODD}", f"v_add_u32 v{cMAPW}, s{sT}, v{cMAPW}")
        e(f"v_lshl_add_u32 v{cMAP1}, v{LANE}, 2, s{sT}", f"v_lshrrev_b32 v{cMAP2}, 1, v{LANE}", f"v_lshl_add_u32 v{cMAP2}, v{cMAP2}, 2, s{sT}")
        e(f"v_mul_u32_u24 v{cL12}, 12, v{LANE}", f"v_and_b32 v{cDEG}, 12, v{cMAP1}", f"v_and_b32 v{cBIN}, 124, v{cMAP1}")
        e(f"s_mul_i32 s{sT}, s3, {CAPW}", f"v_add_u32 v{cR21}, s{sT}, v{LANE}", f"v_lshlrev_b32 v{cSH}, 3, v{cR21}", f"v_add_u32 v{cSH}, {SHST}, v{cSH}", f"v_lshlrev_b32 v{cR21}, 21, v{cR21}")
        e(f"s_mul_i32 s{sT}, s3, 640", f"v_add_u32 v{cROW}, s{sT}, v{cBIN}", f"v_sub_u32 v{cTIE}, 63, v{LANE}")
        e(f"s_getreg_b32 s{sM0}, hwreg(HW_REG_XCC_ID, 0, 3)", f"s_lshl_b32 s{sT}, s{sM0}, 4", f"v_subrev_u32 v{cBIN}, s{sT}, v{cBIN}", f"v_and_b32 v{cBIN}, 124, v{cBIN}")
        e(f"v_min_u32 v{cNOD}, 39, v{LANE}", f"v_lshlrev_b32 v{cNOD}, 7, v{cNOD}", f"v_mov_b32 v{c380}, 0x380")
        e(f"v_lshrrev_b32 v{cLST}, 3, v{LANE}", f"v_mul_u32_u24 v{cLST}, {GAP*4}, v{cLST}", f"v_add_u32 v{cLST}, {LIST}, v{cLST}")
        e(f"s_lshr_b32 s{sEO}, s3, 1", f"s_mul_i32 s{sEO}, s{sEO}, 3", f"s_min_u32 s{sEO}, s{sEO}, 8", f"s_mul_i32 s{sT}, s{sEO}, 4608")
        e(f"v_and_b32 v{T+3}, 15, v{LANE}", f"v_lshrrev_b32 v{T+4}, 4, v{LANE}")
        e(f"v_mul_u32_u24 v{eFR}, 288, v{T+3}", f"v_lshl_add_u32 v{eFR}, v{T+4}, 4, v{eFR}", f"v_add_u32 v{eFR}, s{sT}, v{eFR}")
        e(f"v_lshrrev_b32 v{T+4}, 3, v{LANE}", f"v_lshlrev_b32 v{T+4}, 9, v{T+4}", f"v_and_b32 v{T+3}, 7, v{LANE}", f"v_lshl_add_u32 v{eST}, v{T+3}, 4, v{T+4}")
        e(f"s_lshl_b32 s{sEO}, s{sEO}, 12", f"s_and_b32 s{sT}, s3, 1", f"s_lshl_b32 s{sT}, s{sT}, 7", f"s_add_u32 s{sEO}, s{sEO}, s{sT}",
          f"s_lshl_b32 s{sT}, s{sT}, 7", f"s_add_u32 s{sT}, s{sT}, {WO}", f"v_add_u32 v{eWF}, s{sT}, v{X16}")
        e(f"s_cmp_eq_u32 s{sNCNT}, 40")
        tabs = []
        for part in PARTS[P["BIAS"]]:
            t = [0] * 40
            for w, p in enumerate(part):
                for sl, r in enumerate(p):
                    t[r] = w * 8 + sl
            tabs.append([sum(t[5 * q + i] << (6 * i) for i in range(5)) for q in range(8)])
        e(f"v_mov_b32 v{RT}, 0")
        for q in range(8):
            e(f"s_mov_b32 s{sT}, {tabs[0][q]}", f"s_cselect_b32 s{sT}, {tabs[1][q]}, s{sT}")
            m = 31 << (5 * q)
            e(f"s_mov_b32 exec_lo, {m & 0xffffffff}", f"s_mov_b32 exec_hi, {m >> 32}", f"v_mov_b32 v{RT}, s{sT}")
        e("s_mov_b64 exec, -1")
        e(f"v_mul_u32_u24 v{T+3}, 52, v{LANE}", f"v_lshrrev_b32 v{T+3}, 8, v{T+3}", f"v_mad_i32_i24 v{T+3}, v{T+3}, -5, v{LANE}",
          f"v_mul_u32_u24 v{T+3}, 6, v{T+3}", f"v_lshrrev_b32 v{RT}, v{T+3}, v{RT}")
        e(f"v_and_b32 v{T+3}, 7, v{RT}", f"v_bfe_u32 v{RT}, v{RT}, 3, 3", f"v_lshlrev_b32 v{T+3}, 12, v{T+3}", f"v_lshl_or_b32 v{RT}, v{RT}, 7, v{T+3}")
        srd(sSK, 14, 15, WS_SK, NCH * CS * 12)

    def extra(pos):
        if P["CPOS"] == pos:
            consts()
        if P["ACCZ"] == pos:
            for i in range(48):
                e(f"v_mov_b32 v{ACC+i}, 0")

    e("s_waitcnt lgkmcnt(0)")
    for i in range(5):
        e(f"v_add_u32 v{IV+i}, v{T+4}, v{IV+i}")
    for k in range(2):
        e(f"v_lshl_or_b32 v{TABV+2*k}, v{CT+k}, 11, v{ST+k}", f"v_or_b32 v{TABV+2*k}, s{sTAG2}, v{TABV+2*k}", f"v_mov_b32 v{TABV+2*k+1}, s{sTAG}")
    extra(0)

    def publish():
        e("s_mov_b64 exec, 0xffff")
        vq.op("tab", f"buffer_store_dwordx4 {vr(TABV,4)}, v{X16}, {sr(sTAB)}, s{sT} offen sc1")
        e("s_mov_b64 exec, -1")

    if DH:
        e(f"s_lshl_b32 s{sT}, s2, 3", f"s_add_u32 s{sT}, s{sT}, s3", f"s_lshl_b32 s{sT}, s{sT}, 8")
    e(f"s_waitcnt vmcnt({min(vq.n('w') + P['WGN'], vq.n('ea'))})")
    e("s_barrier")
    ts.stamp("land")
    if DH in (1, 2):
        publish()
    for i in range(5):
        e(f"ds_read_b128 {vr(OUTV+8+4*i,4)}, v{IV+i}")
    extra(1)
    ts.stamp("guard")
    if DH in (0, 3):
        skst()
    for i in range(5):
        if DH == 3 and i == P["KE"]:
            extra(4)
            e(f"s_lshl_b32 s{sT}, s2, 3", f"s_add_u32 s{sT}, s{sT}, s3", f"s_lshl_b32 s{sT}, s{sT}, 8")
            vq.wait("skst")
            e("s_barrier")
            ts.stamp("skdr")
            publish()
        e(f"s_mov_b32 s{sT}, {8192*i}", f"s_waitcnt lgkmcnt({4-i})")
        vq.op("st", f"buffer_store_dwordx4 {vr(OUTV+8+4*i,4)}, v{T+7}, {sr(sA1)}, s{sT} offen sc1")
    if DH == 3 and P["KE"] == 5:
        extra(4)
        e(f"s_lshl_b32 s{sT}, s2, 3", f"s_add_u32 s{sT}, s{sT}, s3", f"s_lshl_b32 s{sT}, s{sT}, 8")
        vq.wait("skst")
        e("s_barrier")
        ts.stamp("skdr")
        publish()
    aea(4)
    ts.stamp("issued")

    extra(2)
    e(f"s_lshl_b32 s{sT}, s2, 3", f"s_add_u32 s{sT}, s{sT}, s3", f"s_lshl_b32 s{sT}, s{sT}, 8")
    srd(sX, SK, SK + 1, None, N * 1024)
    srd(sEA, 14, 15, WS_EA, NCH * CS * 32)
    if P["XPF"]:
        n = P["XPF"]
        e(f"s_and_b32 s{sBASE}, s{sM0}, 7", f"s_mul_i32 s{sBASE}, s{sBASE}, {1252*1024}", f"s_and_b32 s{sT2}, s2, 0xf8",
          f"s_add_u32 s{sT2}, s{sT2}, s3", f"s_mul_i32 s{sT2}, s{sT2}, {n*128}", f"s_add_u32 s{sBASE}, s{sBASE}, s{sT2}")
        e(f"v_min_u32 v{PFV}, {n-1}, v{LANE}", f"v_lshlrev_b32 v{PFV}, 7, v{PFV}")
    if P["XP2"]:
        n2 = P["XP2"]
        e(f"s_and_b32 s89, s{sM0}, 7", f"s_mul_i32 s89, s89, {1252*1024}", f"s_and_b32 s{sT2}, s2, 0xf8",
          f"s_add_u32 s{sT2}, s{sT2}, s3", f"s_mul_i32 s{sT2}, s{sT2}, {n2*128}", f"s_add_u32 s89, s89, s{sT2}", f"s_add_u32 s89, s89, {P['XPF']*128*256}")
        e(f"v_min_u32 v195, {n2-1}, v{LANE}", f"v_lshlrev_b32 v195, 7, v195")
    xpf = f"buffer_load_dword v{PFV}, v{PFV}, {sr(sX)}, s{sBASE} offen"
    PL = 206
    PL2 = 170
    poll1 = f"buffer_load_dwordx2 {vr(PL,2)}, v{T+2}, {sr(sTAB)}, s{sNR} offen sc1"

    def tagcheck(pl=PL):
        e(f"v_xor_b32 v{T+3}, s{sTAG2}, v{pl}", f"v_xor_b32 v{T+4}, s{sTAG}, v{pl+1}", f"v_and_or_b32 v{T+3}, v{T+3}, s{sT2}, v{T+4}")
        e(f"v_cmpx_ne_u32 vcc, 0, v{T+3}")

    def outsrd():
        e(f"s_lshl_b32 s{sT}, s{sNB}, 10", f"s_add_u32 s{sOUT}, s12, s{sT}", f"s_addc_u32 s{sOUT+1}, s13, 0",
          f"s_lshl_b32 s{sOUT+2}, s{sNCNT}, 10", f"s_mov_b32 s{sOUT+3}, 0x20000")

    def rwzero():
        for i in range(32):
            e(f"v_mov_b32 v{RW+i}, 0")

    def pollsetup():
        e(f"v_lshrrev_b32 v{T+1}, 1, v0", f"v_lshlrev_b32 v{T+2}, 11, v{T+1}", f"s_lshl_b32 s{sNR}, s{sB}, 3")
        e(f"v_mul_u32_u24 v{RG0}, {CS}, v{T+1}", f"s_mov_b32 s{sROFF}, 0", f"s_mov_b32 s{sCNT}, {SPIN}", f"s_mov_b32 s{sT2}, 0xffc00000")
        e(f"s_mul_i32 s{sEM}, s3, {CAPW*32}", f"s_add_u32 s{sEM}, s{sEM}, {EAST}", f"s_movk_i32 s{sK4}, 4096")

    def wofrag_write():
        for t in range(4):
            e(f"ds_write_b128 v{T}, {vr(144+4*t,4)} offset:{WO + 1024*t}")

    if not DH:
        if P["XPF"] and P["XPOS"] < 0:
            e(f"s_waitcnt vmcnt({-P['XPOS']-1})", xpf, "s_waitcnt vmcnt(1)", "s_barrier")
        else:
            e("s_waitcnt vmcnt(0)", "s_barrier")
        ts.stamp("drained")
        publish()
        if P["XPF"] and P["XPOS"] == 0:
            e(xpf)
        outsrd()
        frag_r(RW, T, T + 1, T + 2)
        if P["XPF"] and P["XPOS"] == 1:
            e(xpf)
        frag_o(128, 144, T, T + 1, SK + 8)
        rwzero()
        e(f"s_lshl_b32 s{sT}, s3, 12", f"v_add_u32 v{T}, s{sT}, v{X16}")
        extra(3)
        if P["XPF"] and P["XPOS"] == 3:
            e("s_waitcnt vmcnt(0)")
        if P["XPF"] and P["XPOS"] >= 2:
            e(xpf)
        pollsetup()
        e(f"s_waitcnt vmcnt({P['PW']})", "s_barrier")
        ts.stamp("frag")
        e(poll1)
        wofrag_write()
        e("s_waitcnt vmcnt(0)")
    else:
        outsrd()
        if P["FRP"] == 0:
            frag_r(RW, T, T + 1, T + 2)
            frag_o(128, 144, T, T + 1, SK + 8)
            rwzero()
        extra(3)
        e(f"s_lshl_b32 s{sT}, s3, 11", f"s_lshl_b32 s{sNR}, s2, 3", f"s_add_u32 s{sT}, s{sT}, s{sNR}", f"s_add_u32 s{sFL}, s{sT}, {WS_FL}")
        e(f"v_mov_b32 v{PL2}, s{sTAG2}", f"v_mov_b32 v{PL2+1}, s{sTAG}", f"v_mov_b32 v{T+3}, 0")
        pollsetup()
        e(f"s_lshl_b32 s{sT}, s3, 12", f"v_add_u32 v{T}, s{sT}, v{X16}")
        if P["PPOS"] == 0:
            ts.stamp("frag")
            e(poll1)
            e("s_waitcnt vmcnt(1)", "s_barrier")
        else:
            e("s_waitcnt vmcnt(0)", "s_barrier")
        ts.stamp("drained")
        n_after = 0
        if P["FL"]:
            e("s_mov_b64 exec, 1")
            e(f"buffer_store_dwordx2 {vr(PL2,2)}, v{T+3}, {sr(sTAB)}, s{sFL} offen sc1")
            e("s_mov_b64 exec, -1")
            n_after += 1
        if P["PPOS"] == 1:
            e(poll1)
            n_after = 0
        if P["XPF"] and P["XPOS"] == 0:
            e(xpf)
            n_after += 1
        if P["FRP"] == 0:
            wofrag_write()
        if P["FRP"] == 2:
            frag_r(RW, T, T + 1, T + 3)
            frag_o(XR, XR + 16, T, T + 1, SK + 8)
            rwzero()
        if P["PPOS"] == 2:
            e(poll1)
            n_after = 0
        e(f"s_lshr_b32 s{sFL}, s{sB}, 5", f"s_lshl_b32 s{sFL}, s{sFL}, 11", f"s_add_u32 s{sFL}, s{sFL}, {WS_FL}")
        e(f"v_lshrrev_b32 v{cFLG}, 1, v0", f"v_lshlrev_b32 v{cFLG}, 3, v{cFLG}")
        if P["PPOS"]:
            ts.stamp("frag")
        e(f"s_waitcnt vmcnt({n_after})")
    tagcheck()
    e("s_cbranch_execnz L_poll")
    e.label("L_polled")
    e("s_mov_b64 exec, -1")
    ts.stamp("tab")
    G1, G2, SKR, RNK, CA = TP + 8, TP + 12, TP + 20, TP, TP + 4
    MU = P["MU"]
    sVm = [sV, sV + 2, sV + 4, sA2]

    m0st = [None]

    def bea1(i):
        if m0st[0] != i // 4 or i == 6:
            e(f"s_add_u32 m0, s{sEM}, {4096*(i//4)}")
        m0st[0] = i // 4
        vq.op("ea", f"buffer_load_dwordx4 v{G2+i}, {sr(sEA)}, {'0' if i < 4 else 's%d' % sK4} offen offset:{1024*(i%4)} {ldpol} lds")

    def bea(p):
        if DH and P["FL"]:
            if p == P["FP"]:
                vq.op("fp", f"buffer_load_dwordx2 {vr(PL2,2)}, v{cFLG}, {sr(sTAB)}, s{sFL} offen sc1")
            if p == P["FQ"]:
                ts.stamp("fq0")
                vq.wait("fp")
                e(f"v_xor_b32 v{T+3}, s{sTAG2}, v{PL2}", f"v_xor_b32 v{T+4}, s{sTAG}, v{PL2+1}", f"v_or_b32 v{T+3}, v{T+3}, v{T+4}")
                e(f"v_cmp_ne_u32 vcc, 0, v{T+3}", "s_cbranch_vccnz L_fpoll")
                e.label("L_flagged")
                ts.stamp("fq1")
                e(f"s_cmp_gt_i32 s{sNW}, 192", "s_cbranch_scc1 L_r1e")
                e.label("L_r1eb")
                m0st[0] = None
        for i in range(6):
            if bstage[i] == p:
                bea1(i)
        if DH and P["XPF"] and P["XPOS"] == 5 and p == max(bstage, key=lambda q: ORDER.index(q)):
            e(xpf)
        if P["XP2"] and p == P["XQ"]:
            vq.op("xp2", f"buffer_load_dword v195, v195, {sr(sX)}, s89 offen")
    ORDER = [0, 1, 2, 6, 3, 4]
    if DH and P["FL"]:
        assert all(ORDER.index(q) >= ORDER.index(P["FQ"]) for q in bstage), "edge_attr loads before the flag check"
        assert ORDER.index(P["FP"]) <= ORDER.index(P["FQ"])

    def skld(i):
        e(f"v_mad_u32_u24 v{G1+i}, v{G1+i}, 12, v{cL12}")
        vq.op(f"sk{i}", f"buffer_load_dwordx3 {vr(SKR+4*i,3)}, v{G1+i}, {sr(sSK)}, 0 offen offset:{768*i} {ldpol}")

    cmps = [f"v_cmp_lt_i32 s[{SK+2*i}:{SK+2*i+1}], {2*i}, v{T+2}" for i in range(MU + 1)]
    e(f"v_bfe_u32 v{RLEN}, v{PL}, 11, 11", f"v_and_b32 v{RBASE}, v{RLEN}, v{cODD}", f"v_add_u32 v{T+2}, v{RLEN}, v{cODD}")
    fill = [f"v_and_b32 v{T+3}, 0x7ff, v{PL}"] + cmps + [f"v_add_u32 v{RG0}, v{RG0}, v{T+3}"]
    e(fill.pop(0))
    for mod in ("row_shr:1 row_mask:0xf", "row_shr:2 row_mask:0xf", "row_shr:4 row_mask:0xf", "row_shr:8 row_mask:0xf", "row_bcast:15 row_mask:0xa", "row_bcast:31 row_mask:0xc"):
        e(f"v_add_u32_dpp v{RBASE}, v{RBASE}, v{RBASE} {mod} bank_mask:0xf")
        e(*fill[:2]); fill = fill[2:]
    e(f"v_readlane_b32 s{sNW}, v{RBASE}, 63")
    e(f"v_mov_b32_dpp v{RBASE}, v{RBASE} quad_perm:[0,0,2,2] row_mask:0xf bank_mask:0xf")
    e(f"v_sub_u32 v{RG0}, v{RG0}, v{RBASE}")
    e(f"v_lshl_add_u32 v{T}, v{RBASE}, 2, v{cMAPW}")
    e(f"s_cmp_gt_u32 s{sNW}, {CAPW}", "s_cbranch_scc1 L_clip")
    e.label("L_mapw")
    for i in range(MU):
        e(f"s_mov_b64 exec, s[{SK+2*i}:{SK+2*i+1}]")
        e(f"ds_write_b32 v{T}, v{RG0} offset:{8*i}")
    e("s_mov_b64 exec, -1")
    e(f"s_cmp_lg_u64 s[{SK+2*MU}:{SK+2*MU+1}], 0", "s_cbranch_scc1 L_map2")
    for i in range(3):
        e(f"ds_read_b32 v{G1+i}, v{cMAP1} offset:{256*i}")
    for i in range(6):
        e(f"ds_read_b32 v{G2+i}, v{cMAP2} offset:{128*i}")
    e(f"s_cmp_gt_i32 s{sNW}, 192", "s_cbranch_scc1 L_r1")
    e.label("L_r1b")
    e("s_waitcnt lgkmcnt(6)")
    ts.stamp("map")
    for i in range(3):
        skld(i)
    e(f"v_mov_b32 v{T+3}, s{sNW}", "s_mov_b64 exec, 1", f"ds_max_i32 v{T+5}, v{T+3} offset:{TOT}", "s_mov_b64 exec, -1")
    e("s_waitcnt lgkmcnt(1)")
    for i in range(6):
        e(f"v_lshl_add_u32 v{G2+i}, v{G2+i}, 5, v{X16}")
    if P["SKBAR"]:
        e("s_barrier")
    ts.stamp("skiss")
    if DH and P["XPF"] and P["XPOS"] == 6:
        vq.op("xpf", xpf)
    bea(0)
    if DH and P["FRP"] == 1:
        e(f"s_cmp_lg_u32 s{sROFF}, 0", "s_cbranch_scc1 L_nofrag")
        frag_r(RW, T, T + 1, T + 2)
        frag_o(XR, XR + 16, T, T + 1, SK + 8)
        rwzero()
        e.label("L_nofrag")
    assert 5 not in bstage
    e(f"s_min_i32 s{sT}, s{sNW}, {CAPW}")
    for i in range(4):
        e(f"v_cmp_gt_i32 s[{sVm[i]}:{sVm[i]+1}], s{sT}, v{LANE}", f"s_sub_i32 s{sT}, s{sT}, 64")
    e(f"s_mov_b32 s{sT2}, 0x1fff80", f"s_mul_i32 s{sOFF}, s3, 5")
    assert P["SKBAR"]
    late_wf = DH and P["FRP"] in (1, 2)
    if not late_wf:
        for q in range(NK):
            e(f"ds_read_b128 {vr(WF[q],4)}, v{eWF} offset:{1024*q}")

    def count(i):
        key = SKR + 4 * i + 2
        e(f"v_lshrrev_b32 v{CA+i}, 21, v{key}", f"v_lshlrev_b32 v{CA+i}, 2, v{CA+i}")
        e(f"v_lshrrev_b32 v{T+3}, 26, v{key}", f"v_lshl_or_b32 v{T+3}, v{T+3}, 4, v{cDEG}")
        e(f"s_mov_b64 exec, s[{sVm[i]}:{sVm[i]+1}]")
        e(f"ds_add_rtn_u32 v{RNK+i}, v{CA+i}, v{ONE} offset:{CNT2}")
        e(f"ds_add_u32 v{T+3}, v{ONE} offset:{DEG}")
        e("s_mov_b64 exec, -1")

    def entry(i):
        key = SKR + 4 * i + 2
        if i == 3:
            e("s_mov_b32 exec_hi, 0")
        e(f"ds_write_b64 v{cSH}, {vr(SKR+4*i,2)} offset:{512*i}")
        if i == 3:
            e("s_mov_b32 exec_hi, -1")
        e(f"v_and_or_b32 v{key}, v{key}, s{sT2}, v{cR21}")
        if i:
            e(f"v_add_u32 v{key}, {64*i << 21}, v{key}")

    for i in range(3):
        vq.wait(f"sk{i}")
        if i == 0:
            ts.stamp("sk")
        count(i)
    e(f"s_cmp_gt_i32 s{sNW}, 192", "s_cbranch_scc1 L_r2")
    e.label("L_r2b")
    ts.stamp("atom")
    e(f"s_or_b32 s{sT}, s2, s3", "s_cbranch_scc0 L_tag")
    e.label("L_tagged")
    bea(1)
    for j in range(1, 5):
        e(f"s_add_u32 s{SK+j}, s{sOFF}, {j}")
    e("s_waitcnt lgkmcnt(0)", "s_barrier")
    ts.stamp("b1")
    CN, CAD = XR, XR + 8
    e(f"s_cmp_lg_u32 s{sROFF}, 0", "s_cbranch_scc1 L_rank2")
    if late_wf:
        e(f"s_lshl_b32 s{sT}, s3, 12", f"v_add_u32 v{T}, s{sT}, v{X16}")
        for t in range(4):
            e(f"ds_write_b128 v{T}, {vr(XR+16+4*t,4)} offset:{WO + 1024*t}")
    e(f"ds_read_b128 {vr(CAD,4)}, v{X16} offset:{DEG}")
    for j in range(5):
        e(f"ds_read_b32 v{CN+j}, v{cROW} offset:{CNT2 + 128*j}")
    e(f"ds_read_b32 v{T+6}, v{T+5} offset:{TOT}")
    if P["ENP"] == 0:
        for i in range(3):
            entry(i)
    e(f"s_waitcnt lgkmcnt({9 if P['ENP'] == 0 else 6})")
    e(f"v_add_u32 v{T+1}, v{CAD}, v{CAD+1}", f"v_add3_u32 v{T+1}, v{T+1}, v{CAD+2}, v{CAD+3}")
    e(f"v_lshl_or_b32 v{T+1}, v{T+1}, 6, v{cTIE}")
    for j in range(5):
        e(f"v_readlane_b32 s{SK+j}, v{T+1}, s{SK+j if j else sOFF}")
    for j in range(5):
        e(f"v_cmp_lt_u32 s[{SK+6+2*j}:{SK+7+2*j}], s{SK+j}, v{T+1}")
    for j in range(5):
        e(f"s_bcnt1_i32_b64 s{SK+j}, s[{SK+6+2*j}:{SK+7+2*j}]")
    e(f"s_waitcnt lgkmcnt({3 if P['ENP'] == 0 else 0})")
    for j in range(5):
        e(f"v_readlane_b32 s{sASG[j]}, v{RT}, s{SK+j}")
    e(f"v_readfirstlane_b32 s{sN}, v{T+6}")
    e.label("L_ranked")
    e("s_mov_b32 exec_hi, 0")
    for j in range(5):
        e(f"v_and_or_b32 v{CAD+j}, s{sASG[j]}, v{c380}, v{cBIN}")
        e(f"ds_add_rtn_u32 v{CN+j}, v{CAD+j}, v{CN+j} offset:{WB}")
    for j in range(5):
        e(f"v_or_b32 v{CAD+j}, s{sASG[j]}, v{cBIN}")
    e(f"s_lshl_b32 s{sT}, s3, 3", f"s_add_u32 s{sOFF}, s{sT}, 7")
    for j in range(5):
        if j in (0, 2):
            e(f"s_waitcnt lgkmcnt({3 if j == 0 else 2})")
        e(f"v_lshl_or_b32 v{CN+j}, v{CN+j}, 16, v{CAD+j}")
        e(f"ds_write_b32 v{cROW}, v{CN+j} offset:{CNT2 + 128*j}")
    e("s_mov_b32 exec_hi, -1")
    ts.stamp("rank")
    bea(2)
    if P["ENP"] == 1:
        for i in range(3):
            entry(i)
    e(f"s_waitcnt lgkmcnt({3 if P['ENP'] == 1 else 0})", "s_barrier")
    ts.stamp("b2")
    e(f"ds_read_b128 {vr(CN,4)}, v{X16} offset:{WB}")
    for i in range(3):
        e(f"ds_read_b32 v{CA+i}, v{CA+i} offset:{CNT2}")
    bea(6)
    e("s_waitcnt lgkmcnt(3)")
    e(f"v_add_u32 v{T+1}, v{CN}, v{CN+1}", f"v_add3_u32 v{T+1}, v{T+1}, v{CN+2}, v{CN+3}", f"v_mov_b32 v{T+2}, v{T+1}")
    e("s_waitcnt lgkmcnt(0)")

    def place(i):
        key = SKR + 4 * i + 2
        return [f"v_bfe_u32 v{T+7}, v{CA+i}, 12, 3", f"v_or_b32 v{key}, v{T+7}, v{key}", f"v_and_b32 v{G1+i}, 0x3ff, v{CA+i}",
                f"v_lshrrev_b32 v{CA+i}, 16, v{CA+i}", f"v_add_u32 v{CA+i}, v{CA+i}, v{RNK+i}"]

    fill = place(0) + place(1) + place(2)
    e(fill.pop(0))
    for mod in ("row_shr:1 row_mask:0xf", "row_shr:2 row_mask:0xf", "row_shr:4 row_mask:0xf", "row_shr:8 row_mask:0xf", "row_bcast:15 row_mask:0xa", "row_bcast:31 row_mask:0xc"):
        e(f"v_add_u32_dpp v{T+2}, v{T+2}, v{T+2} {mod} bank_mask:0xf")
        e(*fill[:2]); fill = fill[2:]
    e(f"v_sub_u32 v{T+1}, v{T+2}, v{T+1}")
    e(f"v_lshl_add_u32 v{CAD}, v{T+1}, 2, v{cLST}")
    for k in range(3):
        e(f"v_lshl_add_u32 v{CAD+1+k}, v{CN+k}, 2, v{CAD+k}")
    e(f"ds_write_b128 v{X16}, {vr(CAD,4)} offset:{START}")
    for i in range(3):
        e(f"ds_read_b32 v{G1+i}, v{G1+i} offset:{START}")
    e(*fill)
    e(f"v_readlane_b32 s{sNV}, v{T+2}, s{sOFF}", f"v_readlane_b32 s{sCNT}, v{T+1}, s{sT}", f"v_readlane_b32 s{sBASE}, v{CAD}, s{sT}")
    e(f"v_mov_b32 v{T+6}, {(0x3fff << 7) | 5}")
    e(f"s_sub_u32 s{sNV}, s{sNV}, s{sCNT}", f"s_lshl2_add_u32 s{sT2}, s{sNV}, s{sBASE}", f"v_add_u32 v{T+1}, s{sT2}, v{LAC}")
    e(f"ds_write_b32 v{T+1}, v{T+6}")
    assert D == 6
    sP0 = sT
    e(f"s_add_u32 s{sCNT}, s{sNV}, 15", f"s_lshr_b32 s{sCNT}, s{sCNT}, 4", f"s_sub_u32 s{sP0}, 0, s{sNV}", f"s_and_b32 s{sP0}, s{sP0}, 14",
      f"s_sub_u32 s{sCNT}, s{sCNT}, 1", f"s_cmp_gt_i32 s{sCNT}, 0", f"s_cselect_b32 s{sP0}, s{sP0}, 0", f"s_lshl_b32 s{sOFF}, s{sP0}, 2",
      f"s_sub_u32 s{sBASE}, s{sBASE}, s{sOFF}")

    def scatter(i):
        e(f"s_mov_b64 exec, s[{sVm[i]}:{sVm[i]+1}]")
        e(f"ds_write_b32 v{CA+i}, v{SKR+4*i+2}")

    e("s_waitcnt lgkmcnt(1)")
    for i in range(3):
        e(f"v_lshl_add_u32 v{CA+i}, v{CA+i}, 2, v{G1+i}")
    for i in range(3):
        scatter(i)
    e("s_mov_b64 exec, -1")
    e(f"s_cmp_gt_i32 s{sNW}, 192", "s_cbranch_scc1 L_r3")
    e.label("L_r3b")
    bea(3)
    ts.stamp("list")
    e(f"v_add_u32 v{LA}, s{sBASE}, v{LAC}", f"v_add_u32 v{LB}, s{sBASE}, v{LBC}",
      f"s_and_b32 s{sOFF}, s{sOFF}, 32", f"v_add_u32 v{T+4}, s{sOFF}, v{LA}", f"s_and_b32 s{SK+8}, s{sP0}, 6")
    e(f"s_mov_b32 s{sT2}, 0x00fffc38", f"s_mov_b32 s{sNR}, 0xffffff00", f"s_mov_b32 s{sBASE}, {SHST}")
    if P["PRIO"] == 1:
        e("s_cmp_lt_u32 s3, 4", "s_cbranch_scc1 L_np", "s_setprio 1")
        e.label("L_np")
    e("s_waitcnt lgkmcnt(0)", "s_barrier")
    ts.stamp("b4")
    if P["B4P"] == 0:
        bea(4)
    e(f"ds_read_b32 v{K}, v{T+4}", f"ds_read_b32 v{ENT+2}, v{LB}", f"ds_read_b32 v{KN}, v{LA} offset:{4*D}", f"ds_read_b32 v{NOD}, v{cNOD} offset:{CNT2}")
    if P["B4P"] == 1:
        bea(4)
    e(f"s_cmp_eq_u32 s{sNV}, 0", "s_cbranch_scc1 L_empty")

    def agaddr():
        e(f"v_lshlrev_b32 v{T+4}, 2, v{LANE}", f"s_lshl_b32 s{sOFF}, s3, 7")
        e(f"v_and_b32 v{NOD}, 0x7380, v{NOD}", f"v_xor_b32 v{NOD}, s{sOFF}, v{NOD}")
        e(f"v_alignbit_b32 v{NOD}, v{NOD}, v{NOD}, 12")
        m = [f"s[{q}:{q+1}]" for q in sVm] + ["vcc"]
        for j in range(5):
            e(f"v_cmp_eq_u32 {m[j]}, {j}, v{NOD}")
        for j in range(5):
            e(f"s_ff1_i32_b64 s{sNODE+j}, {m[j]}", f"s_mul_i32 s{sNODE+j}, s{sNODE+j}, 1152", f"v_add_u32 v{eAG[j]}, s{sNODE+j}, v{T+4}")

    AL = P["ALIGN"]

    def al():
        if AL:
            e(".p2align 3")

    def ea_reads():
        e(f"v_lshrrev_b32 v{T}, 21, v{ENT+2}", f"v_lshl_add_u32 v{T+3}, v{T}, 3, s{sBASE}", f"v_lshl_add_u32 v{T}, v{T}, 5, v{EAC}")
        e(f"ds_read_b64 {vr(ENT,2)}, v{T+3}")
        e(f"ds_read_b128 {vr(EA0,4)}, v{T}")

    def wfr(*qs):
        for q in qs:
            e(f"ds_read_b128 {vr(WF[q],4)}, v{eWF} offset:{1024*q}")

    def zq(q):
        e(f"ds_read_b128 {vr(RW+4*q,4)}, v{ZAD}", f"ds_read_b128 {vr(RW+16+4*q,4)}, v{ZAD}")

    def pq(j):
        p = PQ + 2 * (j % 2)
        if P["PQP"]:
            pr = [f"v_perm_b32 v{p}, v{T+1}, v{T+1}, v{(MP, 254)[j%2]}", f"v_perm_b32 v{p+1}, v{T+1}, v{T+1}, v{(MQ, 255)[j%2]}"]
            return pr if j % 2 else [f"v_cvt_pk_bf16_f32 v{T+1}, v{AGN+j}, v{AGN+j+1}"] + pr
        return [f"v_cvt_pk_bf16_f32 v{T+1+j%2}, v{AGN+j}, v{AGN+j}", f"v_and_b32 v{p}, v{MP}, v{T+1+j%2}", f"v_and_b32 v{p+1}, v{MQ}, v{T+1+j%2}"]

    def head(kind):
        if P["PRIO"] in (4, 5) and kind != "first":
            e("s_setprio 3")
        e(f"s_waitcnt lgkmcnt({0 if kind == 'first' else 2})"); al()
        for q in range(4):
            e(f"v_mfma_f32_4x4x4_16b_bf16 {vr(AGN+4*q,4)}, {vr(ENT,2)}, {vr(CGF,2)}, 0 cbsz:4 abid:{2*q}")
        e(f"v_lshlrev_b32 v{K}, 3, v{KN}", f"v_and_b32 v{K}, s{sT2}, v{K}")
        rd = []
        if kind != "last":
            e(f"v_add_u32 v{LA}, 64, v{LA}", f"v_add_u32 v{LB}, 64, v{LB}")
            rd = [f"ds_read_b32 v{KN}, v{LA} offset:{4*D}", f"ds_read_b32 v{ENT+2}, v{LB}"]
        if kind != "first":
            e("s_waitcnt lgkmcnt(0)"); al()
        groups = [rd + (pq(0) if kind != "first" else []), []]
        for h in range(2):
            e(f"v_smfmac_f32_32x32x32_bf16 {vr(RW+16*h,16)}, {vr(EA0,4)}, {vr(WRF+8*h,8)}, v{SIX}")
            e(*groups[h])

    def pks(j):
        t = TP + 8 * (j % 2)
        for h in range(2):
            r = RW + 16 * h + j
            rp = r & ~1
            sel = "op_sel:[0,1,0] op_sel_hi:[1,1,1]" if r & 1 else "op_sel_hi:[1,0,1]"
            for q in range(2):
                a = ACC + 4 * h + 2 * q
                e(f"v_pk_fma_f32 {vr(a,2)}, {vr(t+4*h+2*q,2)}, {vr(rp,2)}, {vr(a,2)} {sel}")

    def mf(j, h):
        t, p, s = TP + 8 * (j % 2), PQ + 2 * (j % 2), XR + 4 * (j % R)
        e(f"v_mfma_f32_16x16x16_bf16 {vr(t+4*h,4)}, {vr(p,2)}, {vr(s+2*h,2)}, 0")

    def rl(q, lane):
        e(f"v_readlane_b32 s{SK + q % 8}, v{K}, {lane}")

    def sand(q):
        e(f"s_and_b32 s{sOFF}, s{SK + q % 8}, s{sNR}")

    def xl(q):
        e(f"buffer_load_dwordx4 {vr(XR + 4 * (q % R),4)}, v{X16}, {sr(sX)}, s{sOFF} offen {str(P['XPOL']).replace('+', ' ')}".rstrip())

    def body(last):
        for j in range(0, 16, 2):
            ld = not last or j + D < 16
            if not last or j == 0:
                e.label(f"L_{'f' if last else 'j'}{j}")
            nx = pq(j + 1)
            if P["PRIO"] == 4 and j % 4 == 0 and j:
                e(f"s_setprio {3 - j // 4}")
            if P["PRIO"] == 5:
                e(f"s_setprio {3 - (j // 2) % 4}")
            e(f"s_waitcnt vmcnt({D-1 if ld else 15-j})"); al()
            mf(j, 0)
            if ld:
                rl(j + D, j)
            e(*nx[:1]); mf(j, 1); e(*nx[1:])
            if ld and P["SCH"] == 2:
                sand(j + D); e(f"s_waitcnt vmcnt({D-2})"); xl(j + D)
            elif ld:
                sand(j + D); xl(j + D); e(f"s_waitcnt vmcnt({D-1})")
            else:
                e(f"s_waitcnt vmcnt({14-j})"); al()
            nx = pq(j + 2) if j < 14 else []
            mf(j + 1, 0)
            if ld:
                rl(j + 1 + D, j + 1)
            e(*nx[:1]); mf(j + 1, 1); e(*nx[1:])
            if last and j == 2 and P["AGP"] == 2:
                agaddr(); al()
            if j == 2 and not last:
                e("s_waitcnt lgkmcnt(0)")
                ea_reads(); al()
            if ld:
                sand(j + 1 + D)
            e(f"s_set_gpr_idx_on s{SK + j % 8}, gpr_idx(SRC2,DST)")
            xl(j + 1 + D) if ld else al()
            pks(j)
            e(f"s_set_gpr_idx_idx s{SK + (j + 1) % 8}")
            if j == 14 and not last:
                e(f"s_sub_u32 s{sCNT}, s{sCNT}, 1")
            al()
            pks(j + 1)
            if j % 4 == 2 and not last:
                zq(j // 4)
            if last and j >= 6 and P["WFT"]:
                wfr(*((14, 15) if j == 6 else (j - 2, j - 1)))
            e("s_set_gpr_idx_off")

    e("s_waitcnt lgkmcnt(3)")
    e(f"v_lshlrev_b32 v{K}, 3, v{K}", f"v_and_b32 v{K}, s{sT2}, v{K}")
    if late_wf:
        wfr(*range(NK))
    NB5 = P["NB5"]

    def pair(q):
        rl(q, q); rl(q + 1, q + 1)
        sand(q); xl(q); sand(q + 1); xl(q + 1)

    for q in (2, 4, 6):
        e(f"s_cmp_eq_u32 s{SK+8}, {q}", f"s_cbranch_scc1 L_p{q}")
    for q0 in (0, 2, 4, 6):
        e.label(f"L_p{q0}")
        for i in range(NB5):
            pair(q0 + 2 * i)
        if P["AGP"] == 0:
            e("s_waitcnt lgkmcnt(0)")
            agaddr()
        e(f"s_waitcnt vmcnt({2*NB5 + (1 if DH and P['XPF'] and P['XPOS'] == 5 else 0) + (1 if P['XP2'] and ORDER.index(P['XQ']) >= max(ORDER.index(q) for q in bstage) else 0)}) lgkmcnt(0)", "s_barrier")
        ea_reads()
        for i in range(NB5, 3):
            pair(q0 + 2 * i)
        if q0 < 6:
            e("s_branch L_pd")
    e.label("L_pd")
    if P["AGP"] == 1:
        agaddr()
    ts.stamp("b5")
    head("first")
    e(f"s_set_gpr_idx_on s{sP0}, gpr_idx(SRC0,SRC1)")
    e.idx_range, keep = {("v", i) for i in range(AGN, AGN + 16)}, e.idx_range
    e(pq(0)[0])
    e.idx_range = keep
    e("s_set_gpr_idx_off")
    e(*pq(0)[1:])
    e("s_waitcnt lgkmcnt(0)")
    ea_reads()
    e(f"s_cmp_eq_u32 s{sCNT}, 0", "s_cbranch_scc1 L_f0")
    for j in range(0, 14, 2):
        e(f"s_cmp_eq_u32 s{sP0}, {j}", f"s_cbranch_scc1 L_j{j}")
        if j % 4 == 2:
            zq(j // 4)
    e("s_branch L_j14")
    if P["LAL"] < 0:
        e(".p2align 3")
    else:
        e(".p2align 6")
        for _ in range(P["LAL"] // 4):
            e.raw("    s_nop 0")
    e.label("L_loop")
    head("mid")
    body(False)
    e(f"s_cmp_lg_u32 s{sCNT}, 0", "s_cbranch_scc1 L_loop")
    head("last")
    body(True)
    e.label("L_swept")
    ts.stamp("swept")
    e(f"s_add_u32 s{sROFF}, s{sROFF}, {CAPW}", f"s_cmp_lt_u32 s{sROFF}, s{sN}", "s_cbranch_scc1 L_again")
    AF, DD, OB, OT = ACC, 160, 64, 80
    if P["EPRIO"] >= 0:
        e(f"s_setprio {P['EPRIO']}")
    for s in range(5):
        for w in range(4):
            e(f"v_cvt_pk_bf16_f32 v{RW+4*s+w}, v{ACC+8*s+w}, v{ACC+8*s+4+w}")
        for w in (0, 2):
            e(f"ds_write2_b32 v{eAG[s]}, v{RW+4*s+w}, v{RW+4*s+w+1} offset0:{72*w} offset1:{72*w+72}")
    NPRE = 16
    if not P["WFT"]:
        wfr(*range(NK, 16))
    e(f"s_waitcnt lgkmcnt({0 if P['WFT'] else NPRE - NK})", "s_barrier")
    ts.stamp("agb")
    lq = [f"w{q}" for q in range(NPRE)]

    def lop(tag, text):
        e(text); lq.append(tag)

    def lwait(*tags):
        n = len(lq) - 1 - max(lq.index(t) for t in tags)
        e(f"s_waitcnt lgkmcnt({min(n, 15)})")

    def afrag(k, ss=range(4)):
        for s in ss:
            lop(f"a{k}{s}", f"ds_read_b128 {vr(AF+16*k+4*s,4)}, v{eFR} offset:{AGL + 4608*k + 64*s}")

    def post(k, pol=P['OUTPOL']):
        d, o = DD + 16 * (k % 2), OB + 8 * (k % 2)
        x = []
        for r in range(2):
            for c in range(2):
                x.append(f"v_cvt_pk_bf16_f32 v{o+4*r+c}, v{d+8*c+r}, v{d+8*c+4+r}")
                x.append(f"v_cvt_pk_bf16_f32 v{OT+2*r+c}, v{d+8*c+r}, v{d+8*c+4+r}")
                x.append(f"v_cvt_pk_bf16_f32 v{o+4*r+2+c}, v{d+8*c+r+2}, v{d+8*c+4+r+2}")
            for c in range(2):
                x.append(f"v_mov_b32_dpp v{o+4*r+c}, v{o+4*r+2+c} row_ror:8 row_mask:0xf bank_mask:0xc")
            for c in range(2):
                x.append(f"v_mov_b32_dpp v{o+4*r+2+c}, v{OT+2*r+c} row_ror:8 row_mask:0xf bank_mask:0x3")
            x.append(f"buffer_store_dwordx4 {vr(o+4*r,4)}, v{eST}, {sr(sOUT)}, s{sEO} offen offset:{256*r} {pol}")
        x.append(f"s_add_u32 s{sEO}, s{sEO}, 4096")
        return x

    def tile(k, pend):
        d = DD + 16 * (k % 2)
        for s in range(4):
            if k == 0:
                lwait(f"a0{s}", f"w{4*s+3}")
            elif s == 0:
                lwait(f"a{k}3")
            for t in range(4):
                c = "0" if s == 0 else vr(d + 4 * t, 4)
                e(f"v_mfma_f32_16x16x32_bf16 {vr(d+4*t,4)}, {vr(AF+16*k+4*s,4)}, {vr(WF[4*s+t],4)}, {c}")
                if 4 * s + t >= 4:
                    e(*pend[:2]); pend = pend[2:]
            if k == 0 and s == 0:
                afrag(1)
            if k == 0 and s == 1:
                afrag(2)
        e(*pend)

    for s in range(4):
        afrag(0, [s])
        for q in range(max(NPRE, 4 * s), 4 * s + 4):
            lop(f"w{q}", f"ds_read_b128 {vr(WF[q],4)}, v{eWF} offset:{1024*q}")
    tile(0, [])
    tile(1, post(0))
    e("s_cmp_ge_u32 s3, 4", "s_cbranch_scc1 L_two")
    tile(2, post(1))
    e(*post(2, P['LASTPOL']))
    e.label("L_stored")
    ts.stamp("stored")
    if P["DIAGW"] and P["DIAGAT"] == "fin":
        e("s_waitcnt vmcnt(0)")
        ts.stamp("fin")
    if P["DIAGW"]:
        e(f"s_add_u32 s6, s{sTSP+1}, {P['DIAGW']}", "s_min_u32 s6, s6, 30000")
        e.label("L_diag")
        e("s_memrealtime s[4:5]", "s_waitcnt lgkmcnt(0)", f"s_sub_u32 s4, s4, s{sTSP}", "s_cmp_lt_u32 s4, s6", "s_cbranch_scc1 L_diag")
    if P["TS"]:
        e("s_waitcnt vmcnt(0)")
        ts.stamp("end")
        e(f"s_lshl_b32 s{sT}, s2, 3", f"s_add_u32 s{sT}, s{sT}, s3", f"s_lshl_b32 s{sT}, s{sT}, 8", f"s_add_u32 s{sT}, s{sT}, {WS_TS}")
        e(f"v_lshl_add_u32 v{T}, v{LANE}, 2, s{sT}", f"global_store_dword v{T}, v{TSV}, s[14:15]")
        if P["DBG"]:
            e(f"s_cmp_lg_u32 s2, {P['DBG']}", "s_cbranch_scc1 L_done", "s_cmp_lg_u32 s3, 0", "s_cbranch_scc1 L_done")
            e("s_load_dwordx2 s[4:5], s[0:1], 72", f"v_readlane_b32 s{sT}, v{TSV}, 0", f"v_lshlrev_b32 v{T}, 2, v{LANE}")
            e(f"v_subrev_u32 v{TSV}, s{sT}, v{TSV}", "s_waitcnt lgkmcnt(0)", f"global_store_dword v{T}, v{TSV}, s[4:5]")
    e.label("L_done")
    e("s_endpgm")
    e.label("L_again")
    e("s_waitcnt vmcnt(0) lgkmcnt(0)", "s_barrier")
    init_round(False)
    for i in range(32):
        e(f"v_mov_b32 v{RW+i}, 0")
    e(f"v_add_u32 v{RLEN}, v{RLEN}, v{RBASE}", f"v_subrev_u32 v{RLEN}, {CAPW}, v{RLEN}", f"v_max_i32 v{RLEN}, 0, v{RLEN}")
    e(f"v_subrev_u32 v{RBASE}, {CAPW}, v{RBASE}", f"v_max_i32 v{RBASE}, 0, v{RBASE}", f"v_sub_u32 v{RLEN}, v{RLEN}, v{RBASE}")
    e(f"v_add_u32 v{RG0}, {CAPW}, v{RG0}", f"s_sub_i32 s{sNW}, s{sNW}, {CAPW}", f"v_lshl_add_u32 v{T}, v{RBASE}, 2, v{cMAPW}")
    e("s_waitcnt lgkmcnt(0)", "s_barrier")
    e.label("L_clip")
    e(f"v_add_u32 v{T+2}, v{RBASE}, v{RLEN}", f"v_min_i32 v{T+2}, {CAPW}, v{T+2}", f"v_sub_u32 v{T+2}, v{T+2}, v{RBASE}", f"v_add_u32 v{T+2}, v{T+2}, v{cODD}")
    e.label("L_masks")
    e(*cmps)
    e("s_nop 0", "s_branch L_mapw")
    e.label("L_map2")
    e(f"v_add_u32 v{T}, {8*MU}, v{T}", f"v_subrev_u32 v{T+2}, {2*MU}, v{T+2}")
    e("s_branch L_masks")
    e.label("L_r1")
    e(f"ds_read_b32 v{G1+3}, v{cMAP1} offset:768", f"ds_read_b32 v{G2+6}, v{cMAP2} offset:768")
    e("s_waitcnt lgkmcnt(0)")
    skld(3)
    for i in (6,):
        e(f"v_lshl_add_u32 v{G2+i}, v{G2+i}, 5, v{X16}")
        if not (DH and P["FL"]):
            bea1(i)
    e("s_branch L_r1b")
    if DH and P["FL"]:
        e.label("L_r1e")
        bea1(6)
        e("s_branch L_r1eb")
        e.label("L_fpoll")
        e(f"s_mov_b32 s{SK+13}, {SPIN}")
        e.label("L_fpoll2")
        e(f"buffer_load_dwordx2 {vr(PL2,2)}, v{cFLG}, {sr(sTAB)}, s{sFL} offen sc1", f"s_sub_u32 s{SK+13}, s{SK+13}, 1", "s_cbranch_scc1 L_done", "s_waitcnt vmcnt(0)")
        e(f"v_xor_b32 v{T+3}, s{sTAG2}, v{PL2}", f"v_xor_b32 v{T+4}, s{sTAG}, v{PL2+1}", f"v_or_b32 v{T+3}, v{T+3}, v{T+4}")
        e(f"v_cmp_ne_u32 vcc, 0, v{T+3}", "s_cbranch_vccnz L_fpoll2", "s_branch L_flagged")
    e.label("L_r2")
    count(3)
    entry(3)
    e("s_branch L_r2b")
    e.label("L_r3")
    e(f"ds_read_b32 v{CA+3}, v{CA+3} offset:{CNT2}", "s_waitcnt lgkmcnt(0)")
    e(*place(3))
    e(f"ds_read_b32 v{G1+3}, v{G1+3} offset:{START}", "s_waitcnt lgkmcnt(0)")
    e(f"v_lshl_add_u32 v{CA+3}, v{CA+3}, 2, v{G1+3}")
    scatter(3)
    e("s_mov_b64 exec, -1", "s_branch L_r3b")
    e.label("L_tag")
    e(f"v_mov_b32 v{T+3}, s{sTAG}", f"s_mov_b32 s{sT}, {WS_W}")
    e(f"buffer_store_dword v{T+3}, v{cMAP1}, {sr(sTAB)}, s{sT} offen sc1")
    e("s_branch L_tagged")
    e.label("L_empty")
    e("s_waitcnt vmcnt(0) lgkmcnt(0)", "s_barrier")
    agaddr()
    if late_wf:
        wfr(*range(NK))
    if P["WFT"]:
        wfr(*range(NK, 16))
    e("s_branch L_swept")
    e.label("L_two", pad=8)
    e(*post(1, P['LASTPOL']))
    e("s_branch L_stored")
    e.label("L_poll")
    e(poll1, f"s_sub_u32 s{sCNT}, s{sCNT}, 1", "s_cbranch_scc1 L_done", "s_waitcnt vmcnt(0)")
    tagcheck()
    e("s_cbranch_execnz L_poll", "s_branch L_polled")
    e.label("L_rank2")
    for j in range(5):
        e(f"ds_read_b32 v{CN+j}, v{cROW} offset:{CNT2 + 128*j}")
    if P["ENP"] == 0:
        for i in range(3):
            entry(i)
    e("s_waitcnt lgkmcnt(0)")
    e.label("L_end")
    e("s_branch L_ranked")
    return e.text(), LDS, 256, 102


HEADER = """; Kernarg layout for this problem (88 bytes, ptrs only, base s[0:1]):
"""


def generate(**kw):
    P = dict(DEF)
    P.update(kw)
    k, lds, v, s = gen(P)
    n = NAME + "_kernel"
    out = HEADER
    out += f"; @launch grid=(256,1,1) block=(512,1,1) lds={lds}\n"
    out += '.amdgcn_target "amdgcn-amd-amdhsa--gfx950"\n.text\n'
    out += f".globl {n}\n.p2align 8\n.type {n},@function\n{n}:\n{k}"
    out += '.section .rodata,"a"\n'
    out += (f".p2align 6\n.amdhsa_kernel {n}\n  .amdhsa_next_free_vgpr {v}\n  .amdhsa_next_free_sgpr {s}\n"
            f"  .amdhsa_accum_offset {(v+3)//4*4}\n  .amdhsa_group_segment_fixed_size 0\n  .amdhsa_kernarg_size 88\n"
            f"  .amdhsa_user_sgpr_count 2\n  .amdhsa_user_sgpr_kernarg_segment_ptr 1\n  .amdhsa_system_sgpr_workgroup_id_x 1\n"
            f"  .amdhsa_float_denorm_mode_32 3\n.end_amdhsa_kernel\n")
    return out


if __name__ == "__main__":
    kw = {}
    for a in sys.argv[1:]:
        k, v = a.split("=", 1)
        kw[k] = int(v) if v.lstrip("-").isdigit() else v
    sys.stdout.write(generate(**kw))
```

```python
import sys, os
sys.path.insert(0, os.path.dirname(os.path.abspath(__file__)))
from emit import Emitter

NAME = "gather_scatter__tensor_product_equiv_mace__graph"
N, E = 10000, 320000
CH, NCH, CS = 1250, 256, 1280
WS_TAB, WS_W, WS_SK, WS_EA, WS_TS = 0, 0x80000, 0x100000, 0x500000, 0x2000000
WS_FL = 0x90000
CAPW, GAP = 224, 16
CAP = 8 * CAPW
SPIN = 200000

DEF = dict(EAF=0, TPW=0, XPOL="", WSO=0, XP2=0, XQ=3, PPOS=0, KE=2, B4P=1, RWZ=3, DH=0, FL=1, FRP=0, FP=1, FQ=2, NREP=8, LAL=-1, XPOS=0, PQP=1, NB5=1, AGP=2, ENP=0, PW=0, WFT=1, WFK=6, LASTPOL='sc1', EPRIO=0, BIAS=30, SCH=2, ALIGN=0, PRIO=1, DIAGW=0, DIAGK=0, DIAGAT='tab', D=6, TS=0, DBG=0, APOL="nt", AEA="00011", BEA="001223", SKBAR=1, ABAR=2, XPF=18, CPF=2, MU=7, OUTPOL="sc1", LDPOL="sc1", WST=3, WOST=3, ACCZ=2, CPOS=2, WGN=0)

PART39 = [[3, 11, 21, 31, 36], [5, 8, 20, 27, 38], [0, 6, 7, 13, 39], [9, 14, 18, 25, 34], [10, 16, 19, 24, 32], [4, 12, 26, 29, 33], [1, 17, 23, 28, 37], [2, 15, 22, 30, 35]]
PART40 = [[1, 10, 15, 30, 39], [2, 9, 21, 28, 37], [4, 14, 22, 27, 31], [6, 12, 18, 24, 35], [3, 8, 16, 29, 38], [5, 13, 17, 26, 34], [0, 20, 23, 32, 36], [7, 11, 19, 25, 33]]
PARTS = {0: (PART39, PART40)}
PARTS[12] = ([[12, 16, 24, 26, 30], [8, 14, 15, 31, 36], [2, 10, 23, 34, 37], [5, 17, 18, 22, 38], [0, 1, 7, 19, 39], [3, 11, 20, 29, 35], [6, 9, 25, 27, 32], [4, 13, 21, 28, 33]],
    [[9, 12, 19, 28, 32], [3, 10, 22, 29, 37], [7, 8, 23, 26, 36], [0, 18, 20, 34, 38], [5, 6, 14, 21, 39], [4, 11, 16, 24, 35], [1, 15, 25, 27, 31], [2, 13, 17, 30, 33]])
PARTS[20] = ([[13, 17, 24, 26, 31], [4, 16, 25, 29, 36], [5, 19, 23, 28, 35], [1, 6, 8, 10, 39], [7, 9, 20, 27, 32], [3, 12, 14, 33, 34], [2, 15, 18, 22, 37], [0, 11, 21, 30, 38]],
    [[11, 12, 17, 20, 38], [3, 16, 26, 28, 34], [8, 10, 19, 29, 36], [7, 14, 25, 27, 31], [6, 13, 15, 24, 30], [0, 9, 22, 23, 39], [2, 4, 21, 32, 35], [1, 5, 18, 33, 37]])
PARTS[30] = ([[12, 16, 25, 29, 32], [0, 5, 9, 20, 39], [1, 18, 27, 34, 37], [7, 19, 22, 30, 35], [2, 6, 24, 26, 36], [4, 11, 13, 31, 33], [10, 15, 17, 21, 28], [3, 8, 14, 23, 38]],
    [[6, 9, 26, 28, 37], [1, 11, 24, 35, 38], [5, 17, 23, 31, 33], [8, 12, 21, 29, 36], [2, 4, 15, 22, 39], [7, 10, 14, 18, 34], [0, 16, 20, 30, 32], [3, 13, 19, 25, 27]])
PARTS[40] = ([[7, 13, 28, 29, 37], [10, 17, 22, 30, 36], [1, 4, 6, 23, 39], [9, 19, 26, 31, 33], [5, 12, 15, 18, 35], [2, 11, 16, 27, 34], [0, 8, 24, 25, 38], [3, 14, 20, 21, 32]],
    [[8, 17, 25, 31, 32], [3, 19, 22, 28, 38], [6, 15, 18, 33, 37], [2, 14, 24, 29, 39], [0, 12, 21, 27, 34], [1, 9, 13, 26, 36], [5, 7, 10, 23, 35], [4, 11, 16, 20, 30]])
PARTS[50] = ([[2, 19, 28, 35, 37], [0, 6, 11, 24, 39], [15, 17, 27, 29, 34], [1, 20, 30, 32, 38], [4, 7, 18, 23, 33], [9, 10, 12, 21, 31], [5, 13, 16, 25, 26], [3, 8, 14, 22, 36]],
    [[7, 15, 27, 30, 36], [8, 18, 19, 28, 38], [4, 14, 31, 33, 35], [6, 13, 20, 29, 39], [2, 3, 22, 23, 34], [0, 11, 12, 26, 37], [1, 9, 17, 24, 32], [5, 10, 16, 21, 25]])
PARTS[-10] = ([[5, 13, 17, 28, 34], [7, 12, 16, 30, 32], [1, 9, 25, 26, 38], [11, 14, 18, 22, 33], [0, 2, 10, 20, 39], [3, 6, 23, 35, 37], [15, 19, 21, 24, 29], [4, 8, 27, 31, 36]],
    [[0, 13, 22, 31, 37], [3, 8, 20, 28, 35], [4, 12, 16, 27, 34], [9, 11, 14, 18, 36], [5, 7, 19, 23, 39], [2, 15, 26, 30, 32], [6, 10, 17, 24, 38], [1, 21, 25, 29, 33]])
PARTS[-20] = ([[7, 13, 19, 20, 34], [6, 10, 23, 28, 30], [2, 5, 27, 29, 36], [0, 15, 22, 26, 38], [4, 11, 25, 31, 37], [1, 3, 9, 12, 39], [14, 18, 21, 24, 33], [8, 16, 17, 32, 35]],
    [[5, 9, 16, 20, 36], [8, 10, 15, 21, 33], [3, 7, 22, 25, 34], [4, 14, 18, 26, 28], [6, 12, 17, 29, 37], [0, 11, 23, 35, 39], [2, 19, 27, 30, 32], [1, 13, 24, 31, 38]])


def vr(a, n):
    return f"v[{a}:{a+n-1}]" if n > 1 else f"v{a}"


def sr(a, n=4):
    return f"s[{a}:{a+n-1}]"


def scan_dpp(e, v, full):
    for k in (1, 2, 4, 8):
        e(f"v_add_u32_dpp v{v}, v{v}, v{v} row_shr:{k} row_mask:0xf bank_mask:0xf")
    e(f"v_add_u32_dpp v{v}, v{v}, v{v} row_bcast:15 row_mask:0xa bank_mask:0xf")
    if full:
        e(f"v_add_u32_dpp v{v}, v{v}, v{v} row_bcast:31 row_mask:0xc bank_mask:0xf")


class TS:
    last = None

    def __init__(self, e, on, pair, vreg):
        self.e, self.on, self.pair, self.v, self.names = e, on, pair, vreg, []
        TS.last = self

    diag = None

    def stamp(self, name):
        if self.diag and self.diag[0] == name:
            self.e("s_memrealtime s[4:5]", "s_waitcnt lgkmcnt(0)", f"s_sub_u32 s4, s4, s{self.pair}", f"s_mul_i32 s{self.pair+1}, s4, {self.diag[1]}")
        if self.on and (self.on == 1 or name in str(self.on).split(",") or name in ("start", "end")):
            e, p = self.e, self.pair
            e(f"s_memrealtime s[{p}:{p+1}]", "s_waitcnt lgkmcnt(0)", f"v_writelane_b32 v{self.v}, s{p}, {len(self.names)}")
            self.names.append(name)


class VQ:
    def __init__(self, e):
        self.e, self.q = e, []

    def op(self, tag, text):
        self.e(text)
        self.q.append(tag)

    def n(self, tag):
        idx = max(i for i, t in enumerate(self.q) if t == tag)
        return len(self.q) - 1 - idx

    def wait(self, tag, extra=""):
        self.e(f"s_waitcnt vmcnt({self.n(tag)}) {extra}".strip())


def gen(P):
    e = Emitter()
    vq = VQ(e)
    D = P["D"]
    R = 8
    MAP, CNT2, WB, DEG, TOT, NODEOF, START, WR, WO = 0, 8192, 13312, 14336, 15360, 15616, 16384, 17408, 46080
    LIST = WO + 32768
    SHST = LIST + (CAP + 8 * GAP + 128) * 4
    EAST = SHST + CAP * 8
    assert SHST + CAP * 8 <= EAST
    ZERO = EAST + CAP * 32
    LDS = ZERO + 64
    AGL = 0
    ACNT, ASTART, AINV, ASKS = 23552, 24576, 25600, 30720
    assert ASKS + CS * 12 <= WO and LDS <= 163840
    LANE, X16, RLEN, RBASE, RG0, ONE, PFV = 1, 2, 3, 4, 5, 6, 7
    T = 8
    ACC, RW, XR, TP, AGN, PQ, EA0, EA1, WRF, CGF, ENT = 16, 64, 96, 128, 144, 160, 164, 168, 172, 188, 192
    MP, MQ = CGF + 2, CGF + 3
    SIX, ZAD = EA1, EA1 + 1
    eAG, eFR, eST, eWF, NOD = [208, 209, 210, 211, 212], 213, 214, 215, 205
    NK = P["WFK"]
    assert NK == 6
    WF = [216 + 4 * q for q in range(NK)] + [XR + 4 * q for q in range(8)] + [AGN, AGN + 4]
    K, KN, LA, LB, EAC, LAC, LBC, RT, TSV = 196, 197, 198, 199, 200, 201, 202, 203, 204
    cODD, cMAPW, cMAP1, cMAP2, cL12, cDEG, cSH, cR21, cROW, cTIE, cBIN, cNOD, cLST, c380 = range(240, 254)
    cFLG = 195
    e.idx_range = {("v", i) for i in range(ACC, ACC + 48)}
    sX, sTAB, sSK, sEA, sA0, sA1, sOUT = 16, 20, 24, 28, 32, 36, 40
    sB, sNB, sNCNT, sN, sROFF, sNR, sNV, sBASE, sEM, sCNT, sT, sT2 = 44, 45, 46, 47, 48, 49, 50, 51, 52, 53, 54, 55
    sNODE = 56
    sOFF = 61
    sTAG, sTAG2 = 62, 63
    SK = 64
    sV = 80
    sM0, sEO = 86, 87
    sASG = [90, 91, 92, 93, 94]
    sNW, sK4 = 95, 98
    sA2, sTSP = 96, 100
    sFL = 88
    ts = TS(e, P["TS"], sTSP, TSV)
    if P["DIAGW"]:
        ts.diag = (P["DIAGAT"], P["DIAGK"])
    apol, ldpol = P["APOL"], P["LDPOL"]
    astage = [int(c) for c in str(P["AEA"]).zfill(5)]
    bstage = [int(c) for c in str(P["BEA"]).zfill(6)]

    def srd(s, lo, hi, off, size):
        if off is None:
            e(f"s_mov_b32 s{s}, s{lo}", f"s_mov_b32 s{s+1}, s{hi}")
        else:
            e(f"s_add_u32 s{s}, s{lo}, {off}", f"s_addc_u32 s{s+1}, s{hi}, 0")
        e(f"s_mov_b32 s{s+2}, {size}", f"s_mov_b32 s{s+3}, 0x20000")

    def init_round(first):
        e(f"v_lshlrev_b32 v{T+3}, 2, v0", f"v_mov_b32 v{T+4}, 0x00700000", f"v_mov_b32 v{T+5}, 0")
        for i in range(4):
            e(f"ds_write_b32 v{T+3}, v{T+4} offset:{MAP + i*2048}")
        for i in range(4 if first else 3):
            e(f"ds_write_b32 v{T+3}, v{T+5} offset:{CNT2 + i*2048}")

    DSTV, SRCV, SHV, BK, BA, RK, NL, KEY, CT, ST, PS = 64, 68, 72, 80, 84, 88, 92, 96, 100, 104, 108
    TABV = 112
    OUTV = 128
    IV = 156
    CGR = 120
    if P["TS"]:
        e("s_memrealtime s[92:93]")
    e("s_cmp_ge_u32 s2, 256", "s_cbranch_scc1 L_done")
    e("s_load_dwordx4 s[4:7], s[0:1], 8")
    e("s_load_dwordx4 s[8:11], s[0:1], 24")
    e("s_load_dwordx2 s[14:15], s[0:1], 80")
    e(f"s_load_dwordx2 s[{SK}:{SK+1}], s[0:1], 0")
    e(f"s_load_dwordx2 s[{SK+2}:{SK+3}], s[0:1], 40")
    e(f"s_load_dwordx4 s[{SK+4}:{SK+7}], s[0:1], 48")
    e("s_load_dwordx2 s[12:13], s[0:1], 64")

    def cpf():
        e(f"s_getpc_b64 s[{sV}:{sV+1}]")
        e.label("L_pc")
        e(f"s_and_b32 s{sB}, s2, 0xf8", f"s_lshl_b32 s{sB}, s{sB}, 6")
        e(f"v_and_b32 v{T+3}, 0x180, v{T+2}", f"v_add_u32 v{T+3}, s{sB}, v{T+3}", f"v_min_u32 v{T+3}, L_end-L_pc, v{T+3}")
        e(f"v_mov_b32 v{TABV+1}, s{sV+1}", f"v_add_co_u32 v{TABV}, vcc, s{sV}, v{T+3}", f"v_addc_co_u32 v{TABV+1}, vcc, 0, v{TABV+1}, vcc")
        vq.op("cpf", f"global_load_dword v{TSV+1}, {vr(TABV,2)}, off")

    def srd_hi(s, size):
        e(f"s_mov_b32 s{s+2}, {size}", f"s_mov_b32 s{s+3}, 0x20000")

    def srd_lo(s, lo, off):
        e(f"s_add_u32 s{s}, s{lo}, {off}", f"s_addc_u32 s{s+1}, s{lo+1}, 0")

    e(f"v_lshlrev_b32 v{T+2}, 3, v0")
    if P["CPF"] == 2:
        cpf()
    e(f"v_lshrrev_b32 v{T}, 6, v0", f"v_and_b32 v{LANE}, 63, v0", f"v_lshlrev_b32 v{T+1}, 2, v0", f"v_mov_b32 v{T+5}, 0")
    e(f"v_readfirstlane_b32 s3, v{T}")
    e(f"ds_write_b32 v{T+1}, v{T+5} offset:{ACNT}", f"ds_write_b32 v{T+1}, v{T+5} offset:{AINV+3072}")
    e(f"s_mul_i32 s{sT}, s2, {CH*4}", f"s_mul_i32 s{sT2}, s2, {CH*8}", f"s_mul_i32 s{sOFF}, s2, {CH*32}")
    e(f"v_lshlrev_b32 v{X16}, 4, v{LANE}", f"v_lshlrev_b32 v{T+7}, 4, v0", f"v_mov_b32 v{ONE}, 1")
    e(f"s_lshl_b32 s{sEM}, s3, 10", f"s_add_u32 s{sEM}, s{sEM}, {EAST}", f"s_movk_i32 s{sCNT}, 4096", f"s_movk_i32 s{sNV}, 8192")
    srd_hi(sA0, CH * 4); srd_hi(sA1, CH * 4); srd_hi(sA2, CH * 8); srd_hi(sEA, CH * 32)
    if P["DIAGW"]:
        e(f"s_memrealtime s[{sTSP}:{sTSP+1}]")
    e("s_waitcnt lgkmcnt(0)")
    if P["WSO"]:
        e(f"s_add_u32 s14, s14, {P['WSO'] << 20}", "s_addc_u32 s15, s15, 0")
    if P["TS"]:
        e(f"v_writelane_b32 v{TSV}, s92, 0")
        ts.names.append("first")
    ts.stamp("start")
    srd_lo(sA0, 6, f"s{sT}")
    for i in range(3):
        o = f"0 offen offset:{2048*i}" if i < 2 else f"s{sCNT} offen"
        vq.op("dst", f"buffer_load_dword v{DSTV+i}, v{T+1}, {sr(sA0)}, {o} {apol}")
    srd_lo(sA1, 4, f"s{sT}")
    if P["ABAR"] == 2:
        e("s_barrier")
    for i in range(3):
        o = f"0 offen offset:{2048*i}" if i < 2 else f"s{sCNT} offen"
        vq.op("src", f"buffer_load_dword v{SRCV+i}, v{T+1}, {sr(sA1)}, {o} {apol}")
    e(f"s_load_dword s{sTAG}, s[14:15], {WS_W}")
    if P["CPF"] == 1:
        cpf()
    srd_lo(sA2, 8, f"s{sT2}")
    srd_lo(sEA, 10, f"s{sOFF}")
    if P["ABAR"] == 1:
        e("s_barrier")
    for i, o in enumerate(("0", f"s{sCNT}", f"s{sNV}")):
        vq.op("sh", f"buffer_load_dwordx2 {vr(SHV+2*i,2)}, v{T+2}, {sr(sA2)}, {o} offen {apol}")

    def aea(p):
        for i in range(5):
            if astage[i] == p:
                e(f"s_add_u32 m0, s{sEM}, {8192*i}", f"s_mov_b32 s{sT}, {8192*i}")
                vq.op("ea", f"buffer_load_dwordx4 v{T+7}, {sr(sEA)}, s{sT} offen {apol} lds")
        if P["WST"] == p:
            weights()
        if P["WOST"] == p:
            wout()

    def weights():
        e("s_cmp_lt_u32 s3, 4")
        e(f"s_cselect_b32 s{sX}, s{SK+4}, s{SK+2}", f"s_cselect_b32 s{sX+1}, s{SK+5}, s{SK+3}", f"s_movk_i32 s{sT}, 128",
          f"s_cselect_b32 s{sX+2}, s{sCNT}, s{sT}", f"s_mov_b32 s{sX+3}, 0x20000")
        e(f"s_min_u32 s{sT}, s3, 5", f"s_lshl_b32 s{sT}, s{sT}, 10", f"s_add_u32 m0, s{sT}, {WR}", f"s_and_b32 s{sT}, s{sT}, 0xc00")
        vq.op("w", f"buffer_load_dwordx4 v{X16}, {sr(sX)}, s{sT} offen lds")

    def wout():
        srd(sOUT, SK + 6, SK + 7, None, 32768)
        e(f"s_lshl_b32 s{sT2}, s3, 12", f"s_add_u32 m0, s{sT2}, {WO}")
        for i in range(4):
            vq.op("w", f"buffer_load_dwordx4 v{X16}, {sr(sOUT)}, s{sT2} offen offset:{i*1024} lds")

    aea(0)
    if not P["ABAR"]:
        e("s_barrier")
    e(f"s_mov_b32 s{SK+8}, 109951168", f"s_movk_i32 s{SK+9}, 625", f"s_movk_i32 s{SK+10}, 838")
    e(f"v_cmp_gt_u32 s[{sV+4}:{sV+5}], {CH-1024}, v0") if CH - 1024 <= 64 else e(f"s_movk_i32 s{sT}, {CH-1024}", f"v_cmp_gt_u32 s[{sV+4}:{sV+5}], s{sT}, v0")
    srd(sTAB, 14, 15, None, (WS_FL + 0x10000) if P["DH"] else WS_W + 64)
    init_round(True)
    if P["ACCZ"] == 9:
        for i in range(48):
            e(f"v_mov_b32 v{ACC+i}, 0")
    vq.wait("dst")
    ts.stamp("dst")
    for k in range(3):
        e(f"v_mul_hi_u32 v{BK+k}, v{DSTV+k}, s{SK+8}")
    for k in range(3):
        e(f"v_lshlrev_b32 v{BA+k}, 2, v{BK+k}")
        if k == 2:
            e(f"s_mov_b64 exec, s[{sV+4}:{sV+5}]")
        e(f"ds_add_rtn_u32 v{RK+k}, v{BA+k}, v{ONE} offset:{ACNT}")
    e("s_mov_b64 exec, -1")
    e("s_waitcnt lgkmcnt(0)", "s_barrier")
    ts.stamp("hist")
    e(f"ds_read_b128 {vr(CT,4)}, v{X16} offset:{ACNT}")
    e(f"s_mul_i32 s{sTAG}, s{sTAG}, 0x9e3779b1", f"s_add_u32 s{sTAG}, s{sTAG}, 0x7f4a7c15")
    e(f"s_mul_i32 s{sTAG2}, s{sTAG}, 0x85ebca6b", f"s_and_b32 s{sTAG2}, s{sTAG2}, 0xffc00000")
    def tpw():
        e(f"s_not_b32 s{sT}, s{sTAG}")
        for k in range(4):
            e(f"v_mov_b32 v{TABV+4+k}, s{sT}")
        e(f"s_lshl_b32 s{sT}, s2, 3", f"s_add_u32 s{sT}, s{sT}, s3", f"s_lshl_b32 s{sT}, s{sT}, 8")
        e("s_mov_b64 exec, 0xffff")
        vq.op("tpw", f"buffer_store_dwordx4 {vr(TABV+4,4)}, v{X16}, {sr(sTAB)}, s{sT} offen sc1")
        e("s_mov_b64 exec, -1")
    if P["TPW"] == 1:
        tpw()
    aea(1)
    for k in range(3):
        e(f"v_mad_u32_u24 v{NL+k}, v{BK+k}, s{SK+9}, 15", f"v_lshrrev_b32 v{NL+k}, 4, v{NL+k}", f"v_sub_u32 v{NL+k}, v{DSTV+k}, v{NL+k}")
    e("s_waitcnt lgkmcnt(0)")
    e(f"v_add_u32 v{T+3}, v{CT}, v{CT+1}", f"v_add3_u32 v{T+3}, v{T+3}, v{CT+2}, v{CT+3}", f"v_mov_b32 v{T+4}, v{T+3}")
    scan_dpp(e, T + 4, True)
    e(f"v_sub_u32 v{ST}, v{T+4}, v{T+3}")
    for k in range(3):
        e(f"v_add_u32 v{ST+1+k}, v{ST+k}, v{CT+k}")
    e(f"ds_write_b128 v{X16}, {vr(ST,4)} offset:{ASTART}")
    for k in range(3):
        e(f"ds_read_b32 v{PS+k}, v{BA+k} offset:{ASTART}")
    vq.wait("src")
    for k in range(3):
        e(f"v_mul_u32_u24 v{KEY+k}, s{SK+10}, v{SRCV+k}", f"v_bfe_u32 v{KEY+k}, v{KEY+k}, 18, 5")
        e(f"v_lshl_or_b32 v{KEY+k}, v{NL+k}, 5, v{KEY+k}",
          f"v_lshlrev_b32 v{KEY+k}, 21, v{KEY+k}", f"v_lshl_or_b32 v{KEY+k}, v{SRCV+k}, 7, v{KEY+k}")
    e(f"v_lshlrev_b32 v{NL}, 5, v0", f"v_add_u32 v{NL+1}, {512*32}, v{NL}", f"v_add_u32 v{NL+2}, {1024*32}, v{NL}")
    e(f"s_mov_b32 s{sT2}, {ASKS}")
    vq.wait("sh", "lgkmcnt(0)")
    for k in range(3):
        e(f"v_add_u32 v{PS+k}, v{PS+k}, v{RK+k}")
        e(f"v_lshlrev_b32 v{BA+k}, 2, v{PS+k}", f"v_mad_u32_u24 v{PS+k}, v{PS+k}, 12, s{sT2}")
        if k == 2:
            e(f"s_mov_b64 exec, s[{sV+4}:{sV+5}]")
        e(f"ds_write_b32 v{BA+k}, v{NL+k} offset:{AINV}")
        e(f"ds_write2_b32 v{PS+k}, v{SHV+2*k}, v{SHV+2*k+1} offset0:0 offset1:1")
        e(f"ds_write_b32 v{PS+k}, v{KEY+k} offset:8")
    e("s_mov_b64 exec, -1")
    if P["TPW"] == 2:
        tpw()
    aea(2)
    e(f"s_lshl_b32 s{sT}, s3, 7", f"v_lshl_add_u32 v{T+3}, v{LANE}, 3, s{sT}")
    e(f"ds_read_b64 {vr(CT,2)}, v{T+3} offset:{ACNT}", f"ds_read_b64 {vr(ST,2)}, v{T+3} offset:{ASTART}")
    e(f"s_mul_i32 s{sT}, s2, {CS*12}", f"s_add_u32 s{sT}, s{sT}, {WS_SK}")
    srd(sA0, 14, 15, f"s{sT}", CS * 12)
    e(f"s_mul_i32 s{sT}, s2, {CS*32}", f"s_add_u32 s{sT}, s{sT}, {WS_EA}")
    srd(sA1, 14, 15, f"s{sT}", (CH * 32 + 127) // 128 * 128 if P["EAF"] else CH * 32)
    e(f"v_lshrrev_b32 v{T+3}, 1, v0", f"v_lshlrev_b32 v{T+3}, 2, v{T+3}")
    e(f"v_and_b32 v{T+4}, 1, v0", f"v_lshlrev_b32 v{T+4}, 4, v{T+4}", f"v_add_u32 v{T+4}, {EAST}, v{T+4}", f"v_add_u32 v{T+6}, {ASKS}, v{T+7}")
    e("s_waitcnt lgkmcnt(0)", "s_barrier")
    ts.stamp("scat")
    e(f"ds_read_b128 {vr(OUTV,4)}, v{T+6}", f"ds_read_b128 {vr(OUTV+4,4)}, v{T+6} offset:8192")
    for i in range(5):
        e(f"ds_read_b32 v{IV+i}, v{T+3} offset:{AINV + i*1024}")

    def skst():
        vq.op("skst", f"buffer_store_dwordx4 {vr(OUTV,4)}, v{T+7}, {sr(sA0)}, 0 offen sc1")
        vq.op("skst", f"buffer_store_dwordx4 {vr(OUTV+4,4)}, v{T+7}, {sr(sA0)}, s{sNV} offen sc1")
    DH = P["DH"]
    if DH == 1:
        e("s_waitcnt lgkmcnt(5)")
        skst()
    aea(3)
    if DH == 2:
        e("s_waitcnt lgkmcnt(5)")
        skst()

    def frag_r(F0, t0, t1, t2):
        e(f"v_lshrrev_b32 v{t0}, 5, v{LANE}", f"v_lshlrev_b32 v{t0}, 10, v{t0}", f"v_and_b32 v{t1}, 15, v{LANE}", f"v_lshl_add_u32 v{t0}, v{t1}, 4, v{t0}")
        for i in range(8):
            e(f"ds_read_b128 {vr(F0+4*i,4)}, v{t0} offset:{WR + 2048*(i//4) + 256*(i%4)}")
        e(f"v_lshrrev_b32 v{t0}, 4, v{LANE}", f"v_lshlrev_b32 v{t0}, 5, v{t0}", f"v_and_b32 v{t1}, 3, v{LANE}", f"v_lshl_add_u32 v{t0}, v{t1}, 1, v{t0}")
        for v in range(4):
            e(f"ds_read_u16 v{F0+32+v}, v{t0} offset:{WR + 4096 + 8*v}")
        e(f"v_bfe_i32 v{t2}, v{LANE}, 4, 1", f"v_and_b32 v{t2}, 0x02020202, v{t2}", f"v_add_u32 v{t2}, 0x05040100, v{t2}")
        e("s_waitcnt lgkmcnt(0)")
        for h in range(2):
            for t in range(2):
                for ip in range(4):
                    e(f"v_perm_b32 v{WRF+8*h+2*ip+t}, v{F0+4*(2*ip+1)+t+2*h}, v{F0+4*(2*ip)+t+2*h}, v{t2}")
        e(f"v_lshl_or_b32 v{CGF}, v{F0+33}, 16, v{F0+32}", f"v_lshl_or_b32 v{CGF+1}, v{F0+35}, 16, v{F0+34}")

    def frag_o(F0, F1, t0, t1, sM):
        e(f"v_and_b32 v{t1}, 7, v{LANE}", f"v_lshrrev_b32 v{t0}, 4, v{LANE}", f"v_lshlrev_b32 v{t0}, 13, v{t0}", f"v_lshl_add_u32 v{t0}, v{t1}, 4, v{t0}",
          f"v_and_b32 v{t1}, 8, v{LANE}", f"s_and_b32 s{sM}, s3, 3", f"s_lshl_b32 s{sM}, s{sM}, 8", f"s_lshr_b32 s{sM+1}, s3, 2", f"s_lshl_b32 s{sM+1}, s{sM+1}, 7",
          f"s_add_u32 s{sM}, s{sM}, s{sM+1}", f"s_add_u32 s{sM}, s{sM}, {WO}", f"v_add3_u32 v{t0}, v{t0}, v{t1}, s{sM}")
        for ip in range(4):
            e(f"ds_read2st64_b64 {vr(F0+4*ip,4)}, v{t0} offset0:{4*ip} offset1:{4*ip+2}")
        e(f"s_mov_b32 s{sM}, 0x05040100", f"s_mov_b32 s{sM+1}, 0x07060302")
        for ip in range(4):
            e(f"s_waitcnt lgkmcnt({3-ip})")
            for t in range(4):
                e(f"v_perm_b32 v{F1+4*t+ip}, v{F0+4*ip+2+t//2}, v{F0+4*ip+t//2}, s{sM+t%2}")

    def consts():
        e(f"s_and_b32 s{sB}, s2, 7", f"s_lshl_b32 s{sB}, s{sB}, 5", f"s_lshr_b32 s{sT}, s2, 3", f"s_add_u32 s{sB}, s{sB}, s{sT}")
        e(f"s_mul_i32 s{sNB}, s{sB}, 625", f"s_add_u32 s{sNCNT}, s{sNB}, 640", f"s_add_u32 s{sNB}, s{sNB}, 15",
          f"s_lshr_b32 s{sNB}, s{sNB}, 4", f"s_lshr_b32 s{sNCNT}, s{sNCNT}, 4", f"s_sub_u32 s{sNCNT}, s{sNCNT}, s{sNB}")
        e(f"v_bfe_i32 v{SIX}, v{LANE}, 2, 1", f"v_and_b32 v{SIX}, 0xaaaa, v{SIX}", f"v_add_u32 v{SIX}, 0x4444, v{SIX}")
        e(f"v_mov_b32 v{ZAD}, {ZERO}", f"v_and_b32 v{T+3}, 60, v{T+1}", f"v_add_u32 v{T+3}, v{T+3}, v{ZAD}", f"ds_write_b32 v{T+3}, v{T+5}")
        e(f"v_and_b32 v{T+3}, 4, v{LANE}", f"v_lshlrev_b32 v{T+3}, 2, v{T+3}", f"v_mov_b32 v{T+4}, 0xffff", f"v_lshlrev_b32 v{T+4}, v{T+3}, v{T+4}")
        e(f"v_bfe_i32 v{T+3}, v{LANE}, 3, 1", f"v_and_b32 v{MQ}, v{T+3}, v{T+4}", f"v_xor_b32 v{MP}, v{MQ}, v{T+4}")
        if P["PQP"]:
            e(f"v_mov_b32 v{T+3}, 0x0c0c0c0c", f"v_mov_b32 v{T+4}, 0x03020302")
            e(f"v_bfi_b32 v254, v{MP}, v{T+4}, v{T+3}", f"v_bfi_b32 v255, v{MQ}, v{T+4}, v{T+3}", f"v_mov_b32 v{T+4}, 0x01000100")
            e(f"v_bfi_b32 v{MP}, v{MP}, v{T+4}, v{T+3}", f"v_bfi_b32 v{MQ}, v{MQ}, v{T+4}, v{T+3}")
        e(f"v_lshrrev_b32 v{EAC}, 5, v{LANE}", f"v_lshlrev_b32 v{EAC}, 4, v{EAC}", f"v_add_u32 v{EAC}, {EAST}, v{EAC}")
        e(f"v_and_b32 v{LAC}, 15, v{LANE}", f"v_lshlrev_b32 v{LAC}, 2, v{LAC}")
        e(f"v_bfe_u32 v{T+3}, v{LANE}, 3, 2", f"v_and_b32 v{T+4}, 3, v{LANE}", f"v_lshl_add_u32 v{T+3}, v{T+3}, 2, v{T+4}", f"v_lshlrev_b32 v{LBC}, 2, v{T+3}")
        e(f"v_bfe_i32 v{cODD}, v0, 0, 1", f"s_lshl_b32 s{sT}, s3, 10", f"v_and_b32 v{cMAPW}, 4, v{cODD}", f"v_add_u32 v{cMAPW}, s{sT}, v{cMAPW}")
        e(f"v_lshl_add_u32 v{cMAP1}, v{LANE}, 2, s{sT}", f"v_lshrrev_b32 v{cMAP2}, 1, v{LANE}", f"v_lshl_add_u32 v{cMAP2}, v{cMAP2}, 2, s{sT}")
        e(f"v_mul_u32_u24 v{cL12}, 12, v{LANE}", f"v_and_b32 v{cDEG}, 12, v{cMAP1}", f"v_and_b32 v{cBIN}, 124, v{cMAP1}")
        e(f"s_mul_i32 s{sT}, s3, {CAPW}", f"v_add_u32 v{cR21}, s{sT}, v{LANE}", f"v_lshlrev_b32 v{cSH}, 3, v{cR21}", f"v_add_u32 v{cSH}, {SHST}, v{cSH}", f"v_lshlrev_b32 v{cR21}, 21, v{cR21}")
        e(f"s_mul_i32 s{sT}, s3, 640", f"v_add_u32 v{cROW}, s{sT}, v{cBIN}", f"v_sub_u32 v{cTIE}, 63, v{LANE}")
        e(f"s_getreg_b32 s{sM0}, hwreg(HW_REG_XCC_ID, 0, 3)", f"s_lshl_b32 s{sT}, s{sM0}, 4", f"v_subrev_u32 v{cBIN}, s{sT}, v{cBIN}", f"v_and_b32 v{cBIN}, 124, v{cBIN}")
        e(f"v_min_u32 v{cNOD}, 39, v{LANE}", f"v_lshlrev_b32 v{cNOD}, 7, v{cNOD}", f"v_mov_b32 v{c380}, 0x380")
        e(f"v_lshrrev_b32 v{cLST}, 3, v{LANE}", f"v_mul_u32_u24 v{cLST}, {GAP*4}, v{cLST}", f"v_add_u32 v{cLST}, {LIST}, v{cLST}")
        e(f"s_lshr_b32 s{sEO}, s3, 1", f"s_mul_i32 s{sEO}, s{sEO}, 3", f"s_min_u32 s{sEO}, s{sEO}, 8", f"s_mul_i32 s{sT}, s{sEO}, 4608")
        e(f"v_and_b32 v{T+3}, 15, v{LANE}", f"v_lshrrev_b32 v{T+4}, 4, v{LANE}")
        e(f"v_mul_u32_u24 v{eFR}, 288, v{T+3}", f"v_lshl_add_u32 v{eFR}, v{T+4}, 4, v{eFR}", f"v_add_u32 v{eFR}, s{sT}, v{eFR}")
        e(f"v_lshrrev_b32 v{T+4}, 3, v{LANE}", f"v_lshlrev_b32 v{T+4}, 9, v{T+4}", f"v_and_b32 v{T+3}, 7, v{LANE}", f"v_lshl_add_u32 v{eST}, v{T+3}, 4, v{T+4}")
        e(f"s_lshl_b32 s{sEO}, s{sEO}, 12", f"s_and_b32 s{sT}, s3, 1", f"s_lshl_b32 s{sT}, s{sT}, 7", f"s_add_u32 s{sEO}, s{sEO}, s{sT}",
          f"s_lshl_b32 s{sT}, s{sT}, 7", f"s_add_u32 s{sT}, s{sT}, {WO}", f"v_add_u32 v{eWF}, s{sT}, v{X16}")
        e(f"s_cmp_eq_u32 s{sNCNT}, 40")
        tabs = []
        for part in PARTS[P["BIAS"]]:
            t = [0] * 40
            for w, p in enumerate(part):
                for sl, r in enumerate(p):
                    t[r] = w * 8 + sl
            tabs.append([sum(t[5 * q + i] << (6 * i) for i in range(5)) for q in range(8)])
        e(f"v_mov_b32 v{RT}, 0")
        for q in range(8):
            e(f"s_mov_b32 s{sT}, {tabs[0][q]}", f"s_cselect_b32 s{sT}, {tabs[1][q]}, s{sT}")
            m = 31 << (5 * q)
            e(f"s_mov_b32 exec_lo, {m & 0xffffffff}", f"s_mov_b32 exec_hi, {m >> 32}", f"v_mov_b32 v{RT}, s{sT}")
        e("s_mov_b64 exec, -1")
        e(f"v_mul_u32_u24 v{T+3}, 52, v{LANE}", f"v_lshrrev_b32 v{T+3}, 8, v{T+3}", f"v_mad_i32_i24 v{T+3}, v{T+3}, -5, v{LANE}",
          f"v_mul_u32_u24 v{T+3}, 6, v{T+3}", f"v_lshrrev_b32 v{RT}, v{T+3}, v{RT}")
        e(f"v_and_b32 v{T+3}, 7, v{RT}", f"v_bfe_u32 v{RT}, v{RT}, 3, 3", f"v_lshlrev_b32 v{T+3}, 12, v{T+3}", f"v_lshl_or_b32 v{RT}, v{RT}, 7, v{T+3}")
        srd(sSK, 14, 15, WS_SK, NCH * CS * 12)

    def extra(pos):
        if P["CPOS"] == pos:
            consts()
        if P["ACCZ"] == pos:
            for i in range(48):
                e(f"v_mov_b32 v{ACC+i}, 0")

    e("s_waitcnt lgkmcnt(0)")
    for i in range(5):
        e(f"v_add_u32 v{IV+i}, v{T+4}, v{IV+i}")
    for k in range(2):
        e(f"v_lshl_or_b32 v{TABV+2*k}, v{CT+k}, 11, v{ST+k}", f"v_or_b32 v{TABV+2*k}, s{sTAG2}, v{TABV+2*k}", f"v_mov_b32 v{TABV+2*k+1}, s{sTAG}")
    extra(0)

    def publish():
        e("s_mov_b64 exec, 0xffff")
        vq.op("tab", f"buffer_store_dwordx4 {vr(TABV,4)}, v{X16}, {sr(sTAB)}, s{sT} offen sc1")
        e("s_mov_b64 exec, -1")

    if DH:
        e(f"s_lshl_b32 s{sT}, s2, 3", f"s_add_u32 s{sT}, s{sT}, s3", f"s_lshl_b32 s{sT}, s{sT}, 8")
    e(f"s_waitcnt vmcnt({min(vq.n('w') + P['WGN'], vq.n('ea'))})")
    e("s_barrier")
    ts.stamp("land")
    if DH in (1, 2):
        publish()
    for i in range(5):
        e(f"ds_read_b128 {vr(OUTV+8+4*i,4)}, v{IV+i}")
    extra(1)
    if P["TPW"] == 3:
        tpw()
    ts.stamp("guard")
    if DH in (0, 3):
        skst()
    for i in range(5):
        if DH == 3 and i == P["KE"]:
            extra(4)
            e(f"s_lshl_b32 s{sT}, s2, 3", f"s_add_u32 s{sT}, s{sT}, s3", f"s_lshl_b32 s{sT}, s{sT}, 8")
            vq.wait("skst")
            e("s_barrier")
            ts.stamp("skdr")
            publish()
        e(f"s_mov_b32 s{sT}, {8192*i}", f"s_waitcnt lgkmcnt({4-i})")
        vq.op("st", f"buffer_store_dwordx4 {vr(OUTV+8+4*i,4)}, v{T+7}, {sr(sA1)}, s{sT} offen sc1")
    if DH == 3 and P["KE"] == 5:
        extra(4)
        e(f"s_lshl_b32 s{sT}, s2, 3", f"s_add_u32 s{sT}, s{sT}, s3", f"s_lshl_b32 s{sT}, s{sT}, 8")
        vq.wait("skst")
        e("s_barrier")
        ts.stamp("skdr")
        publish()
    aea(4)
    ts.stamp("issued")

    extra(2)
    e(f"s_lshl_b32 s{sT}, s2, 3", f"s_add_u32 s{sT}, s{sT}, s3", f"s_lshl_b32 s{sT}, s{sT}, 8")
    srd(sX, SK, SK + 1, None, N * 1024)
    srd(sEA, 14, 15, WS_EA, NCH * CS * 32)
    if P["XPF"]:
        n = P["XPF"]
        e(f"s_and_b32 s{sBASE}, s{sM0}, 7", f"s_mul_i32 s{sBASE}, s{sBASE}, {1252*1024}", f"s_and_b32 s{sT2}, s2, 0xf8",
          f"s_add_u32 s{sT2}, s{sT2}, s3", f"s_mul_i32 s{sT2}, s{sT2}, {n*128}", f"s_add_u32 s{sBASE}, s{sBASE}, s{sT2}")
        e(f"v_min_u32 v{PFV}, {n-1}, v{LANE}", f"v_lshlrev_b32 v{PFV}, 7, v{PFV}")
    if P["XP2"]:
        n2 = P["XP2"]
        e(f"s_and_b32 s89, s{sM0}, 7", f"s_mul_i32 s89, s89, {1252*1024}", f"s_and_b32 s{sT2}, s2, 0xf8",
          f"s_add_u32 s{sT2}, s{sT2}, s3", f"s_mul_i32 s{sT2}, s{sT2}, {n2*128}", f"s_add_u32 s89, s89, s{sT2}", f"s_add_u32 s89, s89, {P['XPF']*128*256}")
        e(f"v_min_u32 v195, {n2-1}, v{LANE}", f"v_lshlrev_b32 v195, 7, v195")
    xpf = f"buffer_load_dword v{PFV}, v{PFV}, {sr(sX)}, s{sBASE} offen"
    PL = 206
    PL2 = 170
    poll1 = f"buffer_load_dwordx2 {vr(PL,2)}, v{T+2}, {sr(sTAB)}, s{sNR} offen sc1"

    def tagcheck(pl=PL):
        e(f"v_xor_b32 v{T+3}, s{sTAG2}, v{pl}", f"v_xor_b32 v{T+4}, s{sTAG}, v{pl+1}", f"v_and_or_b32 v{T+3}, v{T+3}, s{sT2}, v{T+4}")
        e(f"v_cmpx_ne_u32 vcc, 0, v{T+3}")

    def outsrd():
        e(f"s_lshl_b32 s{sT}, s{sNB}, 10", f"s_add_u32 s{sOUT}, s12, s{sT}", f"s_addc_u32 s{sOUT+1}, s13, 0",
          f"s_lshl_b32 s{sOUT+2}, s{sNCNT}, 10", f"s_mov_b32 s{sOUT+3}, 0x20000")

    def rwzero():
        for i in range(32):
            e(f"v_mov_b32 v{RW+i}, 0")

    def pollsetup():
        e(f"v_lshrrev_b32 v{T+1}, 1, v0", f"v_lshlrev_b32 v{T+2}, 11, v{T+1}", f"s_lshl_b32 s{sNR}, s{sB}, 3")
        e(f"v_mul_u32_u24 v{RG0}, {CS}, v{T+1}", f"s_mov_b32 s{sROFF}, 0", f"s_mov_b32 s{sCNT}, {SPIN}", f"s_mov_b32 s{sT2}, 0xffc00000")
        e(f"s_mul_i32 s{sEM}, s3, {CAPW*32}", f"s_add_u32 s{sEM}, s{sEM}, {EAST}", f"s_movk_i32 s{sK4}, 4096")

    def wofrag_write():
        for t in range(4):
            e(f"ds_write_b128 v{T}, {vr(144+4*t,4)} offset:{WO + 1024*t}")

    if not DH:
        if P["XPF"] and P["XPOS"] < 0:
            e(f"s_waitcnt vmcnt({-P['XPOS']-1})", xpf, "s_waitcnt vmcnt(1)", "s_barrier")
        else:
            e("s_waitcnt vmcnt(0)", "s_barrier")
        ts.stamp("drained")
        publish()
        if P["XPF"] and P["XPOS"] == 0:
            e(xpf)
        outsrd()
        frag_r(RW, T, T + 1, T + 2)
        if P["XPF"] and P["XPOS"] == 1:
            e(xpf)
        frag_o(128, 144, T, T + 1, SK + 8)
        rwzero()
        e(f"s_lshl_b32 s{sT}, s3, 12", f"v_add_u32 v{T}, s{sT}, v{X16}")
        extra(3)
        if P["XPF"] and P["XPOS"] == 3:
            e("s_waitcnt vmcnt(0)")
        if P["XPF"] and P["XPOS"] >= 2:
            e(xpf)
        pollsetup()
        e(f"s_waitcnt vmcnt({P['PW']})", "s_barrier")
        ts.stamp("frag")
        e(poll1)
        wofrag_write()
        e("s_waitcnt vmcnt(0)")
    else:
        outsrd()
        if P["FRP"] == 0:
            frag_r(RW, T, T + 1, T + 2)
            frag_o(128, 144, T, T + 1, SK + 8)
            rwzero()
        extra(3)
        e(f"s_lshl_b32 s{sT}, s3, 11", f"s_lshl_b32 s{sNR}, s2, 3", f"s_add_u32 s{sT}, s{sT}, s{sNR}", f"s_add_u32 s{sFL}, s{sT}, {WS_FL}")
        e(f"v_mov_b32 v{PL2}, s{sTAG2}", f"v_mov_b32 v{PL2+1}, s{sTAG}", f"v_mov_b32 v{T+3}, 0")
        pollsetup()
        e(f"s_lshl_b32 s{sT}, s3, 12", f"v_add_u32 v{T}, s{sT}, v{X16}")
        if P["PPOS"] == 0:
            ts.stamp("frag")
            e(poll1)
            e("s_waitcnt vmcnt(1)", "s_barrier")
        else:
            e("s_waitcnt vmcnt(0)", "s_barrier")
        ts.stamp("drained")
        n_after = 0
        if P["FL"]:
            e("s_mov_b64 exec, 1")
            e(f"buffer_store_dwordx2 {vr(PL2,2)}, v{T+3}, {sr(sTAB)}, s{sFL} offen sc1")
            e("s_mov_b64 exec, -1")
            n_after += 1
        if P["PPOS"] == 1:
            e(poll1)
            n_after = 0
        if P["XPF"] and P["XPOS"] == 0:
            e(xpf)
            n_after += 1
        if P["FRP"] == 0:
            wofrag_write()
        if P["FRP"] == 2:
            frag_r(RW, T, T + 1, T + 3)
            frag_o(XR, XR + 16, T, T + 1, SK + 8)
            rwzero()
        if P["PPOS"] == 2:
            e(poll1)
            n_after = 0
        e(f"s_lshr_b32 s{sFL}, s{sB}, 5", f"s_lshl_b32 s{sFL}, s{sFL}, 11", f"s_add_u32 s{sFL}, s{sFL}, {WS_FL}")
        e(f"v_lshrrev_b32 v{cFLG}, 1, v0", f"v_lshlrev_b32 v{cFLG}, 3, v{cFLG}")
        if P["PPOS"]:
            ts.stamp("frag")
        e(f"s_waitcnt vmcnt({n_after})")
    tagcheck()
    e("s_cbranch_execnz L_poll")
    e.label("L_polled")
    e("s_mov_b64 exec, -1")
    ts.stamp("tab")
    G1, G2, SKR, RNK, CA = TP + 8, TP + 12, TP + 20, TP, TP + 4
    MU = P["MU"]
    sVm = [sV, sV + 2, sV + 4, sA2]

    m0st = [None]

    def bea1(i):
        if m0st[0] != i // 4 or i == 6:
            e(f"s_add_u32 m0, s{sEM}, {4096*(i//4)}")
        m0st[0] = i // 4
        vq.op("ea", f"buffer_load_dwordx4 v{G2+i}, {sr(sEA)}, {'0' if i < 4 else 's%d' % sK4} offen offset:{1024*(i%4)} {ldpol} lds")

    def bea(p):
        if DH and P["FL"]:
            if p == P["FP"]:
                vq.op("fp", f"buffer_load_dwordx2 {vr(PL2,2)}, v{cFLG}, {sr(sTAB)}, s{sFL} offen sc1")
            if p == P["FQ"]:
                ts.stamp("fq0")
                vq.wait("fp")
                e(f"v_xor_b32 v{T+3}, s{sTAG2}, v{PL2}", f"v_xor_b32 v{T+4}, s{sTAG}, v{PL2+1}", f"v_or_b32 v{T+3}, v{T+3}, v{T+4}")
                e(f"v_cmp_ne_u32 vcc, 0, v{T+3}", "s_cbranch_vccnz L_fpoll")
                e.label("L_flagged")
                ts.stamp("fq1")
                e(f"s_cmp_gt_i32 s{sNW}, 192", "s_cbranch_scc1 L_r1e")
                e.label("L_r1eb")
                m0st[0] = None
        for i in range(6):
            if bstage[i] == p:
                bea1(i)
        if DH and P["XPF"] and P["XPOS"] == 5 and p == max(bstage, key=lambda q: ORDER.index(q)):
            e(xpf)
        if P["XP2"] and p == P["XQ"]:
            vq.op("xp2", f"buffer_load_dword v195, v195, {sr(sX)}, s89 offen")
    ORDER = [0, 1, 2, 6, 3, 4]
    if DH and P["FL"]:
        assert all(ORDER.index(q) >= ORDER.index(P["FQ"]) for q in bstage), "edge_attr loads before the flag check"
        assert ORDER.index(P["FP"]) <= ORDER.index(P["FQ"])

    def skld(i):
        e(f"v_mad_u32_u24 v{G1+i}, v{G1+i}, 12, v{cL12}")
        vq.op(f"sk{i}", f"buffer_load_dwordx3 {vr(SKR+4*i,3)}, v{G1+i}, {sr(sSK)}, 0 offen offset:{768*i} {ldpol}")

    cmps = [f"v_cmp_lt_i32 s[{SK+2*i}:{SK+2*i+1}], {2*i}, v{T+2}" for i in range(MU + 1)]
    e(f"v_bfe_u32 v{RLEN}, v{PL}, 11, 11", f"v_and_b32 v{RBASE}, v{RLEN}, v{cODD}", f"v_add_u32 v{T+2}, v{RLEN}, v{cODD}")
    fill = [f"v_and_b32 v{T+3}, 0x7ff, v{PL}"] + cmps + [f"v_add_u32 v{RG0}, v{RG0}, v{T+3}"]
    e(fill.pop(0))
    for mod in ("row_shr:1 row_mask:0xf", "row_shr:2 row_mask:0xf", "row_shr:4 row_mask:0xf", "row_shr:8 row_mask:0xf", "row_bcast:15 row_mask:0xa", "row_bcast:31 row_mask:0xc"):
        e(f"v_add_u32_dpp v{RBASE}, v{RBASE}, v{RBASE} {mod} bank_mask:0xf")
        e(*fill[:2]); fill = fill[2:]
    e(f"v_readlane_b32 s{sNW}, v{RBASE}, 63")
    e(f"v_mov_b32_dpp v{RBASE}, v{RBASE} quad_perm:[0,0,2,2] row_mask:0xf bank_mask:0xf")
    e(f"v_sub_u32 v{RG0}, v{RG0}, v{RBASE}")
    e(f"v_lshl_add_u32 v{T}, v{RBASE}, 2, v{cMAPW}")
    e(f"s_cmp_gt_u32 s{sNW}, {CAPW}", "s_cbranch_scc1 L_clip")
    e.label("L_mapw")
    for i in range(MU):
        e(f"s_mov_b64 exec, s[{SK+2*i}:{SK+2*i+1}]")
        e(f"ds_write_b32 v{T}, v{RG0} offset:{8*i}")
    e("s_mov_b64 exec, -1")
    e(f"s_cmp_lg_u64 s[{SK+2*MU}:{SK+2*MU+1}], 0", "s_cbranch_scc1 L_map2")
    for i in range(3):
        e(f"ds_read_b32 v{G1+i}, v{cMAP1} offset:{256*i}")
    for i in range(6):
        e(f"ds_read_b32 v{G2+i}, v{cMAP2} offset:{128*i}")
    e(f"s_cmp_gt_i32 s{sNW}, 192", "s_cbranch_scc1 L_r1")
    e.label("L_r1b")
    e("s_waitcnt lgkmcnt(6)")
    ts.stamp("map")
    for i in range(3):
        skld(i)
    e(f"v_mov_b32 v{T+3}, s{sNW}", "s_mov_b64 exec, 1", f"ds_max_i32 v{T+5}, v{T+3} offset:{TOT}", "s_mov_b64 exec, -1")
    e("s_waitcnt lgkmcnt(1)")
    for i in range(6):
        e(f"v_lshl_add_u32 v{G2+i}, v{G2+i}, 5, v{X16}")
    if P["SKBAR"]:
        e("s_barrier")
    ts.stamp("skiss")
    if DH and P["XPF"] and P["XPOS"] == 6:
        vq.op("xpf", xpf)
    bea(0)
    if DH and P["FRP"] == 1:
        e(f"s_cmp_lg_u32 s{sROFF}, 0", "s_cbranch_scc1 L_nofrag")
        frag_r(RW, T, T + 1, T + 2)
        frag_o(XR, XR + 16, T, T + 1, SK + 8)
        rwzero()
        e.label("L_nofrag")
    assert 5 not in bstage
    e(f"s_min_i32 s{sT}, s{sNW}, {CAPW}")
    for i in range(4):
        e(f"v_cmp_gt_i32 s[{sVm[i]}:{sVm[i]+1}], s{sT}, v{LANE}", f"s_sub_i32 s{sT}, s{sT}, 64")
    e(f"s_mov_b32 s{sT2}, 0x1fff80", f"s_mul_i32 s{sOFF}, s3, 5")
    assert P["SKBAR"]
    late_wf = DH and P["FRP"] in (1, 2)
    if not late_wf:
        for q in range(NK):
            e(f"ds_read_b128 {vr(WF[q],4)}, v{eWF} offset:{1024*q}")

    def count(i):
        key = SKR + 4 * i + 2
        e(f"v_lshrrev_b32 v{CA+i}, 21, v{key}", f"v_lshlrev_b32 v{CA+i}, 2, v{CA+i}")
        e(f"v_lshrrev_b32 v{T+3}, 26, v{key}", f"v_lshl_or_b32 v{T+3}, v{T+3}, 4, v{cDEG}")
        e(f"s_mov_b64 exec, s[{sVm[i]}:{sVm[i]+1}]")
        e(f"ds_add_rtn_u32 v{RNK+i}, v{CA+i}, v{ONE} offset:{CNT2}")
        e(f"ds_add_u32 v{T+3}, v{ONE} offset:{DEG}")
        e("s_mov_b64 exec, -1")

    def entry(i):
        key = SKR + 4 * i + 2
        if i == 3:
            e("s_mov_b32 exec_hi, 0")
        e(f"ds_write_b64 v{cSH}, {vr(SKR+4*i,2)} offset:{512*i}")
        if i == 3:
            e("s_mov_b32 exec_hi, -1")
        e(f"v_and_or_b32 v{key}, v{key}, s{sT2}, v{cR21}")
        if i:
            e(f"v_add_u32 v{key}, {64*i << 21}, v{key}")

    for i in range(3):
        vq.wait(f"sk{i}")
        if i == 0:
            ts.stamp("sk")
        count(i)
    e(f"s_cmp_gt_i32 s{sNW}, 192", "s_cbranch_scc1 L_r2")
    e.label("L_r2b")
    ts.stamp("atom")
    e(f"s_or_b32 s{sT}, s2, s3", "s_cbranch_scc0 L_tag")
    e.label("L_tagged")
    bea(1)
    for j in range(1, 5):
        e(f"s_add_u32 s{SK+j}, s{sOFF}, {j}")
    e("s_waitcnt lgkmcnt(0)", "s_barrier")
    ts.stamp("b1")
    CN, CAD = XR, XR + 8
    e(f"s_cmp_lg_u32 s{sROFF}, 0", "s_cbranch_scc1 L_rank2")
    if late_wf:
        e(f"s_lshl_b32 s{sT}, s3, 12", f"v_add_u32 v{T}, s{sT}, v{X16}")
        for t in range(4):
            e(f"ds_write_b128 v{T}, {vr(XR+16+4*t,4)} offset:{WO + 1024*t}")
    e(f"ds_read_b128 {vr(CAD,4)}, v{X16} offset:{DEG}")
    for j in range(5):
        e(f"ds_read_b32 v{CN+j}, v{cROW} offset:{CNT2 + 128*j}")
    e(f"ds_read_b32 v{T+6}, v{T+5} offset:{TOT}")
    if P["ENP"] == 0:
        for i in range(3):
            entry(i)
    e(f"s_waitcnt lgkmcnt({9 if P['ENP'] == 0 else 6})")
    e(f"v_add_u32 v{T+1}, v{CAD}, v{CAD+1}", f"v_add3_u32 v{T+1}, v{T+1}, v{CAD+2}, v{CAD+3}")
    e(f"v_lshl_or_b32 v{T+1}, v{T+1}, 6, v{cTIE}")
    for j in range(5):
        e(f"v_readlane_b32 s{SK+j}, v{T+1}, s{SK+j if j else sOFF}")
    for j in range(5):
        e(f"v_cmp_lt_u32 s[{SK+6+2*j}:{SK+7+2*j}], s{SK+j}, v{T+1}")
    for j in range(5):
        e(f"s_bcnt1_i32_b64 s{SK+j}, s[{SK+6+2*j}:{SK+7+2*j}]")
    e(f"s_waitcnt lgkmcnt({3 if P['ENP'] == 0 else 0})")
    for j in range(5):
        e(f"v_readlane_b32 s{sASG[j]}, v{RT}, s{SK+j}")
    e(f"v_readfirstlane_b32 s{sN}, v{T+6}")
    e.label("L_ranked")
    e("s_mov_b32 exec_hi, 0")
    for j in range(5):
        e(f"v_and_or_b32 v{CAD+j}, s{sASG[j]}, v{c380}, v{cBIN}")
        e(f"ds_add_rtn_u32 v{CN+j}, v{CAD+j}, v{CN+j} offset:{WB}")
    for j in range(5):
        e(f"v_or_b32 v{CAD+j}, s{sASG[j]}, v{cBIN}")
    e(f"s_lshl_b32 s{sT}, s3, 3", f"s_add_u32 s{sOFF}, s{sT}, 7")
    for j in range(5):
        if j in (0, 2):
            e(f"s_waitcnt lgkmcnt({3 if j == 0 else 2})")
        e(f"v_lshl_or_b32 v{CN+j}, v{CN+j}, 16, v{CAD+j}")
        e(f"ds_write_b32 v{cROW}, v{CN+j} offset:{CNT2 + 128*j}")
    e("s_mov_b32 exec_hi, -1")
    ts.stamp("rank")
    bea(2)
    if P["ENP"] == 1:
        for i in range(3):
            entry(i)
    e(f"s_waitcnt lgkmcnt({3 if P['ENP'] == 1 else 0})", "s_barrier")
    ts.stamp("b2")
    e(f"ds_read_b128 {vr(CN,4)}, v{X16} offset:{WB}")
    for i in range(3):
        e(f"ds_read_b32 v{CA+i}, v{CA+i} offset:{CNT2}")
    bea(6)
    e("s_waitcnt lgkmcnt(3)")
    e(f"v_add_u32 v{T+1}, v{CN}, v{CN+1}", f"v_add3_u32 v{T+1}, v{T+1}, v{CN+2}, v{CN+3}", f"v_mov_b32 v{T+2}, v{T+1}")
    e("s_waitcnt lgkmcnt(0)")

    def place(i):
        key = SKR + 4 * i + 2
        return [f"v_bfe_u32 v{T+7}, v{CA+i}, 12, 3", f"v_or_b32 v{key}, v{T+7}, v{key}", f"v_and_b32 v{G1+i}, 0x3ff, v{CA+i}",
                f"v_lshrrev_b32 v{CA+i}, 16, v{CA+i}", f"v_add_u32 v{CA+i}, v{CA+i}, v{RNK+i}"]

    fill = place(0) + place(1) + place(2)
    e(fill.pop(0))
    for mod in ("row_shr:1 row_mask:0xf", "row_shr:2 row_mask:0xf", "row_shr:4 row_mask:0xf", "row_shr:8 row_mask:0xf", "row_bcast:15 row_mask:0xa", "row_bcast:31 row_mask:0xc"):
        e(f"v_add_u32_dpp v{T+2}, v{T+2}, v{T+2} {mod} bank_mask:0xf")
        e(*fill[:2]); fill = fill[2:]
    e(f"v_sub_u32 v{T+1}, v{T+2}, v{T+1}")
    e(f"v_lshl_add_u32 v{CAD}, v{T+1}, 2, v{cLST}")
    for k in range(3):
        e(f"v_lshl_add_u32 v{CAD+1+k}, v{CN+k}, 2, v{CAD+k}")
    e(f"ds_write_b128 v{X16}, {vr(CAD,4)} offset:{START}")
    for i in range(3):
        e(f"ds_read_b32 v{G1+i}, v{G1+i} offset:{START}")
    e(*fill)
    e(f"v_readlane_b32 s{sNV}, v{T+2}, s{sOFF}", f"v_readlane_b32 s{sCNT}, v{T+1}, s{sT}", f"v_readlane_b32 s{sBASE}, v{CAD}, s{sT}")
    e(f"v_mov_b32 v{T+6}, {(0x3fff << 7) | 5}")
    e(f"s_sub_u32 s{sNV}, s{sNV}, s{sCNT}", f"s_lshl2_add_u32 s{sT2}, s{sNV}, s{sBASE}", f"v_add_u32 v{T+1}, s{sT2}, v{LAC}")
    e(f"ds_write_b32 v{T+1}, v{T+6}")
    assert D == 6
    sP0 = sT
    e(f"s_add_u32 s{sCNT}, s{sNV}, 15", f"s_lshr_b32 s{sCNT}, s{sCNT}, 4", f"s_sub_u32 s{sP0}, 0, s{sNV}", f"s_and_b32 s{sP0}, s{sP0}, 14",
      f"s_sub_u32 s{sCNT}, s{sCNT}, 1", f"s_cmp_gt_i32 s{sCNT}, 0", f"s_cselect_b32 s{sP0}, s{sP0}, 0", f"s_lshl_b32 s{sOFF}, s{sP0}, 2",
      f"s_sub_u32 s{sBASE}, s{sBASE}, s{sOFF}")

    def scatter(i):
        e(f"s_mov_b64 exec, s[{sVm[i]}:{sVm[i]+1}]")
        e(f"ds_write_b32 v{CA+i}, v{SKR+4*i+2}")

    e("s_waitcnt lgkmcnt(1)")
    for i in range(3):
        e(f"v_lshl_add_u32 v{CA+i}, v{CA+i}, 2, v{G1+i}")
    for i in range(3):
        scatter(i)
    e("s_mov_b64 exec, -1")
    e(f"s_cmp_gt_i32 s{sNW}, 192", "s_cbranch_scc1 L_r3")
    e.label("L_r3b")
    bea(3)
    ts.stamp("list")
    e(f"v_add_u32 v{LA}, s{sBASE}, v{LAC}", f"v_add_u32 v{LB}, s{sBASE}, v{LBC}",
      f"s_and_b32 s{sOFF}, s{sOFF}, 32", f"v_add_u32 v{T+4}, s{sOFF}, v{LA}", f"s_and_b32 s{SK+8}, s{sP0}, 6")
    e(f"s_mov_b32 s{sT2}, 0x00fffc38", f"s_mov_b32 s{sNR}, 0xffffff00", f"s_mov_b32 s{sBASE}, {SHST}")
    if P["PRIO"] == 1:
        e("s_cmp_lt_u32 s3, 4", "s_cbranch_scc1 L_np", "s_setprio 1")
        e.label("L_np")
    e("s_waitcnt lgkmcnt(0)", "s_barrier")
    ts.stamp("b4")
    if P["B4P"] == 0:
        bea(4)
    e(f"ds_read_b32 v{K}, v{T+4}", f"ds_read_b32 v{ENT+2}, v{LB}", f"ds_read_b32 v{KN}, v{LA} offset:{4*D}", f"ds_read_b32 v{NOD}, v{cNOD} offset:{CNT2}")
    if P["B4P"] == 1:
        bea(4)
    e(f"s_cmp_eq_u32 s{sNV}, 0", "s_cbranch_scc1 L_empty")

    def agaddr():
        e(f"v_lshlrev_b32 v{T+4}, 2, v{LANE}", f"s_lshl_b32 s{sOFF}, s3, 7")
        e(f"v_and_b32 v{NOD}, 0x7380, v{NOD}", f"v_xor_b32 v{NOD}, s{sOFF}, v{NOD}")
        e(f"v_alignbit_b32 v{NOD}, v{NOD}, v{NOD}, 12")
        m = [f"s[{q}:{q+1}]" for q in sVm] + ["vcc"]
        for j in range(5):
            e(f"v_cmp_eq_u32 {m[j]}, {j}, v{NOD}")
        for j in range(5):
            e(f"s_ff1_i32_b64 s{sNODE+j}, {m[j]}", f"s_mul_i32 s{sNODE+j}, s{sNODE+j}, 1152", f"v_add_u32 v{eAG[j]}, s{sNODE+j}, v{T+4}")

    AL = P["ALIGN"]

    def al():
        if AL:
            e(".p2align 3")

    def ea_reads():
        e(f"v_lshrrev_b32 v{T}, 21, v{ENT+2}", f"v_lshl_add_u32 v{T+3}, v{T}, 3, s{sBASE}", f"v_lshl_add_u32 v{T}, v{T}, 5, v{EAC}")
        e(f"ds_read_b64 {vr(ENT,2)}, v{T+3}")
        e(f"ds_read_b128 {vr(EA0,4)}, v{T}")

    def wfr(*qs):
        for q in qs:
            e(f"ds_read_b128 {vr(WF[q],4)}, v{eWF} offset:{1024*q}")

    def zq(q):
        e(f"ds_read_b128 {vr(RW+4*q,4)}, v{ZAD}", f"ds_read_b128 {vr(RW+16+4*q,4)}, v{ZAD}")

    def pq(j):
        p = PQ + 2 * (j % 2)
        if P["PQP"]:
            pr = [f"v_perm_b32 v{p}, v{T+1}, v{T+1}, v{(MP, 254)[j%2]}", f"v_perm_b32 v{p+1}, v{T+1}, v{T+1}, v{(MQ, 255)[j%2]}"]
            return pr if j % 2 else [f"v_cvt_pk_bf16_f32 v{T+1}, v{AGN+j}, v{AGN+j+1}"] + pr
        return [f"v_cvt_pk_bf16_f32 v{T+1+j%2}, v{AGN+j}, v{AGN+j}", f"v_and_b32 v{p}, v{MP}, v{T+1+j%2}", f"v_and_b32 v{p+1}, v{MQ}, v{T+1+j%2}"]

    def head(kind):
        if P["PRIO"] in (4, 5) and kind != "first":
            e("s_setprio 3")
        e(f"s_waitcnt lgkmcnt({0 if kind == 'first' else 2})"); al()
        for q in range(4):
            e(f"v_mfma_f32_4x4x4_16b_bf16 {vr(AGN+4*q,4)}, {vr(ENT,2)}, {vr(CGF,2)}, 0 cbsz:4 abid:{2*q}")
        e(f"v_lshlrev_b32 v{K}, 3, v{KN}", f"v_and_b32 v{K}, s{sT2}, v{K}")
        rd = []
        if kind != "last":
            e(f"v_add_u32 v{LA}, 64, v{LA}", f"v_add_u32 v{LB}, 64, v{LB}")
            rd = [f"ds_read_b32 v{KN}, v{LA} offset:{4*D}", f"ds_read_b32 v{ENT+2}, v{LB}"]
        if kind != "first":
            e("s_waitcnt lgkmcnt(0)"); al()
        groups = [rd + (pq(0) if kind != "first" else []), []]
        for h in range(2):
            e(f"v_smfmac_f32_32x32x32_bf16 {vr(RW+16*h,16)}, {vr(EA0,4)}, {vr(WRF+8*h,8)}, v{SIX}")
            e(*groups[h])

    def pks(j):
        t = TP + 8 * (j % 2)
        for h in range(2):
            r = RW + 16 * h + j
            rp = r & ~1
            sel = "op_sel:[0,1,0] op_sel_hi:[1,1,1]" if r & 1 else "op_sel_hi:[1,0,1]"
            for q in range(2):
                a = ACC + 4 * h + 2 * q
                e(f"v_pk_fma_f32 {vr(a,2)}, {vr(t+4*h+2*q,2)}, {vr(rp,2)}, {vr(a,2)} {sel}")

    def mf(j, h):
        t, p, s = TP + 8 * (j % 2), PQ + 2 * (j % 2), XR + 4 * (j % R)
        e(f"v_mfma_f32_16x16x16_bf16 {vr(t+4*h,4)}, {vr(p,2)}, {vr(s+2*h,2)}, 0")

    def rl(q, lane):
        e(f"v_readlane_b32 s{SK + q % 8}, v{K}, {lane}")

    def sand(q):
        e(f"s_and_b32 s{sOFF}, s{SK + q % 8}, s{sNR}")

    def xl(q):
        e(f"buffer_load_dwordx4 {vr(XR + 4 * (q % R),4)}, v{X16}, {sr(sX)}, s{sOFF} offen {str(P['XPOL']).replace('+', ' ')}".rstrip())

    def body(last):
        for j in range(0, 16, 2):
            ld = not last or j + D < 16
            if not last or j == 0:
                e.label(f"L_{'f' if last else 'j'}{j}")
            nx = pq(j + 1)
            if P["PRIO"] == 4 and j % 4 == 0 and j:
                e(f"s_setprio {3 - j // 4}")
            if P["PRIO"] == 5:
                e(f"s_setprio {3 - (j // 2) % 4}")
            e(f"s_waitcnt vmcnt({D-1 if ld else 15-j})"); al()
            mf(j, 0)
            if ld:
                rl(j + D, j)
            e(*nx[:1]); mf(j, 1); e(*nx[1:])
            if ld and P["SCH"] == 2:
                sand(j + D); e(f"s_waitcnt vmcnt({D-2})"); xl(j + D)
            elif ld:
                sand(j + D); xl(j + D); e(f"s_waitcnt vmcnt({D-1})")
            else:
                e(f"s_waitcnt vmcnt({14-j})"); al()
            nx = pq(j + 2) if j < 14 else []
            mf(j + 1, 0)
            if ld:
                rl(j + 1 + D, j + 1)
            e(*nx[:1]); mf(j + 1, 1); e(*nx[1:])
            if last and j == 2 and P["AGP"] == 2:
                agaddr(); al()
            if j == 2 and not last:
                e("s_waitcnt lgkmcnt(0)")
                ea_reads(); al()
            if ld:
                sand(j + 1 + D)
            e(f"s_set_gpr_idx_on s{SK + j % 8}, gpr_idx(SRC2,DST)")
            xl(j + 1 + D) if ld else al()
            pks(j)
            e(f"s_set_gpr_idx_idx s{SK + (j + 1) % 8}")
            if j == 14 and not last:
                e(f"s_sub_u32 s{sCNT}, s{sCNT}, 1")
            al()
            pks(j + 1)
            if j % 4 == 2 and not last:
                zq(j // 4)
            if last and j >= 6 and P["WFT"]:
                wfr(*((14, 15) if j == 6 else (j - 2, j - 1)))
            e("s_set_gpr_idx_off")

    e("s_waitcnt lgkmcnt(3)")
    e(f"v_lshlrev_b32 v{K}, 3, v{K}", f"v_and_b32 v{K}, s{sT2}, v{K}")
    if late_wf:
        wfr(*range(NK))
    NB5 = P["NB5"]

    def pair(q):
        rl(q, q); rl(q + 1, q + 1)
        sand(q); xl(q); sand(q + 1); xl(q + 1)

    for q in (2, 4, 6):
        e(f"s_cmp_eq_u32 s{SK+8}, {q}", f"s_cbranch_scc1 L_p{q}")
    for q0 in (0, 2, 4, 6):
        e.label(f"L_p{q0}")
        for i in range(NB5):
            pair(q0 + 2 * i)
        if P["AGP"] == 0:
            e("s_waitcnt lgkmcnt(0)")
            agaddr()
        e(f"s_waitcnt vmcnt({2*NB5 + (1 if DH and P['XPF'] and P['XPOS'] == 5 else 0) + (1 if P['XP2'] and ORDER.index(P['XQ']) >= max(ORDER.index(q) for q in bstage) else 0)}) lgkmcnt(0)", "s_barrier")
        ea_reads()
        for i in range(NB5, 3):
            pair(q0 + 2 * i)
        if q0 < 6:
            e("s_branch L_pd")
    e.label("L_pd")
    if P["AGP"] == 1:
        agaddr()
    ts.stamp("b5")
    head("first")
    e(f"s_set_gpr_idx_on s{sP0}, gpr_idx(SRC0,SRC1)")
    e.idx_range, keep = {("v", i) for i in range(AGN, AGN + 16)}, e.idx_range
    e(pq(0)[0])
    e.idx_range = keep
    e("s_set_gpr_idx_off")
    e(*pq(0)[1:])
    e("s_waitcnt lgkmcnt(0)")
    ea_reads()
    e(f"s_cmp_eq_u32 s{sCNT}, 0", "s_cbranch_scc1 L_f0")
    for j in range(0, 14, 2):
        e(f"s_cmp_eq_u32 s{sP0}, {j}", f"s_cbranch_scc1 L_j{j}")
        if j % 4 == 2:
            zq(j // 4)
    e("s_branch L_j14")
    if P["LAL"] < 0:
        e(".p2align 3")
    else:
        e(".p2align 6")
        for _ in range(P["LAL"] // 4):
            e.raw("    s_nop 0")
    e.label("L_loop")
    head("mid")
    body(False)
    e(f"s_cmp_lg_u32 s{sCNT}, 0", "s_cbranch_scc1 L_loop")
    head("last")
    body(True)
    e.label("L_swept")
    ts.stamp("swept")
    e(f"s_add_u32 s{sROFF}, s{sROFF}, {CAPW}", f"s_cmp_lt_u32 s{sROFF}, s{sN}", "s_cbranch_scc1 L_again")
    AF, DD, OB, OT = ACC, 160, 64, 80
    if P["EPRIO"] >= 0:
        e(f"s_setprio {P['EPRIO']}")
    for s in range(5):
        for w in range(4):
            e(f"v_cvt_pk_bf16_f32 v{RW+4*s+w}, v{ACC+8*s+w}, v{ACC+8*s+4+w}")
        for w in (0, 2):
            e(f"ds_write2_b32 v{eAG[s]}, v{RW+4*s+w}, v{RW+4*s+w+1} offset0:{72*w} offset1:{72*w+72}")
    NPRE = 16
    if not P["WFT"]:
        wfr(*range(NK, 16))
    e(f"s_waitcnt lgkmcnt({0 if P['WFT'] else NPRE - NK})", "s_barrier")
    ts.stamp("agb")
    lq = [f"w{q}" for q in range(NPRE)]

    def lop(tag, text):
        e(text); lq.append(tag)

    def lwait(*tags):
        n = len(lq) - 1 - max(lq.index(t) for t in tags)
        e(f"s_waitcnt lgkmcnt({min(n, 15)})")

    def afrag(k, ss=range(4)):
        for s in ss:
            lop(f"a{k}{s}", f"ds_read_b128 {vr(AF+16*k+4*s,4)}, v{eFR} offset:{AGL + 4608*k + 64*s}")

    def post(k, pol=P['OUTPOL']):
        d, o = DD + 16 * (k % 2), OB + 8 * (k % 2)
        x = []
        for r in range(2):
            for c in range(2):
                x.append(f"v_cvt_pk_bf16_f32 v{o+4*r+c}, v{d+8*c+r}, v{d+8*c+4+r}")
                x.append(f"v_cvt_pk_bf16_f32 v{OT+2*r+c}, v{d+8*c+r}, v{d+8*c+4+r}")
                x.append(f"v_cvt_pk_bf16_f32 v{o+4*r+2+c}, v{d+8*c+r+2}, v{d+8*c+4+r+2}")
            for c in range(2):
                x.append(f"v_mov_b32_dpp v{o+4*r+c}, v{o+4*r+2+c} row_ror:8 row_mask:0xf bank_mask:0xc")
            for c in range(2):
                x.append(f"v_mov_b32_dpp v{o+4*r+2+c}, v{OT+2*r+c} row_ror:8 row_mask:0xf bank_mask:0x3")
            x.append(f"buffer_store_dwordx4 {vr(o+4*r,4)}, v{eST}, {sr(sOUT)}, s{sEO} offen offset:{256*r} {pol}")
        x.append(f"s_add_u32 s{sEO}, s{sEO}, 4096")
        return x

    def tile(k, pend):
        d = DD + 16 * (k % 2)
        for s in range(4):
            if k == 0:
                lwait(f"a0{s}", f"w{4*s+3}")
            elif s == 0:
                lwait(f"a{k}3")
            for t in range(4):
                c = "0" if s == 0 else vr(d + 4 * t, 4)
                e(f"v_mfma_f32_16x16x32_bf16 {vr(d+4*t,4)}, {vr(AF+16*k+4*s,4)}, {vr(WF[4*s+t],4)}, {c}")
                if 4 * s + t >= 4:
                    e(*pend[:2]); pend = pend[2:]
            if k == 0 and s == 0:
                afrag(1)
            if k == 0 and s == 1:
                afrag(2)
        e(*pend)

    for s in range(4):
        afrag(0, [s])
        for q in range(max(NPRE, 4 * s), 4 * s + 4):
            lop(f"w{q}", f"ds_read_b128 {vr(WF[q],4)}, v{eWF} offset:{1024*q}")
    tile(0, [])
    tile(1, post(0))
    e("s_cmp_ge_u32 s3, 4", "s_cbranch_scc1 L_two")
    tile(2, post(1))
    e(*post(2, P['LASTPOL']))
    e.label("L_stored")
    ts.stamp("stored")
    if P["DIAGW"] and P["DIAGAT"] == "fin":
        e("s_waitcnt vmcnt(0)")
        ts.stamp("fin")
    if P["DIAGW"]:
        e(f"s_add_u32 s6, s{sTSP+1}, {P['DIAGW']}", "s_min_u32 s6, s6, 30000")
        e.label("L_diag")
        e("s_memrealtime s[4:5]", "s_waitcnt lgkmcnt(0)", f"s_sub_u32 s4, s4, s{sTSP}", "s_cmp_lt_u32 s4, s6", "s_cbranch_scc1 L_diag")
    if P["TS"]:
        e("s_waitcnt vmcnt(0)")
        ts.stamp("end")
        e(f"s_lshl_b32 s{sT}, s2, 3", f"s_add_u32 s{sT}, s{sT}, s3", f"s_lshl_b32 s{sT}, s{sT}, 8", f"s_add_u32 s{sT}, s{sT}, {WS_TS}")
        e(f"v_lshl_add_u32 v{T}, v{LANE}, 2, s{sT}", f"global_store_dword v{T}, v{TSV}, s[14:15]")
        if P["DBG"]:
            e(f"s_cmp_lg_u32 s2, {P['DBG']}", "s_cbranch_scc1 L_done", "s_cmp_lg_u32 s3, 0", "s_cbranch_scc1 L_done")
            e("s_load_dwordx2 s[4:5], s[0:1], 72", f"v_readlane_b32 s{sT}, v{TSV}, 0", f"v_lshlrev_b32 v{T}, 2, v{LANE}")
            e(f"v_subrev_u32 v{TSV}, s{sT}, v{TSV}", "s_waitcnt lgkmcnt(0)", f"global_store_dword v{T}, v{TSV}, s[4:5]")
    e.label("L_done")
    e("s_endpgm")
    e.label("L_again")
    e("s_waitcnt vmcnt(0) lgkmcnt(0)", "s_barrier")
    init_round(False)
    for i in range(32):
        e(f"v_mov_b32 v{RW+i}, 0")
    e(f"v_add_u32 v{RLEN}, v{RLEN}, v{RBASE}", f"v_subrev_u32 v{RLEN}, {CAPW}, v{RLEN}", f"v_max_i32 v{RLEN}, 0, v{RLEN}")
    e(f"v_subrev_u32 v{RBASE}, {CAPW}, v{RBASE}", f"v_max_i32 v{RBASE}, 0, v{RBASE}", f"v_sub_u32 v{RLEN}, v{RLEN}, v{RBASE}")
    e(f"v_add_u32 v{RG0}, {CAPW}, v{RG0}", f"s_sub_i32 s{sNW}, s{sNW}, {CAPW}", f"v_lshl_add_u32 v{T}, v{RBASE}, 2, v{cMAPW}")
    e("s_waitcnt lgkmcnt(0)", "s_barrier")
    e.label("L_clip")
    e(f"v_add_u32 v{T+2}, v{RBASE}, v{RLEN}", f"v_min_i32 v{T+2}, {CAPW}, v{T+2}", f"v_sub_u32 v{T+2}, v{T+2}, v{RBASE}", f"v_add_u32 v{T+2}, v{T+2}, v{cODD}")
    e.label("L_masks")
    e(*cmps)
    e("s_nop 0", "s_branch L_mapw")
    e.label("L_map2")
    e(f"v_add_u32 v{T}, {8*MU}, v{T}", f"v_subrev_u32 v{T+2}, {2*MU}, v{T+2}")
    e("s_branch L_masks")
    e.label("L_r1")
    e(f"ds_read_b32 v{G1+3}, v{cMAP1} offset:768", f"ds_read_b32 v{G2+6}, v{cMAP2} offset:768")
    e("s_waitcnt lgkmcnt(0)")
    skld(3)
    for i in (6,):
        e(f"v_lshl_add_u32 v{G2+i}, v{G2+i}, 5, v{X16}")
        if not (DH and P["FL"]):
            bea1(i)
    e("s_branch L_r1b")
    if DH and P["FL"]:
        e.label("L_r1e")
        bea1(6)
        e("s_branch L_r1eb")
        e.label("L_fpoll")
        e(f"s_mov_b32 s{SK+13}, {SPIN}")
        e.label("L_fpoll2")
        e(f"buffer_load_dwordx2 {vr(PL2,2)}, v{cFLG}, {sr(sTAB)}, s{sFL} offen sc1", f"s_sub_u32 s{SK+13}, s{SK+13}, 1", "s_cbranch_scc1 L_done", "s_waitcnt vmcnt(0)")
        e(f"v_xor_b32 v{T+3}, s{sTAG2}, v{PL2}", f"v_xor_b32 v{T+4}, s{sTAG}, v{PL2+1}", f"v_or_b32 v{T+3}, v{T+3}, v{T+4}")
        e(f"v_cmp_ne_u32 vcc, 0, v{T+3}", "s_cbranch_vccnz L_fpoll2", "s_branch L_flagged")
    e.label("L_r2")
    count(3)
    entry(3)
    e("s_branch L_r2b")
    e.label("L_r3")
    e(f"ds_read_b32 v{CA+3}, v{CA+3} offset:{CNT2}", "s_waitcnt lgkmcnt(0)")
    e(*place(3))
    e(f"ds_read_b32 v{G1+3}, v{G1+3} offset:{START}", "s_waitcnt lgkmcnt(0)")
    e(f"v_lshl_add_u32 v{CA+3}, v{CA+3}, 2, v{G1+3}")
    scatter(3)
    e("s_mov_b64 exec, -1", "s_branch L_r3b")
    e.label("L_tag")
    e(f"v_mov_b32 v{T+3}, s{sTAG}", f"s_mov_b32 s{sT}, {WS_W}")
    e(f"buffer_store_dword v{T+3}, v{cMAP1}, {sr(sTAB)}, s{sT} offen sc1")
    e("s_branch L_tagged")
    e.label("L_empty")
    e("s_waitcnt vmcnt(0) lgkmcnt(0)", "s_barrier")
    agaddr()
    if late_wf:
        wfr(*range(NK))
    if P["WFT"]:
        wfr(*range(NK, 16))
    e("s_branch L_swept")
    e.label("L_two", pad=8)
    e(*post(1, P['LASTPOL']))
    e("s_branch L_stored")
    e.label("L_poll")
    e(poll1, f"s_sub_u32 s{sCNT}, s{sCNT}, 1", "s_cbranch_scc1 L_done", "s_waitcnt vmcnt(0)")
    tagcheck()
    e("s_cbranch_execnz L_poll", "s_branch L_polled")
    e.label("L_rank2")
    for j in range(5):
        e(f"ds_read_b32 v{CN+j}, v{cROW} offset:{CNT2 + 128*j}")
    if P["ENP"] == 0:
        for i in range(3):
            entry(i)
    e("s_waitcnt lgkmcnt(0)")
    e.label("L_end")
    e("s_branch L_ranked")
    return e.text(), LDS, 256, 102


HEADER = """; Kernarg layout for this problem (88 bytes, ptrs only, base s[0:1]):
"""


def generate(**kw):
    P = dict(DEF)
    P.update(kw)
    k, lds, v, s = gen(P)
    n = NAME + "_kernel"
    out = HEADER
    out += f"; @launch grid=(256,1,1) block=(512,1,1) lds={lds}\n"
    out += '.amdgcn_target "amdgcn-amd-amdhsa--gfx950"\n.text\n'
    out += f".globl {n}\n.p2align 8\n.type {n},@function\n{n}:\n{k}"
    out += '.section .rodata,"a"\n'
    out += (f".p2align 6\n.amdhsa_kernel {n}\n  .amdhsa_next_free_vgpr {v}\n  .amdhsa_next_free_sgpr {s}\n"
            f"  .amdhsa_accum_offset {(v+3)//4*4}\n  .amdhsa_group_segment_fixed_size 0\n  .amdhsa_kernarg_size 88\n"
            f"  .amdhsa_user_sgpr_count 2\n  .amdhsa_user_sgpr_kernarg_segment_ptr 1\n  .amdhsa_system_sgpr_workgroup_id_x 1\n"
            f"  .amdhsa_float_denorm_mode_32 3\n.end_amdhsa_kernel\n")
    return out


if __name__ == "__main__":
    kw = {}
    for a in sys.argv[1:]:
        k, v = a.split("=", 1)
        kw[k] = int(v) if v.lstrip("-").isdigit() else v
    sys.stdout.write(generate(**kw))
```

```python
import sys, os
sys.path.insert(0, os.path.dirname(os.path.abspath(__file__)))
from emit import Emitter

NAME = "gather_scatter__tensor_product_equiv_mace__graph"
N, E = 10000, 320000
CH, NCH, CS = 1250, 256, 1280
WS_TAB, WS_W, WS_SK, WS_EA, WS_TS = 0, 0x80000, 0x100000, 0x700000, 0x2000000
WS_T2 = 0xa0000
CAPW, GAP = 224, 16
CAP = 8 * CAPW
SPIN = 200000

DEF = dict(SEQ=0, HPW=0, HINT=1, HS=0, HP=3, SKPOL="sc1", TPOS=1, TPUB=0, SKW=1, FRP=0, FOP=0, B4P=1, XPOL="", LAL=-1, XPOS=0, PQP=1, NB5=1, AGP=2, ENP=0, WFT=1, WFK=6, LASTPOL='sc1', EPRIO=0, BIAS=30, SCH=2, ALIGN=0, PRIO=1, DIAGW=0, DIAGK=0, DIAGAT='tab', D=6, TS=0, DBG=0, APOL="nt", AEA="00011", BEA="778812", SKBAR=1, ABAR=2, XPF=18, CPF=2, MU=7, OUTPOL="sc1", LDPOL="sc1", WST=3, WOST=3, ACCZ=0, CPOS=0, WGN=0)

PART39 = [[3, 11, 21, 31, 36], [5, 8, 20, 27, 38], [0, 6, 7, 13, 39], [9, 14, 18, 25, 34], [10, 16, 19, 24, 32], [4, 12, 26, 29, 33], [1, 17, 23, 28, 37], [2, 15, 22, 30, 35]]
PART40 = [[1, 10, 15, 30, 39], [2, 9, 21, 28, 37], [4, 14, 22, 27, 31], [6, 12, 18, 24, 35], [3, 8, 16, 29, 38], [5, 13, 17, 26, 34], [0, 20, 23, 32, 36], [7, 11, 19, 25, 33]]
PARTS = {0: (PART39, PART40)}
PARTS[12] = ([[12, 16, 24, 26, 30], [8, 14, 15, 31, 36], [2, 10, 23, 34, 37], [5, 17, 18, 22, 38], [0, 1, 7, 19, 39], [3, 11, 20, 29, 35], [6, 9, 25, 27, 32], [4, 13, 21, 28, 33]],
    [[9, 12, 19, 28, 32], [3, 10, 22, 29, 37], [7, 8, 23, 26, 36], [0, 18, 20, 34, 38], [5, 6, 14, 21, 39], [4, 11, 16, 24, 35], [1, 15, 25, 27, 31], [2, 13, 17, 30, 33]])
PARTS[20] = ([[13, 17, 24, 26, 31], [4, 16, 25, 29, 36], [5, 19, 23, 28, 35], [1, 6, 8, 10, 39], [7, 9, 20, 27, 32], [3, 12, 14, 33, 34], [2, 15, 18, 22, 37], [0, 11, 21, 30, 38]],
    [[11, 12, 17, 20, 38], [3, 16, 26, 28, 34], [8, 10, 19, 29, 36], [7, 14, 25, 27, 31], [6, 13, 15, 24, 30], [0, 9, 22, 23, 39], [2, 4, 21, 32, 35], [1, 5, 18, 33, 37]])
PARTS[30] = ([[12, 16, 25, 29, 32], [0, 5, 9, 20, 39], [1, 18, 27, 34, 37], [7, 19, 22, 30, 35], [2, 6, 24, 26, 36], [4, 11, 13, 31, 33], [10, 15, 17, 21, 28], [3, 8, 14, 23, 38]],
    [[6, 9, 26, 28, 37], [1, 11, 24, 35, 38], [5, 17, 23, 31, 33], [8, 12, 21, 29, 36], [2, 4, 15, 22, 39], [7, 10, 14, 18, 34], [0, 16, 20, 30, 32], [3, 13, 19, 25, 27]])
PARTS[40] = ([[7, 13, 28, 29, 37], [10, 17, 22, 30, 36], [1, 4, 6, 23, 39], [9, 19, 26, 31, 33], [5, 12, 15, 18, 35], [2, 11, 16, 27, 34], [0, 8, 24, 25, 38], [3, 14, 20, 21, 32]],
    [[8, 17, 25, 31, 32], [3, 19, 22, 28, 38], [6, 15, 18, 33, 37], [2, 14, 24, 29, 39], [0, 12, 21, 27, 34], [1, 9, 13, 26, 36], [5, 7, 10, 23, 35], [4, 11, 16, 20, 30]])
PARTS[50] = ([[2, 19, 28, 35, 37], [0, 6, 11, 24, 39], [15, 17, 27, 29, 34], [1, 20, 30, 32, 38], [4, 7, 18, 23, 33], [9, 10, 12, 21, 31], [5, 13, 16, 25, 26], [3, 8, 14, 22, 36]],
    [[7, 15, 27, 30, 36], [8, 18, 19, 28, 38], [4, 14, 31, 33, 35], [6, 13, 20, 29, 39], [2, 3, 22, 23, 34], [0, 11, 12, 26, 37], [1, 9, 17, 24, 32], [5, 10, 16, 21, 25]])
PARTS[-10] = ([[5, 13, 17, 28, 34], [7, 12, 16, 30, 32], [1, 9, 25, 26, 38], [11, 14, 18, 22, 33], [0, 2, 10, 20, 39], [3, 6, 23, 35, 37], [15, 19, 21, 24, 29], [4, 8, 27, 31, 36]],
    [[0, 13, 22, 31, 37], [3, 8, 20, 28, 35], [4, 12, 16, 27, 34], [9, 11, 14, 18, 36], [5, 7, 19, 23, 39], [2, 15, 26, 30, 32], [6, 10, 17, 24, 38], [1, 21, 25, 29, 33]])
PARTS[-20] = ([[7, 13, 19, 20, 34], [6, 10, 23, 28, 30], [2, 5, 27, 29, 36], [0, 15, 22, 26, 38], [4, 11, 25, 31, 37], [1, 3, 9, 12, 39], [14, 18, 21, 24, 33], [8, 16, 17, 32, 35]],
    [[5, 9, 16, 20, 36], [8, 10, 15, 21, 33], [3, 7, 22, 25, 34], [4, 14, 18, 26, 28], [6, 12, 17, 29, 37], [0, 11, 23, 35, 39], [2, 19, 27, 30, 32], [1, 13, 24, 31, 38]])


def vr(a, n):
    return f"v[{a}:{a+n-1}]" if n > 1 else f"v{a}"


def sr(a, n=4):
    return f"s[{a}:{a+n-1}]"


def scan_dpp(e, v, full):
    for k in (1, 2, 4, 8):
        e(f"v_add_u32_dpp v{v}, v{v}, v{v} row_shr:{k} row_mask:0xf bank_mask:0xf")
    e(f"v_add_u32_dpp v{v}, v{v}, v{v} row_bcast:15 row_mask:0xa bank_mask:0xf")
    if full:
        e(f"v_add_u32_dpp v{v}, v{v}, v{v} row_bcast:31 row_mask:0xc bank_mask:0xf")


class TS:
    last = None

    def __init__(self, e, on, pair, vreg):
        self.e, self.on, self.pair, self.v, self.names = e, on, pair, vreg, []
        TS.last = self

    diag = None

    def stamp(self, name):
        if self.diag and self.diag[0] == name:
            self.e("s_memrealtime s[4:5]", "s_waitcnt lgkmcnt(0)", f"s_sub_u32 s4, s4, s{self.pair}", f"s_mul_i32 s{self.pair+1}, s4, {self.diag[1]}")
        if self.on and (self.on == 1 or name in str(self.on).split(",") or name in ("start", "end")):
            e, p = self.e, self.pair
            e(f"s_memrealtime s[{p}:{p+1}]", "s_waitcnt lgkmcnt(0)", f"v_writelane_b32 v{self.v}, s{p}, {len(self.names)}")
            self.names.append(name)


class VQ:
    def __init__(self, e):
        self.e, self.q = e, []

    def op(self, tag, text):
        self.e(text)
        self.q.append(tag)

    def n(self, tag):
        idx = max(i for i, t in enumerate(self.q) if t == tag)
        return len(self.q) - 1 - idx

    def wait(self, tag, extra=""):
        self.e(f"s_waitcnt vmcnt({self.n(tag)}) {extra}".strip())


def gen(P):
    e = Emitter()
    vq = VQ(e)
    D = P["D"]
    R = 8
    MAP, CNT2, WB, DEG, TOT, NODEOF, START, WR, WO = 0, 8192, 13312, 14336, 15360, 15616, 16384, 17408, 46080
    LIST = WO + 32768
    SHST = LIST + (CAP + 8 * GAP + 128) * 4
    EAST = SHST + CAP * 8
    assert SHST + CAP * 8 <= EAST
    ZERO = EAST + CAP * 32
    LDS = ZERO + 64
    AGL = 0
    ACNT, ASTART, AINV, ASKS = 23552, 24576, 25600, LIST
    assert AINV + 5120 <= WO and ASKS + CS * 16 <= EAST and LDS <= 163840
    LANE, X16, RLEN, RBASE, RG0, ONE, PFV = 1, 2, 3, 4, 5, 6, 7
    T = 8
    ACC, RW, XR, TP, AGN, PQ, EA0, EA1, WRF, CGF, ENT = 16, 64, 96, 128, 144, 160, 164, 168, 172, 188, 192
    MP, MQ = CGF + 2, CGF + 3
    SIX, ZAD = EA1, EA1 + 1
    eAG, eFR, eST, eWF, NOD = [208, 209, 210, 211, 212], 213, 214, 215, 205
    NK = P["WFK"]
    assert NK == 6
    WF = [216 + 4 * q for q in range(NK)] + [XR + 4 * q for q in range(8)] + [AGN, AGN + 4]
    K, KN, LA, LB, EAC, LAC, LBC, RT, TSV = 196, 197, 198, 199, 200, 201, 202, 203, 204
    cODD, cMAPW, cMAP1, cMAP2, cPOL, cDEG, cSH, cR21, cROW, cTIE, cBIN, cNOD, cLST, c380 = range(240, 254)
    e.idx_range = {("v", i) for i in range(ACC, ACC + 48)}
    sX, sTAB, sSK, sEA, sA0, sA1, sOUT = 16, 20, 24, 28, 32, 36, 40
    sB, sNB, sNCNT, sN, sROFF, sNR, sNV, sBASE, sEM, sCNT, sT, sT2 = 44, 45, 46, 47, 48, 49, 50, 51, 52, 53, 54, 55
    sNODE = 56
    sOFF = 61
    sTAG, sTAG2 = 62, 63
    SK = 64
    sV = 80
    sM0, sEO = 86, 87
    sASG = [90, 91, 92, 93, 94]
    sNW, sK4 = 95, 98
    sA2, sTSP = 96, 100
    sTG7, s7F = 88, 89
    ts = TS(e, P["TS"], sTSP, TSV)
    if P["DIAGW"]:
        ts.diag = (P["DIAGAT"], P["DIAGK"])
    apol, ldpol = P["APOL"], P["LDPOL"]
    astage = [int(c) for c in str(P["AEA"]).zfill(5)]
    assert max(astage) <= 3
    bstage = [int(c) for c in str(P["BEA"]).zfill(6)]

    def srd(s, lo, hi, off, size):
        if off is None:
            e(f"s_mov_b32 s{s}, s{lo}", f"s_mov_b32 s{s+1}, s{hi}")
        else:
            e(f"s_add_u32 s{s}, s{lo}, {off}", f"s_addc_u32 s{s+1}, s{hi}, 0")
        e(f"s_mov_b32 s{s+2}, {size}", f"s_mov_b32 s{s+3}, 0x20000")

    def init_round(first):
        e(f"v_lshlrev_b32 v{T+3}, 2, v0", f"v_mov_b32 v{T+4}, 0x00700000", f"v_mov_b32 v{T+5}, 0")
        for i in range(4):
            e(f"ds_write_b32 v{T+3}, v{T+4} offset:{MAP + i*2048}")
        for i in range(4 if first else 3):
            e(f"ds_write_b32 v{T+3}, v{T+5} offset:{CNT2 + i*2048}")

    DSTV, SRCV, BK, BA, RK, NL, CT, ST, PS = 64, 68, 80, 84, 88, 92, 100, 104, 108
    SHQ = [140, 144, 148]
    TABV = 112
    OUTV = 128
    IV = 160
    CGR = 120
    if P["TS"]:
        e("s_memrealtime s[92:93]")
    e("s_cmp_ge_u32 s2, 256", "s_cbranch_scc1 L_done")
    e("s_load_dwordx4 s[4:7], s[0:1], 8")
    e("s_load_dwordx4 s[8:11], s[0:1], 24")
    e("s_load_dwordx2 s[14:15], s[0:1], 80")
    e(f"s_load_dwordx2 s[{SK}:{SK+1}], s[0:1], 0")
    e(f"s_load_dwordx2 s[{SK+2}:{SK+3}], s[0:1], 40")
    e(f"s_load_dwordx4 s[{SK+4}:{SK+7}], s[0:1], 48")
    e("s_load_dwordx2 s[12:13], s[0:1], 64")

    def cpf():
        e(f"s_getpc_b64 s[{sV}:{sV+1}]")
        e.label("L_pc")
        e(f"s_and_b32 s{sB}, s2, 0xf8", f"s_lshl_b32 s{sB}, s{sB}, 6")
        e(f"v_and_b32 v{T+3}, 0x180, v{T+2}", f"v_add_u32 v{T+3}, s{sB}, v{T+3}", f"v_min_u32 v{T+3}, L_end-L_pc, v{T+3}")
        e(f"v_mov_b32 v{TABV+1}, s{sV+1}", f"v_add_co_u32 v{TABV}, vcc, s{sV}, v{T+3}", f"v_addc_co_u32 v{TABV+1}, vcc, 0, v{TABV+1}, vcc")
        vq.op("cpf", f"global_load_dword v{TSV+1}, {vr(TABV,2)}, off")

    def srd_hi(s, size):
        e(f"s_mov_b32 s{s+2}, {size}", f"s_mov_b32 s{s+3}, 0x20000")

    def srd_lo(s, lo, off):
        e(f"s_add_u32 s{s}, s{lo}, {off}", f"s_addc_u32 s{s+1}, s{lo+1}, 0")

    e(f"v_lshlrev_b32 v{T+2}, 3, v0")
    if P["CPF"] == 2:
        cpf()
    e(f"v_lshrrev_b32 v{T}, 6, v0", f"v_and_b32 v{LANE}, 63, v0", f"v_lshlrev_b32 v{T+1}, 2, v0", f"v_mov_b32 v{T+5}, 0")
    e(f"v_readfirstlane_b32 s3, v{T}")
    e(f"ds_write_b32 v{T+1}, v{T+5} offset:{ACNT}", f"ds_write_b32 v{T+1}, v{T+5} offset:{AINV+3072}")
    e(f"s_mul_i32 s{sT}, s2, {CH*4}", f"s_mul_i32 s{sT2}, s2, {CH*8}", f"s_mul_i32 s{sOFF}, s2, {CH*32}")
    e(f"v_lshlrev_b32 v{X16}, 4, v{LANE}", f"v_lshlrev_b32 v{T+7}, 4, v0", f"v_mov_b32 v{ONE}, 1")
    e(f"s_lshl_b32 s{sEM}, s3, 10", f"s_add_u32 s{sEM}, s{sEM}, {EAST}", f"s_movk_i32 s{sCNT}, 4096", f"s_movk_i32 s{sNV}, 8192")
    srd_hi(sA0, CH * 4); srd_hi(sA1, CH * 4); srd_hi(sA2, CH * 8); srd_hi(sEA, CH * 32)
    if P["DIAGW"]:
        e(f"s_memrealtime s[{sTSP}:{sTSP+1}]")
    e("s_waitcnt lgkmcnt(0)")
    if P["TS"]:
        e(f"v_writelane_b32 v{TSV}, s92, 0")
        ts.names.append("first")
    ts.stamp("start")
    srd_lo(sA0, 6, f"s{sT}")
    for i in range(3):
        o = f"0 offen offset:{2048*i}" if i < 2 else f"s{sCNT} offen"
        vq.op("dst", f"buffer_load_dword v{DSTV+i}, v{T+1}, {sr(sA0)}, {o} {apol}")
    srd_lo(sA1, 4, f"s{sT}")
    if P["ABAR"] == 2:
        e("s_barrier")
    for i in range(3):
        o = f"0 offen offset:{2048*i}" if i < 2 else f"s{sCNT} offen"
        vq.op("src", f"buffer_load_dword v{SRCV+i}, v{T+1}, {sr(sA1)}, {o} {apol}")
    e(f"s_load_dword s{sTAG}, s[14:15], {WS_W}")
    if P["CPF"] == 1:
        cpf()
    srd_lo(sA2, 8, f"s{sT2}")
    srd_lo(sEA, 10, f"s{sOFF}")
    if P["ABAR"] == 1:
        e("s_barrier")
    for i, o in enumerate(("0", f"s{sCNT}", f"s{sNV}")):
        vq.op("sh", f"buffer_load_dwordx2 {vr(SHQ[i],2)}, v{T+2}, {sr(sA2)}, {o} offen {apol}")

    def aea(p):
        for i in range(5):
            if astage[i] == p:
                e(f"s_add_u32 m0, s{sEM}, {8192*i}", f"s_mov_b32 s{sT}, {8192*i}")
                vq.op("ea", f"buffer_load_dwordx4 v{T+7}, {sr(sEA)}, s{sT} offen {apol} lds")
        if P["WST"] == p:
            weights()
        if P["WOST"] == p:
            wout()

    def weights():
        e("s_cmp_lt_u32 s3, 4")
        e(f"s_cselect_b32 s{sX}, s{SK+4}, s{SK+2}", f"s_cselect_b32 s{sX+1}, s{SK+5}, s{SK+3}", f"s_movk_i32 s{sT}, 128",
          f"s_cselect_b32 s{sX+2}, s{sCNT}, s{sT}", f"s_mov_b32 s{sX+3}, 0x20000")
        e(f"s_min_u32 s{sT}, s3, 5", f"s_lshl_b32 s{sT}, s{sT}, 10", f"s_add_u32 m0, s{sT}, {WR}", f"s_and_b32 s{sT}, s{sT}, 0xc00")
        vq.op("w", f"buffer_load_dwordx4 v{X16}, {sr(sX)}, s{sT} offen lds")

    def wout():
        srd(sOUT, SK + 6, SK + 7, None, 32768)
        e(f"s_lshl_b32 s{sT2}, s3, 12", f"s_add_u32 m0, s{sT2}, {WO}")
        e(f"v_lshrrev_b32 v{CGR}, 3, v{LANE}", f"v_lshlrev_b32 v{CGR}, 10, v{CGR}", f"v_and_b32 v{CGR+1}, 7, v{LANE}", f"v_lshl_add_u32 v{CGR}, v{CGR+1}, 4, v{CGR}")
        e(f"s_and_b32 s{sT2}, s3, 3", f"s_lshl_b32 s{sT2}, s{sT2}, 8", f"s_lshr_b32 s{sT}, s3, 2", f"s_lshl_b32 s{sT}, s{sT}, 7", f"s_add_u32 s{sT2}, s{sT2}, s{sT}")
        for i in range(4):
            vq.op("w", f"buffer_load_dwordx4 v{CGR}, {sr(sOUT)}, s{sT2} offen offset:{i*1024} lds")
            if i < 3:
                e(f"s_add_u32 s{sT2}, s{sT2}, {8192 - 1024}")

    aea(0)
    if not P["ABAR"]:
        e("s_barrier")
    e(f"s_mov_b32 s{SK+8}, 109951168", f"s_movk_i32 s{SK+9}, 625", f"s_movk_i32 s{SK+10}, 838")
    e(f"v_cmp_gt_u32 s[{sV+4}:{sV+5}], {CH-1024}, v0") if CH - 1024 <= 64 else e(f"s_movk_i32 s{sT}, {CH-1024}", f"v_cmp_gt_u32 s[{sV+4}:{sV+5}], s{sT}, v0")
    srd(sTAB, 14, 15, None, WS_T2 + NCH * 1024 if P["HINT"] else WS_W + 64)
    init_round(True)
    if P["ACCZ"] == 9:
        for i in range(48):
            e(f"v_mov_b32 v{ACC+i}, 0")
    vq.wait("dst")
    ts.stamp("dst")
    for k in range(3):
        e(f"v_mul_hi_u32 v{BK+k}, v{DSTV+k}, s{SK+8}")
    for k in range(3):
        e(f"v_lshlrev_b32 v{BA+k}, 2, v{BK+k}")
        if k == 2:
            e(f"s_mov_b64 exec, s[{sV+4}:{sV+5}]")
        e(f"ds_add_rtn_u32 v{RK+k}, v{BA+k}, v{ONE} offset:{ACNT}")
    e("s_mov_b64 exec, -1")
    e("s_waitcnt lgkmcnt(0)", "s_barrier")
    ts.stamp("hist")
    e(f"ds_read_b128 {vr(CT,4)}, v{X16} offset:{ACNT}")
    e(f"s_mul_i32 s{sTAG}, s{sTAG}, 0x9e3779b1", f"s_add_u32 s{sTAG}, s{sTAG}, 0x7f4a7c15")
    e(f"s_mul_i32 s{sTAG2}, s{sTAG}, 0x85ebca6b", f"s_lshr_b32 s{sTG7}, s{sTAG2}, 12", f"s_and_b32 s{sTG7}, s{sTG7}, 0x7f", f"s_and_b32 s{sTAG2}, s{sTAG2}, 0xffc00000")
    aea(1)
    for k in range(3):
        e(f"v_mad_u32_u24 v{NL+k}, v{BK+k}, s{SK+9}, 15", f"v_lshrrev_b32 v{NL+k}, 4, v{NL+k}", f"v_sub_u32 v{NL+k}, v{DSTV+k}, v{NL+k}")
    e("s_waitcnt lgkmcnt(0)")
    e(f"v_add_u32 v{T+3}, v{CT}, v{CT+1}", f"v_add3_u32 v{T+3}, v{T+3}, v{CT+2}, v{CT+3}", f"v_mov_b32 v{T+4}, v{T+3}")
    scan_dpp(e, T + 4, True)
    e(f"v_sub_u32 v{ST}, v{T+4}, v{T+3}")
    for k in range(3):
        e(f"v_add_u32 v{ST+1+k}, v{ST+k}, v{CT+k}")
    e(f"ds_write_b128 v{X16}, {vr(ST,4)} offset:{ASTART}")
    for k in range(3):
        e(f"ds_read_b32 v{PS+k}, v{BA+k} offset:{ASTART}")
    e(f"s_lshl_b32 s{sT}, s3, 7", f"v_lshl_add_u32 v{T+3}, v{LANE}, 3, s{sT}")
    e(f"ds_read_b64 {vr(TABV+4,2)}, v{T+3} offset:{ACNT}", f"ds_read_b64 {vr(TABV+6,2)}, v{T+3} offset:{ASTART}")

    def publish():
        for k in range(2):
            e(f"v_lshl_or_b32 v{TABV+2*k}, v{TABV+4+k}, 11, v{TABV+6+k}", f"v_or_b32 v{TABV+2*k}, s{sTAG2}, v{TABV+2*k}", f"v_mov_b32 v{TABV+2*k+1}, s{sTAG}")
        e(f"s_lshl_b32 s{sT}, s2, 3", f"s_add_u32 s{sT}, s{sT}, s3", f"s_lshl_b32 s{sT}, s{sT}, 8")
        e("s_mov_b64 exec, 0xffff")
        vq.op("tab", f"buffer_store_dwordx4 {vr(TABV,4)}, v{X16}, {sr(sTAB)}, s{sT} offen sc1")
        e("s_mov_b64 exec, -1")

    def hpw():
        e(f"s_not_b32 s{sT}, s{sTAG}")
        for k in range(4):
            e(f"v_mov_b32 v{CGR+4+k}, s{sT}")
        e(f"s_lshl_b32 s{sT}, s2, 3", f"s_add_u32 s{sT}, s{sT}, s3", f"s_lshl_b32 s{sT}, s{sT}, 7", f"s_add_u32 s{sT}, s{sT}, {WS_T2}")
        e("s_mov_b64 exec, 0xff")
        vq.op("hpw", f"buffer_store_dwordx4 {vr(CGR+4,4)}, v{X16}, {sr(sTAB)}, s{sT} offen sc1")
        e("s_mov_b64 exec, -1")

    if P["TPUB"] == 0:
        e("s_waitcnt lgkmcnt(0)")
        publish()
    if P["HPW"]:
        hpw()
    vq.wait("src")
    for k in range(3):
        key = SHQ[k] + 2
        e(f"v_mul_u32_u24 v{key}, s{SK+10}, v{SRCV+k}", f"v_bfe_u32 v{key}, v{key}, 18, 5")
        e(f"v_lshl_or_b32 v{key}, v{NL+k}, 5, v{key}",
          f"v_lshl_or_b32 v{key}, v{key}, 21, s{sTG7}", f"v_lshl_or_b32 v{key}, v{SRCV+k}, 7, v{key}", f"v_mov_b32 v{key+1}, s{sTAG}")
    e(f"v_lshlrev_b32 v{NL}, 5, v0", f"v_add_u32 v{NL+1}, {512*32}, v{NL}", f"v_add_u32 v{NL+2}, {1024*32}, v{NL}")
    e(f"s_mov_b32 s{sT2}, {ASKS}")
    vq.wait("sh", "lgkmcnt(0)")
    for k in range(3):
        e(f"v_add_u32 v{PS+k}, v{PS+k}, v{RK+k}")
        e(f"v_lshlrev_b32 v{BA+k}, 2, v{PS+k}", f"v_lshl_add_u32 v{PS+k}, v{PS+k}, 4, s{sT2}")
        if k == 2:
            e(f"s_mov_b64 exec, s[{sV+4}:{sV+5}]")
        e(f"ds_write_b32 v{BA+k}, v{NL+k} offset:{AINV}")
        e(f"ds_write_b128 v{PS+k}, {vr(SHQ[k],4)}")
    e("s_mov_b64 exec, -1")
    if P["TPUB"] == 1:
        publish()
    aea(2)
    e(f"s_mul_i32 s{sT}, s2, {CS*16}", f"s_add_u32 s{sT}, s{sT}, {WS_SK}")
    srd(sA0, 14, 15, f"s{sT}", CS * 16)
    e(f"s_mul_i32 s{sT}, s2, {CS*32}", f"s_add_u32 s{sT}, s{sT}, {WS_EA}")
    srd(sA1, 14, 15, f"s{sT}", CH * 32)
    e(f"v_lshrrev_b32 v{T+3}, 1, v0", f"v_lshlrev_b32 v{T+3}, 2, v{T+3}")
    e(f"v_and_b32 v{T+4}, 1, v0", f"v_lshlrev_b32 v{T+4}, 4, v{T+4}", f"v_add_u32 v{T+4}, {EAST}, v{T+4}", f"v_add_u32 v{T+6}, {ASKS}, v{T+7}")
    e("s_waitcnt lgkmcnt(0)", "s_barrier")
    ts.stamp("scat")
    for i in range(3):
        e(f"ds_read_b128 {vr(OUTV+4*i,4)}, v{T+6} offset:{8192*i}")
    for i in range(5):
        e(f"ds_read_b32 v{IV+i}, v{T+3} offset:{AINV + i*1024}")
    if P["TPUB"] == 2:
        publish()
    aea(3)

    def skst():
        e(f"s_movk_i32 s{sT}, 16384")
        for i, o in enumerate(("0", f"s{sNV}", f"s{sT}")):
            vq.op("skst", f"buffer_store_dwordx4 {vr(OUTV+4*i,4)}, v{T+7}, {sr(sA0)}, {o} offen sc1")

    def frag_r(F0, t0, t1, t2):
        e(f"v_lshrrev_b32 v{t0}, 5, v{LANE}", f"v_lshlrev_b32 v{t0}, 10, v{t0}", f"v_and_b32 v{t1}, 15, v{LANE}", f"v_lshl_add_u32 v{t0}, v{t1}, 4, v{t0}")
        for i in range(8):
            e(f"ds_read_b128 {vr(F0+4*i,4)}, v{t0} offset:{WR + 2048*(i//4) + 256*(i%4)}")
        e(f"v_lshrrev_b32 v{t0}, 4, v{LANE}", f"v_lshlrev_b32 v{t0}, 5, v{t0}", f"v_and_b32 v{t1}, 3, v{LANE}", f"v_lshl_add_u32 v{t0}, v{t1}, 1, v{t0}")
        for v in range(4):
            e(f"ds_read_u16 v{F0+32+v}, v{t0} offset:{WR + 4096 + 8*v}")
        e(f"v_bfe_i32 v{t2}, v{LANE}, 4, 1", f"v_and_b32 v{t2}, 0x02020202, v{t2}", f"v_add_u32 v{t2}, 0x05040100, v{t2}")
        e("s_waitcnt lgkmcnt(0)")
        for h in range(2):
            for t in range(2):
                for ip in range(4):
                    e(f"v_perm_b32 v{WRF+8*h+2*ip+t}, v{F0+4*(2*ip+1)+t+2*h}, v{F0+4*(2*ip)+t+2*h}, v{t2}")
        e(f"v_lshl_or_b32 v{CGF}, v{F0+33}, 16, v{F0+32}", f"v_lshl_or_b32 v{CGF+1}, v{F0+35}, 16, v{F0+34}")

    def frag_o(F0, F1, t0, t1, sM):
        e(f"v_and_b32 v{t1}, 7, v{LANE}", f"v_lshrrev_b32 v{t0}, 4, v{LANE}", f"v_lshlrev_b32 v{t0}, 10, v{t0}", f"v_lshl_add_u32 v{t0}, v{t1}, 4, v{t0}",
          f"v_and_b32 v{t1}, 8, v{LANE}", f"s_lshl_b32 s{sM}, s3, 12", f"s_add_u32 s{sM}, s{sM}, {WO}", f"v_add3_u32 v{t0}, v{t0}, v{t1}, s{sM}")
        for ip in range(4):
            e(f"ds_read2_b64 {vr(F0+4*ip,4)}, v{t0} offset0:{32*ip} offset1:{32*ip+16}")
        e(f"v_add_u32 v{t1}, s{sM}, v{X16}", f"s_mov_b32 s{sM}, 0x05040100", f"s_mov_b32 s{sM+1}, 0x07060302")
        for ip in range(4):
            e(f"s_waitcnt lgkmcnt({3-ip})")
            for t in range(4):
                e(f"v_perm_b32 v{F1+4*t+ip}, v{F0+4*ip+2+t//2}, v{F0+4*ip+t//2}, s{sM+t%2}")
        for t in range(4):
            e(f"ds_write_b128 v{t1}, {vr(F1+4*t,4)} offset:{1024*t}")

    def consts():
        e(f"s_and_b32 s{sB}, s2, 7", f"s_lshl_b32 s{sB}, s{sB}, 5", f"s_lshr_b32 s{sT}, s2, 3", f"s_add_u32 s{sB}, s{sB}, s{sT}")
        e(f"s_mul_i32 s{sNB}, s{sB}, 625", f"s_add_u32 s{sNCNT}, s{sNB}, 640", f"s_add_u32 s{sNB}, s{sNB}, 15",
          f"s_lshr_b32 s{sNB}, s{sNB}, 4", f"s_lshr_b32 s{sNCNT}, s{sNCNT}, 4", f"s_sub_u32 s{sNCNT}, s{sNCNT}, s{sNB}")
        e(f"v_bfe_i32 v{SIX}, v{LANE}, 2, 1", f"v_and_b32 v{SIX}, 0xaaaa, v{SIX}", f"v_add_u32 v{SIX}, 0x4444, v{SIX}")
        e(f"v_mov_b32 v{ZAD}, {ZERO}", f"v_and_b32 v{T+3}, 60, v{T+1}", f"v_add_u32 v{T+3}, v{T+3}, v{ZAD}", f"ds_write_b32 v{T+3}, v{T+5}")
        e(f"v_and_b32 v{T+3}, 4, v{LANE}", f"v_lshlrev_b32 v{T+3}, 2, v{T+3}", f"v_mov_b32 v{T+4}, 0xffff", f"v_lshlrev_b32 v{T+4}, v{T+3}, v{T+4}")
        e(f"v_bfe_i32 v{T+3}, v{LANE}, 3, 1", f"v_and_b32 v{MQ}, v{T+3}, v{T+4}", f"v_xor_b32 v{MP}, v{MQ}, v{T+4}")
        if P["PQP"]:
            e(f"v_mov_b32 v{T+3}, 0x0c0c0c0c", f"v_mov_b32 v{T+4}, 0x03020302")
            e(f"v_bfi_b32 v254, v{MP}, v{T+4}, v{T+3}", f"v_bfi_b32 v255, v{MQ}, v{T+4}, v{T+3}", f"v_mov_b32 v{T+4}, 0x01000100")
            e(f"v_bfi_b32 v{MP}, v{MP}, v{T+4}, v{T+3}", f"v_bfi_b32 v{MQ}, v{MQ}, v{T+4}, v{T+3}")
        e(f"v_lshrrev_b32 v{EAC}, 5, v{LANE}", f"v_lshlrev_b32 v{EAC}, 4, v{EAC}", f"v_add_u32 v{EAC}, {EAST}, v{EAC}")
        e(f"v_and_b32 v{LAC}, 15, v{LANE}", f"v_lshlrev_b32 v{LAC}, 2, v{LAC}")
        e(f"v_bfe_u32 v{T+3}, v{LANE}, 3, 2", f"v_and_b32 v{T+4}, 3, v{LANE}", f"v_lshl_add_u32 v{T+3}, v{T+3}, 2, v{T+4}", f"v_lshlrev_b32 v{LBC}, 2, v{T+3}")
        e(f"v_bfe_i32 v{cODD}, v0, 0, 1", f"s_lshl_b32 s{sT}, s3, 10", f"v_and_b32 v{cMAPW}, 4, v{cODD}", f"v_add_u32 v{cMAPW}, s{sT}, v{cMAPW}")
        e(f"v_lshl_add_u32 v{cMAP1}, v{LANE}, 2, s{sT}", f"v_lshrrev_b32 v{cMAP2}, 1, v{LANE}", f"v_lshl_add_u32 v{cMAP2}, v{cMAP2}, 2, s{sT}")
        e(f"v_and_b32 v{cDEG}, 12, v{cMAP1}", f"v_and_b32 v{cBIN}, 124, v{cMAP1}")
        e(f"s_mul_i32 s{sT}, s3, {CAPW}", f"v_add_u32 v{cR21}, s{sT}, v{LANE}", f"v_lshlrev_b32 v{cSH}, 3, v{cR21}", f"v_add_u32 v{cSH}, {SHST}, v{cSH}", f"v_lshlrev_b32 v{cR21}, 21, v{cR21}")
        e(f"s_mul_i32 s{sT}, s3, 640", f"v_add_u32 v{cROW}, s{sT}, v{cBIN}", f"v_sub_u32 v{cTIE}, 63, v{LANE}")
        e(f"s_getreg_b32 s{sM0}, hwreg(HW_REG_XCC_ID, 0, 3)", f"s_lshl_b32 s{sT}, s{sM0}, 4", f"v_subrev_u32 v{cBIN}, s{sT}, v{cBIN}", f"v_and_b32 v{cBIN}, 124, v{cBIN}")
        e(f"v_min_u32 v{cNOD}, 39, v{LANE}", f"v_lshlrev_b32 v{cNOD}, 7, v{cNOD}", f"v_mov_b32 v{c380}, 0x380")
        e(f"v_lshrrev_b32 v{cLST}, 3, v{LANE}", f"v_mul_u32_u24 v{cLST}, {GAP*4}, v{cLST}", f"v_add_u32 v{cLST}, {LIST}, v{cLST}")
        e(f"s_lshr_b32 s{sEO}, s3, 1", f"s_mul_i32 s{sEO}, s{sEO}, 3", f"s_min_u32 s{sEO}, s{sEO}, 8", f"s_mul_i32 s{sT}, s{sEO}, 4608")
        e(f"v_and_b32 v{T+3}, 15, v{LANE}", f"v_lshrrev_b32 v{T+4}, 4, v{LANE}")
        e(f"v_mul_u32_u24 v{eFR}, 288, v{T+3}", f"v_lshl_add_u32 v{eFR}, v{T+4}, 4, v{eFR}", f"v_add_u32 v{eFR}, s{sT}, v{eFR}")
        e(f"v_lshrrev_b32 v{T+4}, 3, v{LANE}", f"v_lshlrev_b32 v{T+4}, 9, v{T+4}", f"v_and_b32 v{T+3}, 7, v{LANE}", f"v_lshl_add_u32 v{eST}, v{T+3}, 4, v{T+4}")
        e(f"s_lshl_b32 s{sEO}, s{sEO}, 12", f"s_and_b32 s{sT}, s3, 1", f"s_lshl_b32 s{sT}, s{sT}, 7", f"s_add_u32 s{sEO}, s{sEO}, s{sT}",
          f"s_lshl_b32 s{sT}, s{sT}, 7", f"s_add_u32 s{sT}, s{sT}, {WO}", f"v_add_u32 v{eWF}, s{sT}, v{X16}")
        e(f"s_cmp_eq_u32 s{sNCNT}, 40")
        tabs = []
        for part in PARTS[P["BIAS"]]:
            t = [0] * 40
            for w, p in enumerate(part):
                for sl, r in enumerate(p):
                    t[r] = w * 8 + sl
            tabs.append([sum(t[5 * q + i] << (6 * i) for i in range(5)) for q in range(8)])
        e(f"v_mov_b32 v{RT}, 0")
        for q in range(8):
            e(f"s_mov_b32 s{sT}, {tabs[0][q]}", f"s_cselect_b32 s{sT}, {tabs[1][q]}, s{sT}")
            m = 31 << (5 * q)
            e(f"s_mov_b32 exec_lo, {m & 0xffffffff}", f"s_mov_b32 exec_hi, {m >> 32}", f"v_mov_b32 v{RT}, s{sT}")
        e("s_mov_b64 exec, -1")
        e(f"v_mul_u32_u24 v{T+3}, 52, v{LANE}", f"v_lshrrev_b32 v{T+3}, 8, v{T+3}", f"v_mad_i32_i24 v{T+3}, v{T+3}, -5, v{LANE}",
          f"v_mul_u32_u24 v{T+3}, 6, v{T+3}", f"v_lshrrev_b32 v{RT}, v{T+3}, v{RT}")
        e(f"v_and_b32 v{T+3}, 7, v{RT}", f"v_bfe_u32 v{RT}, v{RT}, 3, 3", f"v_lshlrev_b32 v{T+3}, 12, v{T+3}", f"v_lshl_or_b32 v{RT}, v{RT}, 7, v{T+3}")
        srd(sSK, 14, 15, WS_SK, NCH * CS * 16)

    def extra(pos):
        if P["CPOS"] == pos:
            consts()
        if P["ACCZ"] == pos:
            for i in range(48):
                e(f"v_mov_b32 v{ACC+i}, 0")

    PL = 206
    poll1 = f"buffer_load_dwordx2 {vr(PL,2)}, v{cPOL}, {sr(sTAB)}, s{sNR} offen sc1"

    PL2, cHP = 170, 195
    hpoll = f"buffer_load_dwordx2 {vr(PL2,2)}, v{cHP}, {sr(sTAB)}, 0 offen sc1"

    def hint_store():
        e(f"s_lshl_b32 s{sT}, s2, 3", f"s_add_u32 s{sT}, s{sT}, s3", f"s_lshl_b32 s{sT}, s{sT}, 7", f"s_add_u32 s{sT}, s{sT}, {WS_T2}")
        e("s_mov_b64 exec, 0xff")
        vq.op("hst", f"buffer_store_dwordx4 {vr(TABV,4)}, v{X16}, {sr(sTAB)}, s{sT} offen sc1")
        e("s_mov_b64 exec, -1")

    def hint_poll(pos):
        if P["HINT"] and P["HP"] == pos:
            vq.op("h", hpoll)

    def hint_bad():
        e(f"v_xor_b32 v{T+3}, s{sTAG2}, v{PL2}", f"v_xor_b32 v{T+4}, s{sTAG}, v{PL2+1}", f"v_or_b32 v{T+3}, v{T+3}, v{T+4}", f"v_cmp_ne_u32 vcc, 0, v{T+3}")

    def pollsetup():
        if P["HINT"]:
            e(f"v_lshrrev_b32 v{cHP}, 1, v0", f"v_lshlrev_b32 v{cHP}, 10, v{cHP}", f"s_lshr_b32 s{sT}, s{sB}, 5", f"s_lshl_b32 s{sT}, s{sT}, 7",
              f"s_add_u32 s{sT}, s{sT}, {WS_T2}", f"v_add_u32 v{cHP}, s{sT}, v{cHP}")
        e(f"v_lshrrev_b32 v{T+1}, 1, v0", f"v_lshlrev_b32 v{cPOL}, 11, v{T+1}", f"s_lshl_b32 s{sNR}, s{sB}, 3")
        e(f"v_mul_u32_u24 v{RG0}, {CS}, v{T+1}", f"v_lshlrev_b32 v{T+1}, 2, v0")

    def xpfsetup():
        n = P["XPF"]
        e(f"s_and_b32 s{sBASE}, s{sM0}, 7", f"s_mul_i32 s{sBASE}, s{sBASE}, {1252*1024}", f"s_and_b32 s{sT2}, s2, 0xf8",
          f"s_add_u32 s{sT2}, s{sT2}, s3", f"s_mul_i32 s{sT2}, s{sT2}, {n*128}", f"s_add_u32 s{sBASE}, s{sBASE}, s{sT2}")
        e(f"v_min_u32 v{PFV}, {n-1}, v{LANE}", f"v_lshlrev_b32 v{PFV}, 7, v{PFV}")
    xpf = f"buffer_load_dword v{PFV}, v{PFV}, {sr(sX)}, s{sBASE} offen"

    def tagcheck():
        e(f"v_xor_b32 v{T+3}, s{sTAG2}, v{PL}", f"v_xor_b32 v{T+4}, s{sTAG}, v{PL+1}", f"v_and_or_b32 v{T+3}, v{T+3}, s{sT2}, v{T+4}")
        e(f"v_cmpx_ne_u32 vcc, 0, v{T+3}")

    def outsrd():
        e(f"s_lshl_b32 s{sT}, s{sNB}, 10", f"s_add_u32 s{sOUT}, s12, s{sT}", f"s_addc_u32 s{sOUT+1}, s13, 0",
          f"s_lshl_b32 s{sOUT+2}, s{sNCNT}, 10", f"s_mov_b32 s{sOUT+3}, 0x20000")

    def rwzero():
        for i in range(32):
            e(f"v_mov_b32 v{RW+i}, 0")

    def frags(pos):
        if pos not in (P["FRP"], P["FOP"]):
            return
        if pos >= 3:
            e(f"s_cmp_lg_u32 s{sROFF}, 0", f"s_cbranch_scc1 L_nofrag{pos}")
        if P["FRP"] == pos:
            frag_r(RW, T, T + 3, T + 4)
            rwzero()
        if P["FOP"] == pos:
            frag_o(XR, XR + 16, T, T + 3, SK + 8)
        if pos >= 3:
            e.label(f"L_nofrag{pos}")

    e("s_waitcnt lgkmcnt(0)")
    for i in range(5):
        e(f"v_add_u32 v{IV+i}, v{T+4}, v{IV+i}")
    extra(0)
    assert P["CPOS"] == 0
    pollsetup()
    srd(sX, SK, SK + 1, None, N * 1024)
    srd(sEA, 14, 15, WS_EA, NCH * CS * 32)
    if P["XPF"]:
        xpfsetup()
    if P["TPOS"] == 0:
        vq.op("poll", poll1)
    e(f"s_waitcnt vmcnt({min(vq.n('w') + P['WGN'], vq.n('ea'))})")
    e("s_barrier")
    ts.stamp("land")
    for i in range(5):
        e(f"ds_read_b128 {vr(OUTV+12+4*i,4)}, v{IV+i}")
    outsrd()
    extra(1)
    if P["TPOS"] == 1:
        vq.op("poll", poll1)
    frags(1)
    ts.stamp("guard")
    if P["SEQ"] == 1:
        skst()
    for i in range(5):
        e(f"s_mov_b32 s{sT}, {8192*i}", f"s_waitcnt lgkmcnt({4-i})")
        vq.op("st", f"buffer_store_dwordx4 {vr(OUTV+12+4*i,4)}, v{T+7}, {sr(sA1)}, s{sT} offen sc1")
    aea(4)
    ts.stamp("issued")
    if P["TPOS"] == 2:
        vq.op("poll", poll1)
    extra(2)
    frags(0)
    if P["HINT"]:
        e(f"v_mov_b32 v{TABV}, s{sTAG2}", f"v_mov_b32 v{TABV+1}, s{sTAG}", f"v_mov_b32 v{TABV+2}, s{sTAG2}", f"v_mov_b32 v{TABV+3}, s{sTAG}")
    vq.wait("st")
    e("s_barrier")
    ts.stamp("drained")
    if P["HINT"] and P["HS"] == 0:
        hint_store()
    if P["SEQ"] == 0:
        skst()
    if P["HINT"] and P["HS"] == 1:
        hint_store()
    hint_poll(0)
    if P["TPOS"] == 3:
        vq.op("poll", poll1)
    if P["XPF"] and P["XPOS"] == 0:
        vq.op("xpf", xpf)
    e(f"s_mov_b32 s{sROFF}, 0", f"s_mov_b32 s{sCNT}, {SPIN}", f"s_mov_b32 s{sT2}, 0xffc00000", f"s_movk_i32 s{s7F}, 0x7f")
    e(f"s_mul_i32 s{sEM}, s3, {CAPW*32}", f"s_add_u32 s{sEM}, s{sEM}, {EAST}", f"s_movk_i32 s{sK4}, 4096")
    frags(2)
    vq.wait("poll")
    tagcheck()
    e("s_cbranch_execnz L_poll")
    e.label("L_polled")
    e("s_mov_b64 exec, -1")
    ts.stamp("tab")
    hint_poll(1)
    G1, G2, SKR, RNK, CA = TP + 8, TP + 12, TP + 20, TP, TP + 4
    MU = P["MU"]
    sVm = [sV, sV + 2, sV + 4, sA2]

    m0st = [None]

    def bea1(i):
        if m0st[0] != i // 4 or i == 6:
            e(f"s_add_u32 m0, s{sEM}, {4096*(i//4)}")
        m0st[0] = i // 4
        vq.op("ea", f"buffer_load_dwordx4 v{G2+i}, {sr(sEA)}, {'0' if i < 4 else 's%d' % sK4} offen offset:{1024*(i%4)} {ldpol} lds")

    ORDER = [7, 8, 1, 2, 6, 3, 4]
    for i in range(6):
        assert ORDER.index(bstage[i]) >= i // 2, "edge_attr rows are loaded after their key records carry the tag"

    def bea(p):
        for i in range(6):
            if bstage[i] == p:
                bea1(i)
        if P["XPF"] and P["XPOS"] == 10 + p:
            vq.op("xpf", xpf)

    def skload(i):
        return f"buffer_load_dwordx4 {vr(SKR+4*i,4)}, v{G1+i}, {sr(sSK)}, 0 offen offset:{1024*i} {str(P['SKPOL']).replace('+', ' ')}"

    def skld(i):
        e(f"v_lshl_add_u32 v{G1+i}, v{G1+i}, 4, v{X16}")
        vq.op(f"sk{i}", skload(i))

    def skbad(i):
        e(f"v_xor_b32 v{T+3}, s{sTAG}, v{SKR+4*i+3}", f"v_xor_b32 v{T+4}, s{sTG7}, v{SKR+4*i+2}", f"v_and_or_b32 v{T+3}, v{T+4}, s{s7F}, v{T+3}")
        e(f"v_cmp_ne_u32 vcc, 0, v{T+3}")

    def skcheck(i):
        skbad(i)
        e(f"s_and_b64 vcc, vcc, s[{sVm[i]}:{sVm[i]+1}]", f"s_cbranch_scc1 L_skre{i}")
        e.label(f"L_skok{i}")

    cmps = [f"v_cmp_lt_i32 s[{SK+2*i}:{SK+2*i+1}], {2*i}, v{T+2}" for i in range(MU + 1)]
    e(f"v_bfe_u32 v{RLEN}, v{PL}, 11, 11", f"v_and_b32 v{RBASE}, v{RLEN}, v{cODD}", f"v_add_u32 v{T+2}, v{RLEN}, v{cODD}")
    fill = [f"v_and_b32 v{T+3}, 0x7ff, v{PL}"] + cmps + [f"v_add_u32 v{RG0}, v{RG0}, v{T+3}"]
    e(fill.pop(0))
    for mod in ("row_shr:1 row_mask:0xf", "row_shr:2 row_mask:0xf", "row_shr:4 row_mask:0xf", "row_shr:8 row_mask:0xf", "row_bcast:15 row_mask:0xa", "row_bcast:31 row_mask:0xc"):
        e(f"v_add_u32_dpp v{RBASE}, v{RBASE}, v{RBASE} {mod} bank_mask:0xf")
        e(*fill[:2]); fill = fill[2:]
    e(f"v_readlane_b32 s{sNW}, v{RBASE}, 63")
    e(f"v_mov_b32_dpp v{RBASE}, v{RBASE} quad_perm:[0,0,2,2] row_mask:0xf bank_mask:0xf")
    e(f"v_sub_u32 v{RG0}, v{RG0}, v{RBASE}")
    e(f"v_lshl_add_u32 v{T}, v{RBASE}, 2, v{cMAPW}")
    e(f"s_cmp_gt_u32 s{sNW}, {CAPW}", "s_cbranch_scc1 L_clip")
    e.label("L_mapw")
    for i in range(MU):
        e(f"s_mov_b64 exec, s[{SK+2*i}:{SK+2*i+1}]")
        e(f"ds_write_b32 v{T}, v{RG0} offset:{8*i}")
    e("s_mov_b64 exec, -1")
    e(f"s_cmp_lg_u64 s[{SK+2*MU}:{SK+2*MU+1}], 0", "s_cbranch_scc1 L_map2")
    for i in range(3):
        e(f"ds_read_b32 v{G1+i}, v{cMAP1} offset:{256*i}")
    for i in range(6):
        e(f"ds_read_b32 v{G2+i}, v{cMAP2} offset:{128*i}")
    e(f"s_cmp_gt_i32 s{sNW}, 192", "s_cbranch_scc1 L_r1")
    e.label("L_r1b")
    e("s_waitcnt lgkmcnt(6)")
    ts.stamp("map")
    hint_poll(2)
    frags(3)
    if P["SKW"]:
        vq.wait("hst" if P["SEQ"] else "skst")
    ts.stamp("skw")
    if P["HINT"]:
        hint_poll(3)
        vq.wait("h")
        hint_bad()
        e("s_cbranch_vccnz L_hint")
        e.label("L_hinted")
        ts.stamp("hint")
    e(f"s_cmp_gt_i32 s{sNW}, 192", "s_cbranch_scc1 L_r1c")
    e.label("L_r1d")
    for i in range(3):
        skld(i)
    e(f"v_mov_b32 v{T+3}, s{sNW}", "s_mov_b64 exec, 1", f"ds_max_i32 v{T+5}, v{T+3} offset:{TOT}", "s_mov_b64 exec, -1")
    e("s_waitcnt lgkmcnt(1)")
    for i in range(6):
        e(f"v_lshl_add_u32 v{G2+i}, v{G2+i}, 5, v{X16}")
    if P["SKBAR"]:
        e("s_barrier")
    ts.stamp("skiss")
    if P["XPF"] and P["XPOS"] == 6:
        vq.op("xpf", xpf)
    frags(4)
    assert 5 not in bstage
    e(f"s_min_i32 s{sT}, s{sNW}, {CAPW}")
    for i in range(4):
        e(f"v_cmp_gt_i32 s[{sVm[i]}:{sVm[i]+1}], s{sT}, v{LANE}", f"s_sub_i32 s{sT}, s{sT}, 64")
    e(f"s_mov_b32 s{sT2}, 0x1fff80", f"s_mul_i32 s{sOFF}, s3, 5")
    assert P["SKBAR"]
    late_wf = True

    def count(i):
        key = SKR + 4 * i + 2
        e(f"v_lshrrev_b32 v{CA+i}, 21, v{key}", f"v_lshlrev_b32 v{CA+i}, 2, v{CA+i}")
        e(f"v_lshrrev_b32 v{T+3}, 26, v{key}", f"v_lshl_or_b32 v{T+3}, v{T+3}, 4, v{cDEG}")
        e(f"s_mov_b64 exec, s[{sVm[i]}:{sVm[i]+1}]")
        e(f"ds_add_rtn_u32 v{RNK+i}, v{CA+i}, v{ONE} offset:{CNT2}")
        e(f"ds_add_u32 v{T+3}, v{ONE} offset:{DEG}")
        e("s_mov_b64 exec, -1")

    def entry(i):
        key = SKR + 4 * i + 2
        if i == 3:
            e("s_mov_b32 exec_hi, 0")
        e(f"ds_write_b64 v{cSH}, {vr(SKR+4*i,2)} offset:{512*i}")
        if i == 3:
            e("s_mov_b32 exec_hi, -1")
        e(f"v_and_or_b32 v{key}, v{key}, s{sT2}, v{cR21}")
        if i:
            e(f"v_add_u32 v{key}, {64*i << 21}, v{key}")

    for i in range(3):
        vq.wait(f"sk{i}")
        if i == 0:
            ts.stamp("sk")
        skcheck(i)
        count(i)
        if i < 2:
            bea(7 + i)
    e(f"s_cmp_gt_i32 s{sNW}, 192", "s_cbranch_scc1 L_r2")
    e.label("L_r2b")
    m0st[0] = None
    ts.stamp("atom")
    e(f"s_or_b32 s{sT}, s2, s3", "s_cbranch_scc0 L_tag")
    e.label("L_tagged")
    bea(1)
    for j in range(1, 5):
        e(f"s_add_u32 s{SK+j}, s{sOFF}, {j}")
    e("s_waitcnt lgkmcnt(0)", "s_barrier")
    ts.stamp("b1")
    CN, CAD = XR, XR + 8
    e(f"s_cmp_lg_u32 s{sROFF}, 0", "s_cbranch_scc1 L_rank2")
    e(f"ds_read_b128 {vr(CAD,4)}, v{X16} offset:{DEG}")
    for j in range(5):
        e(f"ds_read_b32 v{CN+j}, v{cROW} offset:{CNT2 + 128*j}")
    e(f"ds_read_b32 v{T+6}, v{T+5} offset:{TOT}")
    if P["ENP"] == 0:
        for i in range(3):
            entry(i)
    e(f"s_waitcnt lgkmcnt({9 if P['ENP'] == 0 else 6})")
    e(f"v_add_u32 v{T+1}, v{CAD}, v{CAD+1}", f"v_add3_u32 v{T+1}, v{T+1}, v{CAD+2}, v{CAD+3}")
    e(f"v_lshl_or_b32 v{T+1}, v{T+1}, 6, v{cTIE}")
    for j in range(5):
        e(f"v_readlane_b32 s{SK+j}, v{T+1}, s{SK+j if j else sOFF}")
    for j in range(5):
        e(f"v_cmp_lt_u32 s[{SK+6+2*j}:{SK+7+2*j}], s{SK+j}, v{T+1}")
    for j in range(5):
        e(f"s_bcnt1_i32_b64 s{SK+j}, s[{SK+6+2*j}:{SK+7+2*j}]")
    e(f"s_waitcnt lgkmcnt({3 if P['ENP'] == 0 else 0})")
    for j in range(5):
        e(f"v_readlane_b32 s{sASG[j]}, v{RT}, s{SK+j}")
    e(f"v_readfirstlane_b32 s{sN}, v{T+6}")
    e.label("L_ranked")
    e("s_mov_b32 exec_hi, 0")
    for j in range(5):
        e(f"v_and_or_b32 v{CAD+j}, s{sASG[j]}, v{c380}, v{cBIN}")
        e(f"ds_add_rtn_u32 v{CN+j}, v{CAD+j}, v{CN+j} offset:{WB}")
    for j in range(5):
        e(f"v_or_b32 v{CAD+j}, s{sASG[j]}, v{cBIN}")
    e(f"s_lshl_b32 s{sT}, s3, 3", f"s_add_u32 s{sOFF}, s{sT}, 7")
    for j in range(5):
        if j in (0, 2):
            e(f"s_waitcnt lgkmcnt({3 if j == 0 else 2})")
        e(f"v_lshl_or_b32 v{CN+j}, v{CN+j}, 16, v{CAD+j}")
        e(f"ds_write_b32 v{cROW}, v{CN+j} offset:{CNT2 + 128*j}")
    e("s_mov_b32 exec_hi, -1")
    ts.stamp("rank")
    bea(2)
    if P["ENP"] == 1:
        for i in range(3):
            entry(i)
    e(f"s_waitcnt lgkmcnt({3 if P['ENP'] == 1 else 0})", "s_barrier")
    ts.stamp("b2")
    e(f"ds_read_b128 {vr(CN,4)}, v{X16} offset:{WB}")
    for i in range(3):
        e(f"ds_read_b32 v{CA+i}, v{CA+i} offset:{CNT2}")
    bea(6)
    e("s_waitcnt lgkmcnt(3)")
    e(f"v_add_u32 v{T+1}, v{CN}, v{CN+1}", f"v_add3_u32 v{T+1}, v{T+1}, v{CN+2}, v{CN+3}", f"v_mov_b32 v{T+2}, v{T+1}")
    e("s_waitcnt lgkmcnt(0)")

    def place(i):
        key = SKR + 4 * i + 2
        return [f"v_bfe_u32 v{T+7}, v{CA+i}, 12, 3", f"v_or_b32 v{key}, v{T+7}, v{key}", f"v_and_b32 v{G1+i}, 0x3ff, v{CA+i}",
                f"v_lshrrev_b32 v{CA+i}, 16, v{CA+i}", f"v_add_u32 v{CA+i}, v{CA+i}, v{RNK+i}"]

    fill = place(0) + place(1) + place(2)
    e(fill.pop(0))
    for mod in ("row_shr:1 row_mask:0xf", "row_shr:2 row_mask:0xf", "row_shr:4 row_mask:0xf", "row_shr:8 row_mask:0xf", "row_bcast:15 row_mask:0xa", "row_bcast:31 row_mask:0xc"):
        e(f"v_add_u32_dpp v{T+2}, v{T+2}, v{T+2} {mod} bank_mask:0xf")
        e(*fill[:2]); fill = fill[2:]
    e(f"v_sub_u32 v{T+1}, v{T+2}, v{T+1}")
    e(f"v_lshl_add_u32 v{CAD}, v{T+1}, 2, v{cLST}")
    for k in range(3):
        e(f"v_lshl_add_u32 v{CAD+1+k}, v{CN+k}, 2, v{CAD+k}")
    e(f"ds_write_b128 v{X16}, {vr(CAD,4)} offset:{START}")
    for i in range(3):
        e(f"ds_read_b32 v{G1+i}, v{G1+i} offset:{START}")
    e(*fill)
    e(f"v_readlane_b32 s{sNV}, v{T+2}, s{sOFF}", f"v_readlane_b32 s{sCNT}, v{T+1}, s{sT}", f"v_readlane_b32 s{sBASE}, v{CAD}, s{sT}")
    e(f"v_mov_b32 v{T+6}, {(0x3fff << 7) | 5}")
    e(f"s_sub_u32 s{sNV}, s{sNV}, s{sCNT}", f"s_lshl2_add_u32 s{sT2}, s{sNV}, s{sBASE}", f"v_add_u32 v{T+1}, s{sT2}, v{LAC}")
    e(f"ds_write_b32 v{T+1}, v{T+6}")
    assert D == 6
    sP0 = sT
    e(f"s_add_u32 s{sCNT}, s{sNV}, 15", f"s_lshr_b32 s{sCNT}, s{sCNT}, 4", f"s_sub_u32 s{sP0}, 0, s{sNV}", f"s_and_b32 s{sP0}, s{sP0}, 14",
      f"s_sub_u32 s{sCNT}, s{sCNT}, 1", f"s_cmp_gt_i32 s{sCNT}, 0", f"s_cselect_b32 s{sP0}, s{sP0}, 0", f"s_lshl_b32 s{sOFF}, s{sP0}, 2",
      f"s_sub_u32 s{sBASE}, s{sBASE}, s{sOFF}")

    def scatter(i):
        e(f"s_mov_b64 exec, s[{sVm[i]}:{sVm[i]+1}]")
        e(f"ds_write_b32 v{CA+i}, v{SKR+4*i+2}")

    e("s_waitcnt lgkmcnt(1)")
    for i in range(3):
        e(f"v_lshl_add_u32 v{CA+i}, v{CA+i}, 2, v{G1+i}")
    for i in range(3):
        scatter(i)
    e("s_mov_b64 exec, -1")
    e(f"s_cmp_gt_i32 s{sNW}, 192", "s_cbranch_scc1 L_r3")
    e.label("L_r3b")
    bea(3)
    ts.stamp("list")
    e(f"v_add_u32 v{LA}, s{sBASE}, v{LAC}", f"v_add_u32 v{LB}, s{sBASE}, v{LBC}",
      f"s_and_b32 s{sOFF}, s{sOFF}, 32", f"v_add_u32 v{T+4}, s{sOFF}, v{LA}", f"s_and_b32 s{SK+8}, s{sP0}, 6")
    e(f"s_mov_b32 s{sT2}, 0x00fffc38", f"s_mov_b32 s{sNR}, 0xffffff00", f"s_mov_b32 s{sBASE}, {SHST}")
    if P["PRIO"] == 1:
        e("s_cmp_lt_u32 s3, 4", "s_cbranch_scc1 L_np", "s_setprio 1")
        e.label("L_np")
    e("s_waitcnt lgkmcnt(0)", "s_barrier")
    ts.stamp("b4")
    if P["B4P"] == 0:
        bea(4)
    e(f"ds_read_b32 v{K}, v{T+4}", f"ds_read_b32 v{ENT+2}, v{LB}", f"ds_read_b32 v{KN}, v{LA} offset:{4*D}", f"ds_read_b32 v{NOD}, v{cNOD} offset:{CNT2}")
    if P["B4P"] == 1:
        bea(4)
    e(f"s_cmp_eq_u32 s{sNV}, 0", "s_cbranch_scc1 L_empty")

    def agaddr():
        e(f"v_lshlrev_b32 v{T+4}, 2, v{LANE}", f"s_lshl_b32 s{sOFF}, s3, 7")
        e(f"v_and_b32 v{NOD}, 0x7380, v{NOD}", f"v_xor_b32 v{NOD}, s{sOFF}, v{NOD}")
        e(f"v_alignbit_b32 v{NOD}, v{NOD}, v{NOD}, 12")
        m = [f"s[{q}:{q+1}]" for q in sVm] + ["vcc"]
        for j in range(5):
            e(f"v_cmp_eq_u32 {m[j]}, {j}, v{NOD}")
        for j in range(5):
            e(f"s_ff1_i32_b64 s{sNODE+j}, {m[j]}", f"s_mul_i32 s{sNODE+j}, s{sNODE+j}, 1152", f"v_add_u32 v{eAG[j]}, s{sNODE+j}, v{T+4}")

    AL = P["ALIGN"]

    def al():
        if AL:
            e(".p2align 3")

    def ea_reads():
        e(f"v_lshrrev_b32 v{T}, 21, v{ENT+2}", f"v_lshl_add_u32 v{T+3}, v{T}, 3, s{sBASE}", f"v_lshl_add_u32 v{T}, v{T}, 5, v{EAC}")
        e(f"ds_read_b64 {vr(ENT,2)}, v{T+3}")
        e(f"ds_read_b128 {vr(EA0,4)}, v{T}")

    def wfr(*qs):
        for q in qs:
            e(f"ds_read_b128 {vr(WF[q],4)}, v{eWF} offset:{1024*q}")

    def zq(q):
        e(f"ds_read_b128 {vr(RW+4*q,4)}, v{ZAD}", f"ds_read_b128 {vr(RW+16+4*q,4)}, v{ZAD}")

    def pq(j):
        p = PQ + 2 * (j % 2)
        if P["PQP"]:
            pr = [f"v_perm_b32 v{p}, v{T+1}, v{T+1}, v{(MP, 254)[j%2]}", f"v_perm_b32 v{p+1}, v{T+1}, v{T+1}, v{(MQ, 255)[j%2]}"]
            return pr if j % 2 else [f"v_cvt_pk_bf16_f32 v{T+1}, v{AGN+j}, v{AGN+j+1}"] + pr
        return [f"v_cvt_pk_bf16_f32 v{T+1+j%2}, v{AGN+j}, v{AGN+j}", f"v_and_b32 v{p}, v{MP}, v{T+1+j%2}", f"v_and_b32 v{p+1}, v{MQ}, v{T+1+j%2}"]

    def head(kind):
        if P["PRIO"] in (4, 5) and kind != "first":
            e("s_setprio 3")
        e(f"s_waitcnt lgkmcnt({0 if kind == 'first' else 2})"); al()
        for q in range(4):
            e(f"v_mfma_f32_4x4x4_16b_bf16 {vr(AGN+4*q,4)}, {vr(ENT,2)}, {vr(CGF,2)}, 0 cbsz:4 abid:{2*q}")
        e(f"v_lshlrev_b32 v{K}, 3, v{KN}", f"v_and_b32 v{K}, s{sT2}, v{K}")
        rd = []
        if kind != "last":
            e(f"v_add_u32 v{LA}, 64, v{LA}", f"v_add_u32 v{LB}, 64, v{LB}")
            rd = [f"ds_read_b32 v{KN}, v{LA} offset:{4*D}", f"ds_read_b32 v{ENT+2}, v{LB}"]
        if kind != "first":
            e("s_waitcnt lgkmcnt(0)"); al()
        groups = [rd + (pq(0) if kind != "first" else []), []]
        for h in range(2):
            e(f"v_smfmac_f32_32x32x32_bf16 {vr(RW+16*h,16)}, {vr(EA0,4)}, {vr(WRF+8*h,8)}, v{SIX}")
            e(*groups[h])

    def pks(j):
        t = TP + 8 * (j % 2)
        for h in range(2):
            r = RW + 16 * h + j
            rp = r & ~1
            sel = "op_sel:[0,1,0] op_sel_hi:[1,1,1]" if r & 1 else "op_sel_hi:[1,0,1]"
            for q in range(2):
                a = ACC + 4 * h + 2 * q
                e(f"v_pk_fma_f32 {vr(a,2)}, {vr(t+4*h+2*q,2)}, {vr(rp,2)}, {vr(a,2)} {sel}")

    def mf(j, h):
        t, p, s = TP + 8 * (j % 2), PQ + 2 * (j % 2), XR + 4 * (j % R)
        e(f"v_mfma_f32_16x16x16_bf16 {vr(t+4*h,4)}, {vr(p,2)}, {vr(s+2*h,2)}, 0")

    def rl(q, lane):
        e(f"v_readlane_b32 s{SK + q % 8}, v{K}, {lane}")

    def sand(q):
        e(f"s_and_b32 s{sOFF}, s{SK + q % 8}, s{sNR}")

    def xl(q):
        e(f"buffer_load_dwordx4 {vr(XR + 4 * (q % R),4)}, v{X16}, {sr(sX)}, s{sOFF} offen {str(P['XPOL']).replace('+', ' ')}".rstrip())

    def body(last):
        for j in range(0, 16, 2):
            ld = not last or j + D < 16
            if not last or j == 0:
                e.label(f"L_{'f' if last else 'j'}{j}")
            nx = pq(j + 1)
            if P["PRIO"] == 4 and j % 4 == 0 and j:
                e(f"s_setprio {3 - j // 4}")
            if P["PRIO"] == 5:
                e(f"s_setprio {3 - (j // 2) % 4}")
            e(f"s_waitcnt vmcnt({D-1 if ld else 15-j})"); al()
            mf(j, 0)
            if ld:
                rl(j + D, j)
            e(*nx[:1]); mf(j, 1); e(*nx[1:])
            if ld and P["SCH"] == 2:
                sand(j + D); e(f"s_waitcnt vmcnt({D-2})"); xl(j + D)
            elif ld:
                sand(j + D); xl(j + D); e(f"s_waitcnt vmcnt({D-1})")
            else:
                e(f"s_waitcnt vmcnt({14-j})"); al()
            nx = pq(j + 2) if j < 14 else []
            mf(j + 1, 0)
            if ld:
                rl(j + 1 + D, j + 1)
            e(*nx[:1]); mf(j + 1, 1); e(*nx[1:])
            if last and j == 2 and P["AGP"] == 2:
                agaddr(); al()
            if j == 2 and not last:
                e("s_waitcnt lgkmcnt(0)")
                ea_reads(); al()
            if ld:
                sand(j + 1 + D)
            e(f"s_set_gpr_idx_on s{SK + j % 8}, gpr_idx(SRC2,DST)")
            xl(j + 1 + D) if ld else al()
            pks(j)
            e(f"s_set_gpr_idx_idx s{SK + (j + 1) % 8}")
            if j == 14 and not last:
                e(f"s_sub_u32 s{sCNT}, s{sCNT}, 1")
            al()
            pks(j + 1)
            if j % 4 == 2 and not last:
                zq(j // 4)
            if last and j >= 6 and P["WFT"]:
                wfr(*((14, 15) if j == 6 else (j - 2, j - 1)))
            e("s_set_gpr_idx_off")

    e("s_waitcnt lgkmcnt(3)")
    e(f"v_lshlrev_b32 v{K}, 3, v{K}", f"v_and_b32 v{K}, s{sT2}, v{K}")
    if late_wf:
        wfr(*range(NK))
    NB5 = P["NB5"]

    def pair(q):
        rl(q, q); rl(q + 1, q + 1)
        sand(q); xl(q); sand(q + 1); xl(q + 1)

    for q in (2, 4, 6):
        e(f"s_cmp_eq_u32 s{SK+8}, {q}", f"s_cbranch_scc1 L_p{q}")
    for q0 in (0, 2, 4, 6):
        e.label(f"L_p{q0}")
        for i in range(NB5):
            pair(q0 + 2 * i)
        if P["AGP"] == 0:
            e("s_waitcnt lgkmcnt(0)")
            agaddr()
        e(f"s_waitcnt vmcnt({2*NB5 + (1 if P['XPF'] and P['XPOS'] >= 10 and ORDER.index(P['XPOS'] - 10) >= max(ORDER.index(q) for q in bstage) else 0)}) lgkmcnt(0)", "s_barrier")
        ea_reads()
        for i in range(NB5, 3):
            pair(q0 + 2 * i)
        if q0 < 6:
            e("s_branch L_pd")
    e.label("L_pd")
    if P["AGP"] == 1:
        agaddr()
    ts.stamp("b5")
    head("first")
    e(f"s_set_gpr_idx_on s{sP0}, gpr_idx(SRC0,SRC1)")
    e.idx_range, keep = {("v", i) for i in range(AGN, AGN + 16)}, e.idx_range
    e(pq(0)[0])
    e.idx_range = keep
    e("s_set_gpr_idx_off")
    e(*pq(0)[1:])
    e("s_waitcnt lgkmcnt(0)")
    ea_reads()
    e(f"s_cmp_eq_u32 s{sCNT}, 0", "s_cbranch_scc1 L_f0")
    for j in range(0, 14, 2):
        e(f"s_cmp_eq_u32 s{sP0}, {j}", f"s_cbranch_scc1 L_j{j}")
        if j % 4 == 2:
            zq(j // 4)
    e("s_branch L_j14")
    if P["LAL"] < 0:
        e(".p2align 3")
    else:
        e(".p2align 6")
        for _ in range(P["LAL"] // 4):
            e.raw("    s_nop 0")
    e.label("L_loop")
    head("mid")
    body(False)
    e(f"s_cmp_lg_u32 s{sCNT}, 0", "s_cbranch_scc1 L_loop")
    head("last")
    body(True)
    e.label("L_swept")
    ts.stamp("swept")
    e(f"s_add_u32 s{sROFF}, s{sROFF}, {CAPW}", f"s_cmp_lt_u32 s{sROFF}, s{sN}", "s_cbranch_scc1 L_again")
    AF, DD, OB, OT = ACC, 160, 64, 80
    if P["EPRIO"] >= 0:
        e(f"s_setprio {P['EPRIO']}")
    for s in range(5):
        for w in range(4):
            e(f"v_cvt_pk_bf16_f32 v{RW+4*s+w}, v{ACC+8*s+w}, v{ACC+8*s+4+w}")
        for w in (0, 2):
            e(f"ds_write2_b32 v{eAG[s]}, v{RW+4*s+w}, v{RW+4*s+w+1} offset0:{72*w} offset1:{72*w+72}")
    NPRE = 16
    if not P["WFT"]:
        wfr(*range(NK, 16))
    e(f"s_waitcnt lgkmcnt({0 if P['WFT'] else NPRE - NK})", "s_barrier")
    ts.stamp("agb")
    lq = [f"w{q}" for q in range(NPRE)]

    def lop(tag, text):
        e(text); lq.append(tag)

    def lwait(*tags):
        n = len(lq) - 1 - max(lq.index(t) for t in tags)
        e(f"s_waitcnt lgkmcnt({min(n, 15)})")

    def afrag(k, ss=range(4)):
        for s in ss:
            lop(f"a{k}{s}", f"ds_read_b128 {vr(AF+16*k+4*s,4)}, v{eFR} offset:{AGL + 4608*k + 64*s}")

    def post(k, pol=P['OUTPOL']):
        d, o = DD + 16 * (k % 2), OB + 8 * (k % 2)
        x = []
        for r in range(2):
            for c in range(2):
                x.append(f"v_cvt_pk_bf16_f32 v{o+4*r+c}, v{d+8*c+r}, v{d+8*c+4+r}")
                x.append(f"v_cvt_pk_bf16_f32 v{OT+2*r+c}, v{d+8*c+r}, v{d+8*c+4+r}")
                x.append(f"v_cvt_pk_bf16_f32 v{o+4*r+2+c}, v{d+8*c+r+2}, v{d+8*c+4+r+2}")
            for c in range(2):
                x.append(f"v_mov_b32_dpp v{o+4*r+c}, v{o+4*r+2+c} row_ror:8 row_mask:0xf bank_mask:0xc")
            for c in range(2):
                x.append(f"v_mov_b32_dpp v{o+4*r+2+c}, v{OT+2*r+c} row_ror:8 row_mask:0xf bank_mask:0x3")
            x.append(f"buffer_store_dwordx4 {vr(o+4*r,4)}, v{eST}, {sr(sOUT)}, s{sEO} offen offset:{256*r} {pol}")
        x.append(f"s_add_u32 s{sEO}, s{sEO}, 4096")
        return x

    def tile(k, pend):
        d = DD + 16 * (k % 2)
        for s in range(4):
            if k == 0:
                lwait(f"a0{s}", f"w{4*s+3}")
            elif s == 0:
                lwait(f"a{k}3")
            for t in range(4):
                c = "0" if s == 0 else vr(d + 4 * t, 4)
                e(f"v_mfma_f32_16x16x32_bf16 {vr(d+4*t,4)}, {vr(AF+16*k+4*s,4)}, {vr(WF[4*s+t],4)}, {c}")
                if 4 * s + t >= 4:
                    e(*pend[:2]); pend = pend[2:]
            if k == 0 and s == 0:
                afrag(1)
            if k == 0 and s == 1:
                afrag(2)
        e(*pend)

    for s in range(4):
        afrag(0, [s])
        for q in range(max(NPRE, 4 * s), 4 * s + 4):
            lop(f"w{q}", f"ds_read_b128 {vr(WF[q],4)}, v{eWF} offset:{1024*q}")
    tile(0, [])
    tile(1, post(0))
    e("s_cmp_ge_u32 s3, 4", "s_cbranch_scc1 L_two")
    tile(2, post(1))
    e(*post(2, P['LASTPOL']))
    e.label("L_stored")
    ts.stamp("stored")
    if P["DIAGW"] and P["DIAGAT"] == "fin":
        e("s_waitcnt vmcnt(0)")
        ts.stamp("fin")
    if P["DIAGW"]:
        e(f"s_add_u32 s6, s{sTSP+1}, {P['DIAGW']}", "s_min_u32 s6, s6, 30000")
        e.label("L_diag")
        e("s_memrealtime s[4:5]", "s_waitcnt lgkmcnt(0)", f"s_sub_u32 s4, s4, s{sTSP}", "s_cmp_lt_u32 s4, s6", "s_cbranch_scc1 L_diag")
    if P["TS"]:
        e("s_waitcnt vmcnt(0)")
        ts.stamp("end")
        e(f"s_lshl_b32 s{sT}, s2, 3", f"s_add_u32 s{sT}, s{sT}, s3", f"s_lshl_b32 s{sT}, s{sT}, 8", f"s_add_u32 s{sT}, s{sT}, {WS_TS}")
        e(f"v_lshl_add_u32 v{T}, v{LANE}, 2, s{sT}", f"global_store_dword v{T}, v{TSV}, s[14:15]")
        if P["DBG"]:
            e(f"s_cmp_lg_u32 s2, {P['DBG']}", "s_cbranch_scc1 L_done", "s_cmp_lg_u32 s3, 0", "s_cbranch_scc1 L_done")
            e("s_load_dwordx2 s[4:5], s[0:1], 72", f"v_readlane_b32 s{sT}, v{TSV}, 0", f"v_lshlrev_b32 v{T}, 2, v{LANE}")
            e(f"v_subrev_u32 v{TSV}, s{sT}, v{TSV}", "s_waitcnt lgkmcnt(0)", f"global_store_dword v{T}, v{TSV}, s[4:5]")
    e.label("L_done")
    e("s_endpgm")
    e.label("L_again")
    e("s_waitcnt vmcnt(0) lgkmcnt(0)", "s_barrier")
    init_round(False)
    for i in range(32):
        e(f"v_mov_b32 v{RW+i}, 0")
    e(f"v_add_u32 v{RLEN}, v{RLEN}, v{RBASE}", f"v_subrev_u32 v{RLEN}, {CAPW}, v{RLEN}", f"v_max_i32 v{RLEN}, 0, v{RLEN}")
    e(f"v_subrev_u32 v{RBASE}, {CAPW}, v{RBASE}", f"v_max_i32 v{RBASE}, 0, v{RBASE}", f"v_sub_u32 v{RLEN}, v{RLEN}, v{RBASE}")
    e(f"v_add_u32 v{RG0}, {CAPW}, v{RG0}", f"s_sub_i32 s{sNW}, s{sNW}, {CAPW}", f"v_lshl_add_u32 v{T}, v{RBASE}, 2, v{cMAPW}")
    e("s_waitcnt lgkmcnt(0)", "s_barrier")
    e.label("L_clip")
    e(f"v_add_u32 v{T+2}, v{RBASE}, v{RLEN}", f"v_min_i32 v{T+2}, {CAPW}, v{T+2}", f"v_sub_u32 v{T+2}, v{T+2}, v{RBASE}", f"v_add_u32 v{T+2}, v{T+2}, v{cODD}")
    e.label("L_masks")
    e(*cmps)
    e("s_nop 0", "s_branch L_mapw")
    e.label("L_map2")
    e(f"v_add_u32 v{T}, {8*MU}, v{T}", f"v_subrev_u32 v{T+2}, {2*MU}, v{T+2}")
    e("s_branch L_masks")
    e.label("L_r1")
    e(f"ds_read_b32 v{G1+3}, v{cMAP1} offset:768", f"ds_read_b32 v{G2+6}, v{cMAP2} offset:768")
    e("s_waitcnt lgkmcnt(0)")
    e(f"v_lshl_add_u32 v{G2+6}, v{G2+6}, 5, v{X16}")
    e("s_branch L_r1b")
    e.label("L_r1c")
    skld(3)
    e("s_branch L_r1d")
    for i in range(4):
        e.label(f"L_skre{i}")
        e(f"s_mov_b32 s{SK+13}, {SPIN}")
        e.label(f"L_skrl{i}")
        e("s_mov_b64 exec, vcc")
        e(skload(i), f"s_sub_u32 s{SK+13}, s{SK+13}, 1", "s_cbranch_scc1 L_done", "s_waitcnt vmcnt(0)")
        skbad(i)
        e("s_nop 0", f"s_cbranch_vccnz L_skrl{i}", "s_mov_b64 exec, -1", f"s_branch L_skok{i}")
    if P["HINT"]:
        e.label("L_hint")
        e(f"s_mov_b32 s{SK+13}, {SPIN}")
        e.label("L_hint2")
        e("s_mov_b64 exec, vcc")
        e(hpoll, f"s_sub_u32 s{SK+13}, s{SK+13}, 1", "s_cbranch_scc1 L_done", "s_waitcnt vmcnt(0)")
        hint_bad()
        e("s_nop 0", "s_cbranch_vccnz L_hint2", "s_mov_b64 exec, -1", "s_branch L_hinted")
    e.label("L_r2")
    skcheck(3)
    count(3)
    bea1(6)
    entry(3)
    e("s_branch L_r2b")
    e.label("L_r3")
    e(f"ds_read_b32 v{CA+3}, v{CA+3} offset:{CNT2}", "s_waitcnt lgkmcnt(0)")
    e(*place(3))
    e(f"ds_read_b32 v{G1+3}, v{G1+3} offset:{START}", "s_waitcnt lgkmcnt(0)")
    e(f"v_lshl_add_u32 v{CA+3}, v{CA+3}, 2, v{G1+3}")
    scatter(3)
    e("s_mov_b64 exec, -1", "s_branch L_r3b")
    e.label("L_tag")
    e(f"v_mov_b32 v{T+3}, s{sTAG}", f"s_mov_b32 s{sT}, {WS_W}")
    e(f"buffer_store_dword v{T+3}, v{cMAP1}, {sr(sTAB)}, s{sT} offen sc1")
    e("s_branch L_tagged")
    e.label("L_empty")
    e("s_waitcnt vmcnt(0) lgkmcnt(0)", "s_barrier")
    agaddr()
    if late_wf:
        wfr(*range(NK))
    if P["WFT"]:
        wfr(*range(NK, 16))
    e("s_branch L_swept")
    e.label("L_two", pad=8)
    e(*post(1, P['LASTPOL']))
    e("s_branch L_stored")
    e.label("L_poll")
    e(poll1, f"s_sub_u32 s{sCNT}, s{sCNT}, 1", "s_cbranch_scc1 L_done", "s_waitcnt vmcnt(0)")
    tagcheck()
    e("s_cbranch_execnz L_poll", "s_branch L_polled")
    e.label("L_rank2")
    for j in range(5):
        e(f"ds_read_b32 v{CN+j}, v{cROW} offset:{CNT2 + 128*j}")
    if P["ENP"] == 0:
        for i in range(3):
            entry(i)
    e("s_waitcnt lgkmcnt(0)")
    e.label("L_end")
    e("s_branch L_ranked")
    return e.text(), LDS, 256, 102


HEADER = """; Kernarg layout for this problem (88 bytes, ptrs only, base s[0:1]):
"""


def generate(**kw):
    P = dict(DEF)
    P.update(kw)
    k, lds, v, s = gen(P)
    n = NAME + "_kernel"
    out = HEADER
    out += f"; @launch grid=(256,1,1) block=(512,1,1) lds={lds}\n"
    out += '.amdgcn_target "amdgcn-amd-amdhsa--gfx950"\n.text\n'
    out += f".globl {n}\n.p2align 8\n.type {n},@function\n{n}:\n{k}"
    out += '.section .rodata,"a"\n'
    out += (f".p2align 6\n.amdhsa_kernel {n}\n  .amdhsa_next_free_vgpr {v}\n  .amdhsa_next_free_sgpr {s}\n"
            f"  .amdhsa_accum_offset {(v+3)//4*4}\n  .amdhsa_group_segment_fixed_size 0\n  .amdhsa_kernarg_size 88\n"
            f"  .amdhsa_user_sgpr_count 2\n  .amdhsa_user_sgpr_kernarg_segment_ptr 1\n  .amdhsa_system_sgpr_workgroup_id_x 1\n"
            f"  .amdhsa_float_denorm_mode_32 3\n.end_amdhsa_kernel\n")
    return out


if __name__ == "__main__":
    kw = {}
    for a in sys.argv[1:]:
        k, v = a.split("=", 1)
        kw[k] = int(v) if v.lstrip("-").isdigit() else v
    sys.stdout.write(generate(**kw))
```

```python
import sys, os
sys.path.insert(0, os.path.dirname(os.path.abspath(__file__)))
from emit import Emitter

NAME = "gather_scatter__tensor_product_equiv_mace__graph"
N, E = 10000, 320000
CH, NCH, CS = 1250, 256, 1280
WS_TAB, WS_W, WS_SK, WS_EA, WS_TS = 0, 0x80000, 0x100000, 0x500000, 0x2000000
WS_FL = 0x90000
CAPW, GAP = 224, 16
CAP = 8 * CAPW
SPIN = 200000

DEF = dict(WV=0, EAF=1, TPW=0, XPOL="", WSO=0, XP2=0, XQ=3, PPOS=0, KE=2, B4P=1, RWZ=3, DH=0, FL=1, FRP=0, FP=1, FQ=2, NREP=8, LAL=-1, XPOS=0, PQP=1, NB5=1, AGP=2, ENP=0, PW=0, WFT=1, WFK=6, LASTPOL='sc1', EPRIO=0, BIAS=30, SCH=2, ALIGN=0, PRIO=1, DIAGW=0, DIAGK=0, DIAGAT='tab', D=6, TS=0, DBG=0, APOL="nt", AEA="00011", BEA="001223", SKBAR=1, ABAR=2, XPF=18, CPF=2, MU=7, OUTPOL="sc1", LDPOL="sc1", WST=3, WOST=3, ACCZ=2, CPOS=2, WGN=0)

PART39 = [[3, 11, 21, 31, 36], [5, 8, 20, 27, 38], [0, 6, 7, 13, 39], [9, 14, 18, 25, 34], [10, 16, 19, 24, 32], [4, 12, 26, 29, 33], [1, 17, 23, 28, 37], [2, 15, 22, 30, 35]]
PART40 = [[1, 10, 15, 30, 39], [2, 9, 21, 28, 37], [4, 14, 22, 27, 31], [6, 12, 18, 24, 35], [3, 8, 16, 29, 38], [5, 13, 17, 26, 34], [0, 20, 23, 32, 36], [7, 11, 19, 25, 33]]
PARTS = {0: (PART39, PART40)}
PARTS[12] = ([[12, 16, 24, 26, 30], [8, 14, 15, 31, 36], [2, 10, 23, 34, 37], [5, 17, 18, 22, 38], [0, 1, 7, 19, 39], [3, 11, 20, 29, 35], [6, 9, 25, 27, 32], [4, 13, 21, 28, 33]],
    [[9, 12, 19, 28, 32], [3, 10, 22, 29, 37], [7, 8, 23, 26, 36], [0, 18, 20, 34, 38], [5, 6, 14, 21, 39], [4, 11, 16, 24, 35], [1, 15, 25, 27, 31], [2, 13, 17, 30, 33]])
PARTS[20] = ([[13, 17, 24, 26, 31], [4, 16, 25, 29, 36], [5, 19, 23, 28, 35], [1, 6, 8, 10, 39], [7, 9, 20, 27, 32], [3, 12, 14, 33, 34], [2, 15, 18, 22, 37], [0, 11, 21, 30, 38]],
    [[11, 12, 17, 20, 38], [3, 16, 26, 28, 34], [8, 10, 19, 29, 36], [7, 14, 25, 27, 31], [6, 13, 15, 24, 30], [0, 9, 22, 23, 39], [2, 4, 21, 32, 35], [1, 5, 18, 33, 37]])
PARTS[30] = ([[12, 16, 25, 29, 32], [0, 5, 9, 20, 39], [1, 18, 27, 34, 37], [7, 19, 22, 30, 35], [2, 6, 24, 26, 36], [4, 11, 13, 31, 33], [10, 15, 17, 21, 28], [3, 8, 14, 23, 38]],
    [[6, 9, 26, 28, 37], [1, 11, 24, 35, 38], [5, 17, 23, 31, 33], [8, 12, 21, 29, 36], [2, 4, 15, 22, 39], [7, 10, 14, 18, 34], [0, 16, 20, 30, 32], [3, 13, 19, 25, 27]])
PARTS[40] = ([[7, 13, 28, 29, 37], [10, 17, 22, 30, 36], [1, 4, 6, 23, 39], [9, 19, 26, 31, 33], [5, 12, 15, 18, 35], [2, 11, 16, 27, 34], [0, 8, 24, 25, 38], [3, 14, 20, 21, 32]],
    [[8, 17, 25, 31, 32], [3, 19, 22, 28, 38], [6, 15, 18, 33, 37], [2, 14, 24, 29, 39], [0, 12, 21, 27, 34], [1, 9, 13, 26, 36], [5, 7, 10, 23, 35], [4, 11, 16, 20, 30]])
PARTS[50] = ([[2, 19, 28, 35, 37], [0, 6, 11, 24, 39], [15, 17, 27, 29, 34], [1, 20, 30, 32, 38], [4, 7, 18, 23, 33], [9, 10, 12, 21, 31], [5, 13, 16, 25, 26], [3, 8, 14, 22, 36]],
    [[7, 15, 27, 30, 36], [8, 18, 19, 28, 38], [4, 14, 31, 33, 35], [6, 13, 20, 29, 39], [2, 3, 22, 23, 34], [0, 11, 12, 26, 37], [1, 9, 17, 24, 32], [5, 10, 16, 21, 25]])
PARTS[-10] = ([[5, 13, 17, 28, 34], [7, 12, 16, 30, 32], [1, 9, 25, 26, 38], [11, 14, 18, 22, 33], [0, 2, 10, 20, 39], [3, 6, 23, 35, 37], [15, 19, 21, 24, 29], [4, 8, 27, 31, 36]],
    [[0, 13, 22, 31, 37], [3, 8, 20, 28, 35], [4, 12, 16, 27, 34], [9, 11, 14, 18, 36], [5, 7, 19, 23, 39], [2, 15, 26, 30, 32], [6, 10, 17, 24, 38], [1, 21, 25, 29, 33]])
PARTS[-20] = ([[7, 13, 19, 20, 34], [6, 10, 23, 28, 30], [2, 5, 27, 29, 36], [0, 15, 22, 26, 38], [4, 11, 25, 31, 37], [1, 3, 9, 12, 39], [14, 18, 21, 24, 33], [8, 16, 17, 32, 35]],
    [[5, 9, 16, 20, 36], [8, 10, 15, 21, 33], [3, 7, 22, 25, 34], [4, 14, 18, 26, 28], [6, 12, 17, 29, 37], [0, 11, 23, 35, 39], [2, 19, 27, 30, 32], [1, 13, 24, 31, 38]])


def vr(a, n):
    return f"v[{a}:{a+n-1}]" if n > 1 else f"v{a}"


def sr(a, n=4):
    return f"s[{a}:{a+n-1}]"


def scan_dpp(e, v, full):
    for k in (1, 2, 4, 8):
        e(f"v_add_u32_dpp v{v}, v{v}, v{v} row_shr:{k} row_mask:0xf bank_mask:0xf")
    e(f"v_add_u32_dpp v{v}, v{v}, v{v} row_bcast:15 row_mask:0xa bank_mask:0xf")
    if full:
        e(f"v_add_u32_dpp v{v}, v{v}, v{v} row_bcast:31 row_mask:0xc bank_mask:0xf")


class TS:
    last = None

    def __init__(self, e, on, pair, vreg):
        self.e, self.on, self.pair, self.v, self.names = e, on, pair, vreg, []
        TS.last = self

    diag = None

    def stamp(self, name):
        if self.diag and self.diag[0] == name:
            self.e("s_memrealtime s[4:5]", "s_waitcnt lgkmcnt(0)", f"s_sub_u32 s4, s4, s{self.pair}", f"s_mul_i32 s{self.pair+1}, s4, {self.diag[1]}")
        if self.on and (self.on == 1 or name in str(self.on).split(",") or name in ("start", "end")):
            e, p = self.e, self.pair
            e(f"s_memrealtime s[{p}:{p+1}]", "s_waitcnt lgkmcnt(0)", f"v_writelane_b32 v{self.v}, s{p}, {len(self.names)}")
            self.names.append(name)


class VQ:
    def __init__(self, e):
        self.e, self.q = e, []

    def op(self, tag, text):
        self.e(text)
        self.q.append(tag)

    def n(self, tag):
        idx = max(i for i, t in enumerate(self.q) if t == tag)
        return len(self.q) - 1 - idx

    def wait(self, tag, extra=""):
        self.e(f"s_waitcnt vmcnt({self.n(tag)}) {extra}".strip())


def gen(P):
    e = Emitter()
    vq = VQ(e)
    D = P["D"]
    R = 8
    MAP, CNT2, WB, DEG, TOT, NODEOF, START, WR, WO = 0, 8192, 13312, 14336, 15360, 15616, 16384, 17408, 46080
    LIST = WO + 32768
    SHST = LIST + (CAP + 8 * GAP + 128) * 4
    EAST = SHST + CAP * 8
    assert SHST + CAP * 8 <= EAST
    ZERO = EAST + CAP * 32
    LDS = ZERO + 64
    AGL = 0
    ACNT, ASTART, AINV, ASKS = 23552, 24576, 25600, 30720
    assert ASKS + CS * 12 <= WO and LDS <= 163840
    LANE, X16, RLEN, RBASE, RG0, ONE, PFV = 1, 2, 3, 4, 5, 6, 7
    T = 8
    ACC, RW, XR, TP, AGN, PQ, EA0, EA1, WRF, CGF, ENT = 16, 64, 96, 128, 144, 160, 164, 168, 172, 188, 192
    MP, MQ = CGF + 2, CGF + 3
    SIX, ZAD = EA1, EA1 + 1
    eAG, eFR, eST, eWF, NOD = [208, 209, 210, 211, 212], 213, 214, 215, 205
    NK = P["WFK"]
    assert NK == 6
    WF = [216 + 4 * q for q in range(NK)] + [XR + 4 * q for q in range(8)] + [AGN, AGN + 4]
    K, KN, LA, LB, EAC, LAC, LBC, RT, TSV = 196, 197, 198, 199, 200, 201, 202, 203, 204
    cODD, cMAPW, cMAP1, cMAP2, cL12, cDEG, cSH, cR21, cROW, cTIE, cBIN, cNOD, cLST, c380 = range(240, 254)
    cFLG = 195
    e.idx_range = {("v", i) for i in range(ACC, ACC + 48)}
    sX, sTAB, sSK, sEA, sA0, sA1, sOUT = 16, 20, 24, 28, 32, 36, 40
    sB, sNB, sNCNT, sN, sROFF, sNR, sNV, sBASE, sEM, sCNT, sT, sT2 = 44, 45, 46, 47, 48, 49, 50, 51, 52, 53, 54, 55
    sNODE = 56
    sOFF = 61
    sTAG, sTAG2 = 62, 63
    SK = 64
    sV = 80
    sM0, sEO = 86, 87
    sASG = [90, 91, 92, 93, 94]
    sNW, sK4 = 95, 98
    sA2, sTSP = 96, 100
    sFL = 88
    ts = TS(e, P["TS"], sTSP, TSV)
    if P["DIAGW"]:
        ts.diag = (P["DIAGAT"], P["DIAGK"])
    apol, ldpol = P["APOL"], P["LDPOL"]
    astage = [int(c) for c in str(P["AEA"]).zfill(5)]
    bstage = [int(c) for c in str(P["BEA"]).zfill(6)]

    def srd(s, lo, hi, off, size):
        if off is None:
            e(f"s_mov_b32 s{s}, s{lo}", f"s_mov_b32 s{s+1}, s{hi}")
        else:
            e(f"s_add_u32 s{s}, s{lo}, {off}", f"s_addc_u32 s{s+1}, s{hi}, 0")
        e(f"s_mov_b32 s{s+2}, {size}", f"s_mov_b32 s{s+3}, 0x20000")

    def init_round(first):
        e(f"v_lshlrev_b32 v{T+3}, 2, v0", f"v_mov_b32 v{T+4}, 0x00700000", f"v_mov_b32 v{T+5}, 0")
        for i in range(4):
            e(f"ds_write_b32 v{T+3}, v{T+4} offset:{MAP + i*2048}")
        for i in range(4 if first else 3):
            e(f"ds_write_b32 v{T+3}, v{T+5} offset:{CNT2 + i*2048}")

    DSTV, SRCV, SHV, BK, BA, RK, NL, KEY, CT, ST, PS = 64, 68, 72, 80, 84, 88, 92, 96, 100, 104, 108
    TABV = 112
    OUTV = 128
    IV = 156
    CGR = 120
    if P["TS"]:
        e("s_memrealtime s[92:93]")
    e("s_cmp_ge_u32 s2, 256", "s_cbranch_scc1 L_done")
    e("s_load_dwordx4 s[4:7], s[0:1], 8")
    e("s_load_dwordx4 s[8:11], s[0:1], 24")
    e("s_load_dwordx2 s[14:15], s[0:1], 80")
    e(f"s_load_dwordx2 s[{SK}:{SK+1}], s[0:1], 0")
    e(f"s_load_dwordx2 s[{SK+2}:{SK+3}], s[0:1], 40")
    e(f"s_load_dwordx4 s[{SK+4}:{SK+7}], s[0:1], 48")
    e("s_load_dwordx2 s[12:13], s[0:1], 64")

    def cpf():
        e(f"s_getpc_b64 s[{sV}:{sV+1}]")
        e.label("L_pc")
        e(f"s_and_b32 s{sB}, s2, 0xf8", f"s_lshl_b32 s{sB}, s{sB}, 6")
        e(f"v_and_b32 v{T+3}, 0x180, v{T+2}", f"v_add_u32 v{T+3}, s{sB}, v{T+3}", f"v_min_u32 v{T+3}, L_end-L_pc, v{T+3}")
        e(f"v_mov_b32 v{TABV+1}, s{sV+1}", f"v_add_co_u32 v{TABV}, vcc, s{sV}, v{T+3}", f"v_addc_co_u32 v{TABV+1}, vcc, 0, v{TABV+1}, vcc")
        vq.op("cpf", f"global_load_dword v{TSV+1}, {vr(TABV,2)}, off")

    def srd_hi(s, size):
        e(f"s_mov_b32 s{s+2}, {size}", f"s_mov_b32 s{s+3}, 0x20000")

    def srd_lo(s, lo, off):
        e(f"s_add_u32 s{s}, s{lo}, {off}", f"s_addc_u32 s{s+1}, s{lo+1}, 0")

    e(f"v_lshlrev_b32 v{T+2}, 3, v0")
    if P["CPF"] == 2:
        cpf()
    e(f"v_lshrrev_b32 v{T}, 6, v0", f"v_and_b32 v{LANE}, 63, v0", f"v_lshlrev_b32 v{T+1}, 2, v0", f"v_mov_b32 v{T+5}, 0")
    e(f"v_readfirstlane_b32 s3, v{T}")
    e(f"ds_write_b32 v{T+1}, v{T+5} offset:{ACNT}", f"ds_write_b32 v{T+1}, v{T+5} offset:{AINV+3072}")
    e(f"s_mul_i32 s{sT}, s2, {CH*4}", f"s_mul_i32 s{sT2}, s2, {CH*8}", f"s_mul_i32 s{sOFF}, s2, {CH*32}")
    e(f"v_lshlrev_b32 v{X16}, 4, v{LANE}", f"v_lshlrev_b32 v{T+7}, 4, v0", f"v_mov_b32 v{ONE}, 1")
    e(f"s_lshl_b32 s{sEM}, s3, 10", f"s_add_u32 s{sEM}, s{sEM}, {EAST}", f"s_movk_i32 s{sCNT}, 4096", f"s_movk_i32 s{sNV}, 8192")
    srd_hi(sA0, CH * 4); srd_hi(sA1, CH * 4); srd_hi(sA2, CH * 8); srd_hi(sEA, CH * 32)
    if P["DIAGW"]:
        e(f"s_memrealtime s[{sTSP}:{sTSP+1}]")
    e("s_waitcnt lgkmcnt(0)")
    if P["WSO"]:
        e(f"s_add_u32 s14, s14, {P['WSO'] << 20}", "s_addc_u32 s15, s15, 0")
    if P["TS"]:
        e(f"v_writelane_b32 v{TSV}, s92, 0")
        ts.names.append("first")
    ts.stamp("start")
    srd_lo(sA0, 6, f"s{sT}")
    for i in range(3):
        o = f"0 offen offset:{2048*i}" if i < 2 else f"s{sCNT} offen"
        vq.op("dst", f"buffer_load_dword v{DSTV+i}, v{T+1}, {sr(sA0)}, {o} {apol}")
    srd_lo(sA1, 4, f"s{sT}")
    if P["ABAR"] == 2:
        e("s_barrier")
    for i in range(3):
        o = f"0 offen offset:{2048*i}" if i < 2 else f"s{sCNT} offen"
        vq.op("src", f"buffer_load_dword v{SRCV+i}, v{T+1}, {sr(sA1)}, {o} {apol}")
    if P["WV"]:
        e(f"v_mov_b32 v{CGR+2}, {WS_W}")
        vq.op("tagw", f"global_load_dword v{CGR+1}, v{CGR+2}, s[14:15]")
    else:
        e(f"s_load_dword s{sTAG}, s[14:15], {WS_W}")
    if P["CPF"] == 1:
        cpf()
    srd_lo(sA2, 8, f"s{sT2}")
    srd_lo(sEA, 10, f"s{sOFF}")
    if P["ABAR"] == 1:
        e("s_barrier")
    for i, o in enumerate(("0", f"s{sCNT}", f"s{sNV}")):
        vq.op("sh", f"buffer_load_dwordx2 {vr(SHV+2*i,2)}, v{T+2}, {sr(sA2)}, {o} offen {apol}")

    def aea(p):
        for i in range(5):
            if astage[i] == p:
                e(f"s_add_u32 m0, s{sEM}, {8192*i}", f"s_mov_b32 s{sT}, {8192*i}")
                vq.op("ea", f"buffer_load_dwordx4 v{T+7}, {sr(sEA)}, s{sT} offen {apol} lds")
        if P["WST"] == p:
            weights()
        if P["WOST"] == p:
            wout()

    def weights():
        e("s_cmp_lt_u32 s3, 4")
        e(f"s_cselect_b32 s{sX}, s{SK+4}, s{SK+2}", f"s_cselect_b32 s{sX+1}, s{SK+5}, s{SK+3}", f"s_movk_i32 s{sT}, 128",
          f"s_cselect_b32 s{sX+2}, s{sCNT}, s{sT}", f"s_mov_b32 s{sX+3}, 0x20000")
        e(f"s_min_u32 s{sT}, s3, 5", f"s_lshl_b32 s{sT}, s{sT}, 10", f"s_add_u32 m0, s{sT}, {WR}", f"s_and_b32 s{sT}, s{sT}, 0xc00")
        vq.op("w", f"buffer_load_dwordx4 v{X16}, {sr(sX)}, s{sT} offen lds")

    def wout():
        srd(sOUT, SK + 6, SK + 7, None, 32768)
        e(f"s_lshl_b32 s{sT2}, s3, 12", f"s_add_u32 m0, s{sT2}, {WO}")
        for i in range(4):
            vq.op("w", f"buffer_load_dwordx4 v{X16}, {sr(sOUT)}, s{sT2} offen offset:{i*1024} lds")

    aea(0)
    if not P["ABAR"]:
        e("s_barrier")
    e(f"s_mov_b32 s{SK+8}, 109951168", f"s_movk_i32 s{SK+9}, 625", f"s_movk_i32 s{SK+10}, 838")
    e(f"v_cmp_gt_u32 s[{sV+4}:{sV+5}], {CH-1024}, v0") if CH - 1024 <= 64 else e(f"s_movk_i32 s{sT}, {CH-1024}", f"v_cmp_gt_u32 s[{sV+4}:{sV+5}], s{sT}, v0")
    srd(sTAB, 14, 15, None, (WS_FL + 0x10000) if P["DH"] else WS_W + 64)
    init_round(True)
    if P["ACCZ"] == 9:
        for i in range(48):
            e(f"v_mov_b32 v{ACC+i}, 0")
    vq.wait("dst")
    ts.stamp("dst")
    for k in range(3):
        e(f"v_mul_hi_u32 v{BK+k}, v{DSTV+k}, s{SK+8}")
    for k in range(3):
        e(f"v_lshlrev_b32 v{BA+k}, 2, v{BK+k}")
        if k == 2:
            e(f"s_mov_b64 exec, s[{sV+4}:{sV+5}]")
        e(f"ds_add_rtn_u32 v{RK+k}, v{BA+k}, v{ONE} offset:{ACNT}")
    e("s_mov_b64 exec, -1")
    e("s_waitcnt lgkmcnt(0)", "s_barrier")
    ts.stamp("hist")
    e(f"ds_read_b128 {vr(CT,4)}, v{X16} offset:{ACNT}")
    def taghash():
        e(f"s_mul_i32 s{sTAG}, s{sTAG}, 0x9e3779b1", f"s_add_u32 s{sTAG}, s{sTAG}, 0x7f4a7c15")
        e(f"s_mul_i32 s{sTAG2}, s{sTAG}, 0x85ebca6b", f"s_and_b32 s{sTAG2}, s{sTAG2}, 0xffc00000")
    if not P["WV"]:
        taghash()
    def tpw():
        e(f"s_not_b32 s{sT}, s{sTAG}")
        for k in range(4):
            e(f"v_mov_b32 v{TABV+4+k}, s{sT}")
        e(f"s_lshl_b32 s{sT}, s2, 3", f"s_add_u32 s{sT}, s{sT}, s3", f"s_lshl_b32 s{sT}, s{sT}, 8")
        e("s_mov_b64 exec, 0xffff")
        vq.op("tpw", f"buffer_store_dwordx4 {vr(TABV+4,4)}, v{X16}, {sr(sTAB)}, s{sT} offen sc1")
        e("s_mov_b64 exec, -1")
    if P["TPW"] == 1:
        tpw()
    aea(1)
    for k in range(3):
        e(f"v_mad_u32_u24 v{NL+k}, v{BK+k}, s{SK+9}, 15", f"v_lshrrev_b32 v{NL+k}, 4, v{NL+k}", f"v_sub_u32 v{NL+k}, v{DSTV+k}, v{NL+k}")
    e("s_waitcnt lgkmcnt(0)")
    e(f"v_add_u32 v{T+3}, v{CT}, v{CT+1}", f"v_add3_u32 v{T+3}, v{T+3}, v{CT+2}, v{CT+3}", f"v_mov_b32 v{T+4}, v{T+3}")
    scan_dpp(e, T + 4, True)
    e(f"v_sub_u32 v{ST}, v{T+4}, v{T+3}")
    for k in range(3):
        e(f"v_add_u32 v{ST+1+k}, v{ST+k}, v{CT+k}")
    e(f"ds_write_b128 v{X16}, {vr(ST,4)} offset:{ASTART}")
    for k in range(3):
        e(f"ds_read_b32 v{PS+k}, v{BA+k} offset:{ASTART}")
    vq.wait("src")
    for k in range(3):
        e(f"v_mul_u32_u24 v{KEY+k}, s{SK+10}, v{SRCV+k}", f"v_bfe_u32 v{KEY+k}, v{KEY+k}, 18, 5")
        e(f"v_lshl_or_b32 v{KEY+k}, v{NL+k}, 5, v{KEY+k}",
          f"v_lshlrev_b32 v{KEY+k}, 21, v{KEY+k}", f"v_lshl_or_b32 v{KEY+k}, v{SRCV+k}, 7, v{KEY+k}")
    e(f"v_lshlrev_b32 v{NL}, 5, v0", f"v_add_u32 v{NL+1}, {512*32}, v{NL}", f"v_add_u32 v{NL+2}, {1024*32}, v{NL}")
    e(f"s_mov_b32 s{sT2}, {ASKS}")
    vq.wait("sh", "lgkmcnt(0)")
    if P["WV"]:
        e(f"v_readfirstlane_b32 s{sTAG}, v{CGR+1}")
    for k in range(3):
        e(f"v_add_u32 v{PS+k}, v{PS+k}, v{RK+k}")
        e(f"v_lshlrev_b32 v{BA+k}, 2, v{PS+k}", f"v_mad_u32_u24 v{PS+k}, v{PS+k}, 12, s{sT2}")
        if k == 2:
            e(f"s_mov_b64 exec, s[{sV+4}:{sV+5}]")
        e(f"ds_write_b32 v{BA+k}, v{NL+k} offset:{AINV}")
        e(f"ds_write2_b32 v{PS+k}, v{SHV+2*k}, v{SHV+2*k+1} offset0:0 offset1:1")
        e(f"ds_write_b32 v{PS+k}, v{KEY+k} offset:8")
    e("s_mov_b64 exec, -1")
    if P["WV"]:
        taghash()
    if P["TPW"] == 2:
        tpw()
    aea(2)
    e(f"s_lshl_b32 s{sT}, s3, 7", f"v_lshl_add_u32 v{T+3}, v{LANE}, 3, s{sT}")
    e(f"ds_read_b64 {vr(CT,2)}, v{T+3} offset:{ACNT}", f"ds_read_b64 {vr(ST,2)}, v{T+3} offset:{ASTART}")
    e(f"s_mul_i32 s{sT}, s2, {CS*12}", f"s_add_u32 s{sT}, s{sT}, {WS_SK}")
    srd(sA0, 14, 15, f"s{sT}", CS * 12)
    e(f"s_mul_i32 s{sT}, s2, {CS*32}", f"s_add_u32 s{sT}, s{sT}, {WS_EA}")
    srd(sA1, 14, 15, f"s{sT}", (CH * 32 + 127) // 128 * 128 if P["EAF"] else CH * 32)
    e(f"v_lshrrev_b32 v{T+3}, 1, v0", f"v_lshlrev_b32 v{T+3}, 2, v{T+3}")
    e(f"v_and_b32 v{T+4}, 1, v0", f"v_lshlrev_b32 v{T+4}, 4, v{T+4}", f"v_add_u32 v{T+4}, {EAST}, v{T+4}", f"v_add_u32 v{T+6}, {ASKS}, v{T+7}")
    e("s_waitcnt lgkmcnt(0)", "s_barrier")
    ts.stamp("scat")
    e(f"ds_read_b128 {vr(OUTV,4)}, v{T+6}", f"ds_read_b128 {vr(OUTV+4,4)}, v{T+6} offset:8192")
    for i in range(5):
        e(f"ds_read_b32 v{IV+i}, v{T+3} offset:{AINV + i*1024}")

    def skst():
        vq.op("skst", f"buffer_store_dwordx4 {vr(OUTV,4)}, v{T+7}, {sr(sA0)}, 0 offen sc1")
        vq.op("skst", f"buffer_store_dwordx4 {vr(OUTV+4,4)}, v{T+7}, {sr(sA0)}, s{sNV} offen sc1")
    DH = P["DH"]
    if DH == 1:
        e("s_waitcnt lgkmcnt(5)")
        skst()
    aea(3)
    if DH == 2:
        e("s_waitcnt lgkmcnt(5)")
        skst()

    def frag_r(F0, t0, t1, t2):
        e(f"v_lshrrev_b32 v{t0}, 5, v{LANE}", f"v_lshlrev_b32 v{t0}, 10, v{t0}", f"v_and_b32 v{t1}, 15, v{LANE}", f"v_lshl_add_u32 v{t0}, v{t1}, 4, v{t0}")
        for i in range(8):
            e(f"ds_read_b128 {vr(F0+4*i,4)}, v{t0} offset:{WR + 2048*(i//4) + 256*(i%4)}")
        e(f"v_lshrrev_b32 v{t0}, 4, v{LANE}", f"v_lshlrev_b32 v{t0}, 5, v{t0}", f"v_and_b32 v{t1}, 3, v{LANE}", f"v_lshl_add_u32 v{t0}, v{t1}, 1, v{t0}")
        for v in range(4):
            e(f"ds_read_u16 v{F0+32+v}, v{t0} offset:{WR + 4096 + 8*v}")
        e(f"v_bfe_i32 v{t2}, v{LANE}, 4, 1", f"v_and_b32 v{t2}, 0x02020202, v{t2}", f"v_add_u32 v{t2}, 0x05040100, v{t2}")
        e("s_waitcnt lgkmcnt(0)")
        for h in range(2):
            for t in range(2):
                for ip in range(4):
                    e(f"v_perm_b32 v{WRF+8*h+2*ip+t}, v{F0+4*(2*ip+1)+t+2*h}, v{F0+4*(2*ip)+t+2*h}, v{t2}")
        e(f"v_lshl_or_b32 v{CGF}, v{F0+33}, 16, v{F0+32}", f"v_lshl_or_b32 v{CGF+1}, v{F0+35}, 16, v{F0+34}")

    def frag_o(F0, F1, t0, t1, sM):
        e(f"v_and_b32 v{t1}, 7, v{LANE}", f"v_lshrrev_b32 v{t0}, 4, v{LANE}", f"v_lshlrev_b32 v{t0}, 13, v{t0}", f"v_lshl_add_u32 v{t0}, v{t1}, 4, v{t0}",
          f"v_and_b32 v{t1}, 8, v{LANE}", f"s_and_b32 s{sM}, s3, 3", f"s_lshl_b32 s{sM}, s{sM}, 8", f"s_lshr_b32 s{sM+1}, s3, 2", f"s_lshl_b32 s{sM+1}, s{sM+1}, 7",
          f"s_add_u32 s{sM}, s{sM}, s{sM+1}", f"s_add_u32 s{sM}, s{sM}, {WO}", f"v_add3_u32 v{t0}, v{t0}, v{t1}, s{sM}")
        for ip in range(4):
            e(f"ds_read2st64_b64 {vr(F0+4*ip,4)}, v{t0} offset0:{4*ip} offset1:{4*ip+2}")
        e(f"s_mov_b32 s{sM}, 0x05040100", f"s_mov_b32 s{sM+1}, 0x07060302")
        for ip in range(4):
            e(f"s_waitcnt lgkmcnt({3-ip})")
            for t in range(4):
                e(f"v_perm_b32 v{F1+4*t+ip}, v{F0+4*ip+2+t//2}, v{F0+4*ip+t//2}, s{sM+t%2}")

    def consts():
        e(f"s_and_b32 s{sB}, s2, 7", f"s_lshl_b32 s{sB}, s{sB}, 5", f"s_lshr_b32 s{sT}, s2, 3", f"s_add_u32 s{sB}, s{sB}, s{sT}")
        e(f"s_mul_i32 s{sNB}, s{sB}, 625", f"s_add_u32 s{sNCNT}, s{sNB}, 640", f"s_add_u32 s{sNB}, s{sNB}, 15",
          f"s_lshr_b32 s{sNB}, s{sNB}, 4", f"s_lshr_b32 s{sNCNT}, s{sNCNT}, 4", f"s_sub_u32 s{sNCNT}, s{sNCNT}, s{sNB}")
        e(f"v_bfe_i32 v{SIX}, v{LANE}, 2, 1", f"v_and_b32 v{SIX}, 0xaaaa, v{SIX}", f"v_add_u32 v{SIX}, 0x4444, v{SIX}")
        e(f"v_mov_b32 v{ZAD}, {ZERO}", f"v_and_b32 v{T+3}, 60, v{T+1}", f"v_add_u32 v{T+3}, v{T+3}, v{ZAD}", f"ds_write_b32 v{T+3}, v{T+5}")
        e(f"v_and_b32 v{T+3}, 4, v{LANE}", f"v_lshlrev_b32 v{T+3}, 2, v{T+3}", f"v_mov_b32 v{T+4}, 0xffff", f"v_lshlrev_b32 v{T+4}, v{T+3}, v{T+4}")
        e(f"v_bfe_i32 v{T+3}, v{LANE}, 3, 1", f"v_and_b32 v{MQ}, v{T+3}, v{T+4}", f"v_xor_b32 v{MP}, v{MQ}, v{T+4}")
        if P["PQP"]:
            e(f"v_mov_b32 v{T+3}, 0x0c0c0c0c", f"v_mov_b32 v{T+4}, 0x03020302")
            e(f"v_bfi_b32 v254, v{MP}, v{T+4}, v{T+3}", f"v_bfi_b32 v255, v{MQ}, v{T+4}, v{T+3}", f"v_mov_b32 v{T+4}, 0x01000100")
            e(f"v_bfi_b32 v{MP}, v{MP}, v{T+4}, v{T+3}", f"v_bfi_b32 v{MQ}, v{MQ}, v{T+4}, v{T+3}")
        e(f"v_lshrrev_b32 v{EAC}, 5, v{LANE}", f"v_lshlrev_b32 v{EAC}, 4, v{EAC}", f"v_add_u32 v{EAC}, {EAST}, v{EAC}")
        e(f"v_and_b32 v{LAC}, 15, v{LANE}", f"v_lshlrev_b32 v{LAC}, 2, v{LAC}")
        e(f"v_bfe_u32 v{T+3}, v{LANE}, 3, 2", f"v_and_b32 v{T+4}, 3, v{LANE}", f"v_lshl_add_u32 v{T+3}, v{T+3}, 2, v{T+4}", f"v_lshlrev_b32 v{LBC}, 2, v{T+3}")
        e(f"v_bfe_i32 v{cODD}, v0, 0, 1", f"s_lshl_b32 s{sT}, s3, 10", f"v_and_b32 v{cMAPW}, 4, v{cODD}", f"v_add_u32 v{cMAPW}, s{sT}, v{cMAPW}")
        e(f"v_lshl_add_u32 v{cMAP1}, v{LANE}, 2, s{sT}", f"v_lshrrev_b32 v{cMAP2}, 1, v{LANE}", f"v_lshl_add_u32 v{cMAP2}, v{cMAP2}, 2, s{sT}")
        e(f"v_mul_u32_u24 v{cL12}, 12, v{LANE}", f"v_and_b32 v{cDEG}, 12, v{cMAP1}", f"v_and_b32 v{cBIN}, 124, v{cMAP1}")
        e(f"s_mul_i32 s{sT}, s3, {CAPW}", f"v_add_u32 v{cR21}, s{sT}, v{LANE}", f"v_lshlrev_b32 v{cSH}, 3, v{cR21}", f"v_add_u32 v{cSH}, {SHST}, v{cSH}", f"v_lshlrev_b32 v{cR21}, 21, v{cR21}")
        e(f"s_mul_i32 s{sT}, s3, 640", f"v_add_u32 v{cROW}, s{sT}, v{cBIN}", f"v_sub_u32 v{cTIE}, 63, v{LANE}")
        e(f"s_getreg_b32 s{sM0}, hwreg(HW_REG_XCC_ID, 0, 3)", f"s_lshl_b32 s{sT}, s{sM0}, 4", f"v_subrev_u32 v{cBIN}, s{sT}, v{cBIN}", f"v_and_b32 v{cBIN}, 124, v{cBIN}")
        e(f"v_min_u32 v{cNOD}, 39, v{LANE}", f"v_lshlrev_b32 v{cNOD}, 7, v{cNOD}", f"v_mov_b32 v{c380}, 0x380")
        e(f"v_lshrrev_b32 v{cLST}, 3, v{LANE}", f"v_mul_u32_u24 v{cLST}, {GAP*4}, v{cLST}", f"v_add_u32 v{cLST}, {LIST}, v{cLST}")
        e(f"s_lshr_b32 s{sEO}, s3, 1", f"s_mul_i32 s{sEO}, s{sEO}, 3", f"s_min_u32 s{sEO}, s{sEO}, 8", f"s_mul_i32 s{sT}, s{sEO}, 4608")
        e(f"v_and_b32 v{T+3}, 15, v{LANE}", f"v_lshrrev_b32 v{T+4}, 4, v{LANE}")
        e(f"v_mul_u32_u24 v{eFR}, 288, v{T+3}", f"v_lshl_add_u32 v{eFR}, v{T+4}, 4, v{eFR}", f"v_add_u32 v{eFR}, s{sT}, v{eFR}")
        e(f"v_lshrrev_b32 v{T+4}, 3, v{LANE}", f"v_lshlrev_b32 v{T+4}, 9, v{T+4}", f"v_and_b32 v{T+3}, 7, v{LANE}", f"v_lshl_add_u32 v{eST}, v{T+3}, 4, v{T+4}")
        e(f"s_lshl_b32 s{sEO}, s{sEO}, 12", f"s_and_b32 s{sT}, s3, 1", f"s_lshl_b32 s{sT}, s{sT}, 7", f"s_add_u32 s{sEO}, s{sEO}, s{sT}",
          f"s_lshl_b32 s{sT}, s{sT}, 7", f"s_add_u32 s{sT}, s{sT}, {WO}", f"v_add_u32 v{eWF}, s{sT}, v{X16}")
        e(f"s_cmp_eq_u32 s{sNCNT}, 40")
        tabs = []
        for part in PARTS[P["BIAS"]]:
            t = [0] * 40
            for w, p in enumerate(part):
                for sl, r in enumerate(p):
                    t[r] = w * 8 + sl
            tabs.append([sum(t[5 * q + i] << (6 * i) for i in range(5)) for q in range(8)])
        e(f"v_mov_b32 v{RT}, 0")
        for q in range(8):
            e(f"s_mov_b32 s{sT}, {tabs[0][q]}", f"s_cselect_b32 s{sT}, {tabs[1][q]}, s{sT}")
            m = 31 << (5 * q)
            e(f"s_mov_b32 exec_lo, {m & 0xffffffff}", f"s_mov_b32 exec_hi, {m >> 32}", f"v_mov_b32 v{RT}, s{sT}")
        e("s_mov_b64 exec, -1")
        e(f"v_mul_u32_u24 v{T+3}, 52, v{LANE}", f"v_lshrrev_b32 v{T+3}, 8, v{T+3}", f"v_mad_i32_i24 v{T+3}, v{T+3}, -5, v{LANE}",
          f"v_mul_u32_u24 v{T+3}, 6, v{T+3}", f"v_lshrrev_b32 v{RT}, v{T+3}, v{RT}")
        e(f"v_and_b32 v{T+3}, 7, v{RT}", f"v_bfe_u32 v{RT}, v{RT}, 3, 3", f"v_lshlrev_b32 v{T+3}, 12, v{T+3}", f"v_lshl_or_b32 v{RT}, v{RT}, 7, v{T+3}")
        srd(sSK, 14, 15, WS_SK, NCH * CS * 12)

    def extra(pos):
        if P["CPOS"] == pos:
            consts()
        if P["ACCZ"] == pos:
            for i in range(48):
                e(f"v_mov_b32 v{ACC+i}, 0")

    e("s_waitcnt lgkmcnt(0)")
    for i in range(5):
        e(f"v_add_u32 v{IV+i}, v{T+4}, v{IV+i}")
    for k in range(2):
        e(f"v_lshl_or_b32 v{TABV+2*k}, v{CT+k}, 11, v{ST+k}", f"v_or_b32 v{TABV+2*k}, s{sTAG2}, v{TABV+2*k}", f"v_mov_b32 v{TABV+2*k+1}, s{sTAG}")
    extra(0)

    def publish():
        e("s_mov_b64 exec, 0xffff")
        vq.op("tab", f"buffer_store_dwordx4 {vr(TABV,4)}, v{X16}, {sr(sTAB)}, s{sT} offen sc1")
        e("s_mov_b64 exec, -1")

    if DH:
        e(f"s_lshl_b32 s{sT}, s2, 3", f"s_add_u32 s{sT}, s{sT}, s3", f"s_lshl_b32 s{sT}, s{sT}, 8")
    e(f"s_waitcnt vmcnt({min(vq.n('w') + P['WGN'], vq.n('ea'))})")
    e("s_barrier")
    ts.stamp("land")
    if DH in (1, 2):
        publish()
    for i in range(5):
        e(f"ds_read_b128 {vr(OUTV+8+4*i,4)}, v{IV+i}")
    extra(1)
    if P["TPW"] == 3:
        tpw()
    ts.stamp("guard")
    if DH in (0, 3):
        skst()
    for i in range(5):
        if DH == 3 and i == P["KE"]:
            extra(4)
            e(f"s_lshl_b32 s{sT}, s2, 3", f"s_add_u32 s{sT}, s{sT}, s3", f"s_lshl_b32 s{sT}, s{sT}, 8")
            vq.wait("skst")
            e("s_barrier")
            ts.stamp("skdr")
            publish()
        e(f"s_mov_b32 s{sT}, {8192*i}", f"s_waitcnt lgkmcnt({4-i})")
        vq.op("st", f"buffer_store_dwordx4 {vr(OUTV+8+4*i,4)}, v{T+7}, {sr(sA1)}, s{sT} offen sc1")
    if DH == 3 and P["KE"] == 5:
        extra(4)
        e(f"s_lshl_b32 s{sT}, s2, 3", f"s_add_u32 s{sT}, s{sT}, s3", f"s_lshl_b32 s{sT}, s{sT}, 8")
        vq.wait("skst")
        e("s_barrier")
        ts.stamp("skdr")
        publish()
    aea(4)
    ts.stamp("issued")

    extra(2)
    e(f"s_lshl_b32 s{sT}, s2, 3", f"s_add_u32 s{sT}, s{sT}, s3", f"s_lshl_b32 s{sT}, s{sT}, 8")
    srd(sX, SK, SK + 1, None, N * 1024)
    srd(sEA, 14, 15, WS_EA, NCH * CS * 32)
    if P["XPF"]:
        n = P["XPF"]
        e(f"s_and_b32 s{sBASE}, s{sM0}, 7", f"s_mul_i32 s{sBASE}, s{sBASE}, {1252*1024}", f"s_and_b32 s{sT2}, s2, 0xf8",
          f"s_add_u32 s{sT2}, s{sT2}, s3", f"s_mul_i32 s{sT2}, s{sT2}, {n*128}", f"s_add_u32 s{sBASE}, s{sBASE}, s{sT2}")
        e(f"v_min_u32 v{PFV}, {n-1}, v{LANE}", f"v_lshlrev_b32 v{PFV}, 7, v{PFV}")
    if P["XP2"]:
        n2 = P["XP2"]
        e(f"s_and_b32 s89, s{sM0}, 7", f"s_mul_i32 s89, s89, {1252*1024}", f"s_and_b32 s{sT2}, s2, 0xf8",
          f"s_add_u32 s{sT2}, s{sT2}, s3", f"s_mul_i32 s{sT2}, s{sT2}, {n2*128}", f"s_add_u32 s89, s89, s{sT2}", f"s_add_u32 s89, s89, {P['XPF']*128*256}")
        e(f"v_min_u32 v195, {n2-1}, v{LANE}", f"v_lshlrev_b32 v195, 7, v195")
    xpf = f"buffer_load_dword v{PFV}, v{PFV}, {sr(sX)}, s{sBASE} offen"
    PL = 206
    PL2 = 170
    poll1 = f"buffer_load_dwordx2 {vr(PL,2)}, v{T+2}, {sr(sTAB)}, s{sNR} offen sc1"

    def tagcheck(pl=PL):
        e(f"v_xor_b32 v{T+3}, s{sTAG2}, v{pl}", f"v_xor_b32 v{T+4}, s{sTAG}, v{pl+1}", f"v_and_or_b32 v{T+3}, v{T+3}, s{sT2}, v{T+4}")
        e(f"v_cmpx_ne_u32 vcc, 0, v{T+3}")

    def outsrd():
        e(f"s_lshl_b32 s{sT}, s{sNB}, 10", f"s_add_u32 s{sOUT}, s12, s{sT}", f"s_addc_u32 s{sOUT+1}, s13, 0",
          f"s_lshl_b32 s{sOUT+2}, s{sNCNT}, 10", f"s_mov_b32 s{sOUT+3}, 0x20000")

    def rwzero():
        for i in range(32):
            e(f"v_mov_b32 v{RW+i}, 0")

    def pollsetup():
        e(f"v_lshrrev_b32 v{T+1}, 1, v0", f"v_lshlrev_b32 v{T+2}, 11, v{T+1}", f"s_lshl_b32 s{sNR}, s{sB}, 3")
        e(f"v_mul_u32_u24 v{RG0}, {CS}, v{T+1}", f"s_mov_b32 s{sROFF}, 0", f"s_mov_b32 s{sCNT}, {SPIN}", f"s_mov_b32 s{sT2}, 0xffc00000")
        e(f"s_mul_i32 s{sEM}, s3, {CAPW*32}", f"s_add_u32 s{sEM}, s{sEM}, {EAST}", f"s_movk_i32 s{sK4}, 4096")

    def wofrag_write():
        for t in range(4):
            e(f"ds_write_b128 v{T}, {vr(144+4*t,4)} offset:{WO + 1024*t}")

    if not DH:
        if P["XPF"] and P["XPOS"] < 0:
            e(f"s_waitcnt vmcnt({-P['XPOS']-1})", xpf, "s_waitcnt vmcnt(1)", "s_barrier")
        else:
            e("s_waitcnt vmcnt(0)", "s_barrier")
        ts.stamp("drained")
        publish()
        if P["XPF"] and P["XPOS"] == 0:
            e(xpf)
        outsrd()
        frag_r(RW, T, T + 1, T + 2)
        if P["XPF"] and P["XPOS"] == 1:
            e(xpf)
        frag_o(128, 144, T, T + 1, SK + 8)
        rwzero()
        e(f"s_lshl_b32 s{sT}, s3, 12", f"v_add_u32 v{T}, s{sT}, v{X16}")
        extra(3)
        if P["XPF"] and P["XPOS"] == 3:
            e("s_waitcnt vmcnt(0)")
        if P["XPF"] and P["XPOS"] >= 2:
            e(xpf)
        pollsetup()
        e(f"s_waitcnt vmcnt({P['PW']})", "s_barrier")
        ts.stamp("frag")
        e(poll1)
        wofrag_write()
        e("s_waitcnt vmcnt(0)")
    else:
        outsrd()
        if P["FRP"] == 0:
            frag_r(RW, T, T + 1, T + 2)
            frag_o(128, 144, T, T + 1, SK + 8)
            rwzero()
        extra(3)
        e(f"s_lshl_b32 s{sT}, s3, 11", f"s_lshl_b32 s{sNR}, s2, 3", f"s_add_u32 s{sT}, s{sT}, s{sNR}", f"s_add_u32 s{sFL}, s{sT}, {WS_FL}")
        e(f"v_mov_b32 v{PL2}, s{sTAG2}", f"v_mov_b32 v{PL2+1}, s{sTAG}", f"v_mov_b32 v{T+3}, 0")
        pollsetup()
        e(f"s_lshl_b32 s{sT}, s3, 12", f"v_add_u32 v{T}, s{sT}, v{X16}")
        if P["PPOS"] == 0:
            ts.stamp("frag")
            e(poll1)
            e("s_waitcnt vmcnt(1)", "s_barrier")
        else:
            e("s_waitcnt vmcnt(0)", "s_barrier")
        ts.stamp("drained")
        n_after = 0
        if P["FL"]:
            e("s_mov_b64 exec, 1")
            e(f"buffer_store_dwordx2 {vr(PL2,2)}, v{T+3}, {sr(sTAB)}, s{sFL} offen sc1")
            e("s_mov_b64 exec, -1")
            n_after += 1
        if P["PPOS"] == 1:
            e(poll1)
            n_after = 0
        if P["XPF"] and P["XPOS"] == 0:
            e(xpf)
            n_after += 1
        if P["FRP"] == 0:
            wofrag_write()
        if P["FRP"] == 2:
            frag_r(RW, T, T + 1, T + 3)
            frag_o(XR, XR + 16, T, T + 1, SK + 8)
            rwzero()
        if P["PPOS"] == 2:
            e(poll1)
            n_after = 0
        e(f"s_lshr_b32 s{sFL}, s{sB}, 5", f"s_lshl_b32 s{sFL}, s{sFL}, 11", f"s_add_u32 s{sFL}, s{sFL}, {WS_FL}")
        e(f"v_lshrrev_b32 v{cFLG}, 1, v0", f"v_lshlrev_b32 v{cFLG}, 3, v{cFLG}")
        if P["PPOS"]:
            ts.stamp("frag")
        e(f"s_waitcnt vmcnt({n_after})")
    tagcheck()
    e("s_cbranch_execnz L_poll")
    e.label("L_polled")
    e("s_mov_b64 exec, -1")
    ts.stamp("tab")
    G1, G2, SKR, RNK, CA = TP + 8, TP + 12, TP + 20, TP, TP + 4
    MU = P["MU"]
    sVm = [sV, sV + 2, sV + 4, sA2]

    m0st = [None]

    def bea1(i):
        if m0st[0] != i // 4 or i == 6:
            e(f"s_add_u32 m0, s{sEM}, {4096*(i//4)}")
        m0st[0] = i // 4
        vq.op("ea", f"buffer_load_dwordx4 v{G2+i}, {sr(sEA)}, {'0' if i < 4 else 's%d' % sK4} offen offset:{1024*(i%4)} {ldpol} lds")

    def bea(p):
        if DH and P["FL"]:
            if p == P["FP"]:
                vq.op("fp", f"buffer_load_dwordx2 {vr(PL2,2)}, v{cFLG}, {sr(sTAB)}, s{sFL} offen sc1")
            if p == P["FQ"]:
                ts.stamp("fq0")
                vq.wait("fp")
                e(f"v_xor_b32 v{T+3}, s{sTAG2}, v{PL2}", f"v_xor_b32 v{T+4}, s{sTAG}, v{PL2+1}", f"v_or_b32 v{T+3}, v{T+3}, v{T+4}")
                e(f"v_cmp_ne_u32 vcc, 0, v{T+3}", "s_cbranch_vccnz L_fpoll")
                e.label("L_flagged")
                ts.stamp("fq1")
                e(f"s_cmp_gt_i32 s{sNW}, 192", "s_cbranch_scc1 L_r1e")
                e.label("L_r1eb")
                m0st[0] = None
        for i in range(6):
            if bstage[i] == p:
                bea1(i)
        if DH and P["XPF"] and P["XPOS"] == 5 and p == max(bstage, key=lambda q: ORDER.index(q)):
            e(xpf)
        if P["XP2"] and p == P["XQ"]:
            vq.op("xp2", f"buffer_load_dword v195, v195, {sr(sX)}, s89 offen")
    ORDER = [0, 1, 2, 6, 3, 4]
    if DH and P["FL"]:
        assert all(ORDER.index(q) >= ORDER.index(P["FQ"]) for q in bstage), "edge_attr loads before the flag check"
        assert ORDER.index(P["FP"]) <= ORDER.index(P["FQ"])

    def skld(i):
        e(f"v_mad_u32_u24 v{G1+i}, v{G1+i}, 12, v{cL12}")
        vq.op(f"sk{i}", f"buffer_load_dwordx3 {vr(SKR+4*i,3)}, v{G1+i}, {sr(sSK)}, 0 offen offset:{768*i} {ldpol}")

    cmps = [f"v_cmp_lt_i32 s[{SK+2*i}:{SK+2*i+1}], {2*i}, v{T+2}" for i in range(MU + 1)]
    e(f"v_bfe_u32 v{RLEN}, v{PL}, 11, 11", f"v_and_b32 v{RBASE}, v{RLEN}, v{cODD}", f"v_add_u32 v{T+2}, v{RLEN}, v{cODD}")
    fill = [f"v_and_b32 v{T+3}, 0x7ff, v{PL}"] + cmps + [f"v_add_u32 v{RG0}, v{RG0}, v{T+3}"]
    e(fill.pop(0))
    for mod in ("row_shr:1 row_mask:0xf", "row_shr:2 row_mask:0xf", "row_shr:4 row_mask:0xf", "row_shr:8 row_mask:0xf", "row_bcast:15 row_mask:0xa", "row_bcast:31 row_mask:0xc"):
        e(f"v_add_u32_dpp v{RBASE}, v{RBASE}, v{RBASE} {mod} bank_mask:0xf")
        e(*fill[:2]); fill = fill[2:]
    e(f"v_readlane_b32 s{sNW}, v{RBASE}, 63")
    e(f"v_mov_b32_dpp v{RBASE}, v{RBASE} quad_perm:[0,0,2,2] row_mask:0xf bank_mask:0xf")
    e(f"v_sub_u32 v{RG0}, v{RG0}, v{RBASE}")
    e(f"v_lshl_add_u32 v{T}, v{RBASE}, 2, v{cMAPW}")
    e(f"s_cmp_gt_u32 s{sNW}, {CAPW}", "s_cbranch_scc1 L_clip")
    e.label("L_mapw")
    for i in range(MU):
        e(f"s_mov_b64 exec, s[{SK+2*i}:{SK+2*i+1}]")
        e(f"ds_write_b32 v{T}, v{RG0} offset:{8*i}")
    e("s_mov_b64 exec, -1")
    e(f"s_cmp_lg_u64 s[{SK+2*MU}:{SK+2*MU+1}], 0", "s_cbranch_scc1 L_map2")
    for i in range(3):
        e(f"ds_read_b32 v{G1+i}, v{cMAP1} offset:{256*i}")
    for i in range(6):
        e(f"ds_read_b32 v{G2+i}, v{cMAP2} offset:{128*i}")
    e(f"s_cmp_gt_i32 s{sNW}, 192", "s_cbranch_scc1 L_r1")
    e.label("L_r1b")
    e("s_waitcnt lgkmcnt(6)")
    ts.stamp("map")
    for i in range(3):
        skld(i)
    e(f"v_mov_b32 v{T+3}, s{sNW}", "s_mov_b64 exec, 1", f"ds_max_i32 v{T+5}, v{T+3} offset:{TOT}", "s_mov_b64 exec, -1")
    e("s_waitcnt lgkmcnt(1)")
    for i in range(6):
        e(f"v_lshl_add_u32 v{G2+i}, v{G2+i}, 5, v{X16}")
    if P["SKBAR"]:
        e("s_barrier")
    ts.stamp("skiss")
    if DH and P["XPF"] and P["XPOS"] == 6:
        vq.op("xpf", xpf)
    bea(0)
    if DH and P["FRP"] == 1:
        e(f"s_cmp_lg_u32 s{sROFF}, 0", "s_cbranch_scc1 L_nofrag")
        frag_r(RW, T, T + 1, T + 2)
        frag_o(XR, XR + 16, T, T + 1, SK + 8)
        rwzero()
        e.label("L_nofrag")
    assert 5 not in bstage
    e(f"s_min_i32 s{sT}, s{sNW}, {CAPW}")
    for i in range(4):
        e(f"v_cmp_gt_i32 s[{sVm[i]}:{sVm[i]+1}], s{sT}, v{LANE}", f"s_sub_i32 s{sT}, s{sT}, 64")
    e(f"s_mov_b32 s{sT2}, 0x1fff80", f"s_mul_i32 s{sOFF}, s3, 5")
    assert P["SKBAR"]
    late_wf = DH and P["FRP"] in (1, 2)
    if not late_wf:
        for q in range(NK):
            e(f"ds_read_b128 {vr(WF[q],4)}, v{eWF} offset:{1024*q}")

    def count(i):
        key = SKR + 4 * i + 2
        e(f"v_lshrrev_b32 v{CA+i}, 21, v{key}", f"v_lshlrev_b32 v{CA+i}, 2, v{CA+i}")
        e(f"v_lshrrev_b32 v{T+3}, 26, v{key}", f"v_lshl_or_b32 v{T+3}, v{T+3}, 4, v{cDEG}")
        e(f"s_mov_b64 exec, s[{sVm[i]}:{sVm[i]+1}]")
        e(f"ds_add_rtn_u32 v{RNK+i}, v{CA+i}, v{ONE} offset:{CNT2}")
        e(f"ds_add_u32 v{T+3}, v{ONE} offset:{DEG}")
        e("s_mov_b64 exec, -1")

    def entry(i):
        key = SKR + 4 * i + 2
        if i == 3:
            e("s_mov_b32 exec_hi, 0")
        e(f"ds_write_b64 v{cSH}, {vr(SKR+4*i,2)} offset:{512*i}")
        if i == 3:
            e("s_mov_b32 exec_hi, -1")
        e(f"v_and_or_b32 v{key}, v{key}, s{sT2}, v{cR21}")
        if i:
            e(f"v_add_u32 v{key}, {64*i << 21}, v{key}")

    for i in range(3):
        vq.wait(f"sk{i}")
        if i == 0:
            ts.stamp("sk")
        count(i)
    e(f"s_cmp_gt_i32 s{sNW}, 192", "s_cbranch_scc1 L_r2")
    e.label("L_r2b")
    ts.stamp("atom")
    e(f"s_or_b32 s{sT}, s2, s3", "s_cbranch_scc0 L_tag")
    e.label("L_tagged")
    bea(1)
    for j in range(1, 5):
        e(f"s_add_u32 s{SK+j}, s{sOFF}, {j}")
    e("s_waitcnt lgkmcnt(0)", "s_barrier")
    ts.stamp("b1")
    CN, CAD = XR, XR + 8
    e(f"s_cmp_lg_u32 s{sROFF}, 0", "s_cbranch_scc1 L_rank2")
    if late_wf:
        e(f"s_lshl_b32 s{sT}, s3, 12", f"v_add_u32 v{T}, s{sT}, v{X16}")
        for t in range(4):
            e(f"ds_write_b128 v{T}, {vr(XR+16+4*t,4)} offset:{WO + 1024*t}")
    e(f"ds_read_b128 {vr(CAD,4)}, v{X16} offset:{DEG}")
    for j in range(5):
        e(f"ds_read_b32 v{CN+j}, v{cROW} offset:{CNT2 + 128*j}")
    e(f"ds_read_b32 v{T+6}, v{T+5} offset:{TOT}")
    if P["ENP"] == 0:
        for i in range(3):
            entry(i)
    e(f"s_waitcnt lgkmcnt({9 if P['ENP'] == 0 else 6})")
    e(f"v_add_u32 v{T+1}, v{CAD}, v{CAD+1}", f"v_add3_u32 v{T+1}, v{T+1}, v{CAD+2}, v{CAD+3}")
    e(f"v_lshl_or_b32 v{T+1}, v{T+1}, 6, v{cTIE}")
    for j in range(5):
        e(f"v_readlane_b32 s{SK+j}, v{T+1}, s{SK+j if j else sOFF}")
    for j in range(5):
        e(f"v_cmp_lt_u32 s[{SK+6+2*j}:{SK+7+2*j}], s{SK+j}, v{T+1}")
    for j in range(5):
        e(f"s_bcnt1_i32_b64 s{SK+j}, s[{SK+6+2*j}:{SK+7+2*j}]")
    e(f"s_waitcnt lgkmcnt({3 if P['ENP'] == 0 else 0})")
    for j in range(5):
        e(f"v_readlane_b32 s{sASG[j]}, v{RT}, s{SK+j}")
    e(f"v_readfirstlane_b32 s{sN}, v{T+6}")
    e.label("L_ranked")
    e("s_mov_b32 exec_hi, 0")
    for j in range(5):
        e(f"v_and_or_b32 v{CAD+j}, s{sASG[j]}, v{c380}, v{cBIN}")
        e(f"ds_add_rtn_u32 v{CN+j}, v{CAD+j}, v{CN+j} offset:{WB}")
    for j in range(5):
        e(f"v_or_b32 v{CAD+j}, s{sASG[j]}, v{cBIN}")
    e(f"s_lshl_b32 s{sT}, s3, 3", f"s_add_u32 s{sOFF}, s{sT}, 7")
    for j in range(5):
        if j in (0, 2):
            e(f"s_waitcnt lgkmcnt({3 if j == 0 else 2})")
        e(f"v_lshl_or_b32 v{CN+j}, v{CN+j}, 16, v{CAD+j}")
        e(f"ds_write_b32 v{cROW}, v{CN+j} offset:{CNT2 + 128*j}")
    e("s_mov_b32 exec_hi, -1")
    ts.stamp("rank")
    bea(2)
    if P["ENP"] == 1:
        for i in range(3):
            entry(i)
    e(f"s_waitcnt lgkmcnt({3 if P['ENP'] == 1 else 0})", "s_barrier")
    ts.stamp("b2")
    e(f"ds_read_b128 {vr(CN,4)}, v{X16} offset:{WB}")
    for i in range(3):
        e(f"ds_read_b32 v{CA+i}, v{CA+i} offset:{CNT2}")
    bea(6)
    e("s_waitcnt lgkmcnt(3)")
    e(f"v_add_u32 v{T+1}, v{CN}, v{CN+1}", f"v_add3_u32 v{T+1}, v{T+1}, v{CN+2}, v{CN+3}", f"v_mov_b32 v{T+2}, v{T+1}")
    e("s_waitcnt lgkmcnt(0)")

    def place(i):
        key = SKR + 4 * i + 2
        return [f"v_bfe_u32 v{T+7}, v{CA+i}, 12, 3", f"v_or_b32 v{key}, v{T+7}, v{key}", f"v_and_b32 v{G1+i}, 0x3ff, v{CA+i}",
                f"v_lshrrev_b32 v{CA+i}, 16, v{CA+i}", f"v_add_u32 v{CA+i}, v{CA+i}, v{RNK+i}"]

    fill = place(0) + place(1) + place(2)
    e(fill.pop(0))
    for mod in ("row_shr:1 row_mask:0xf", "row_shr:2 row_mask:0xf", "row_shr:4 row_mask:0xf", "row_shr:8 row_mask:0xf", "row_bcast:15 row_mask:0xa", "row_bcast:31 row_mask:0xc"):
        e(f"v_add_u32_dpp v{T+2}, v{T+2}, v{T+2} {mod} bank_mask:0xf")
        e(*fill[:2]); fill = fill[2:]
    e(f"v_sub_u32 v{T+1}, v{T+2}, v{T+1}")
    e(f"v_lshl_add_u32 v{CAD}, v{T+1}, 2, v{cLST}")
    for k in range(3):
        e(f"v_lshl_add_u32 v{CAD+1+k}, v{CN+k}, 2, v{CAD+k}")
    e(f"ds_write_b128 v{X16}, {vr(CAD,4)} offset:{START}")
    for i in range(3):
        e(f"ds_read_b32 v{G1+i}, v{G1+i} offset:{START}")
    e(*fill)
    e(f"v_readlane_b32 s{sNV}, v{T+2}, s{sOFF}", f"v_readlane_b32 s{sCNT}, v{T+1}, s{sT}", f"v_readlane_b32 s{sBASE}, v{CAD}, s{sT}")
    e(f"v_mov_b32 v{T+6}, {(0x3fff << 7) | 5}")
    e(f"s_sub_u32 s{sNV}, s{sNV}, s{sCNT}", f"s_lshl2_add_u32 s{sT2}, s{sNV}, s{sBASE}", f"v_add_u32 v{T+1}, s{sT2}, v{LAC}")
    e(f"ds_write_b32 v{T+1}, v{T+6}")
    assert D == 6
    sP0 = sT
    e(f"s_add_u32 s{sCNT}, s{sNV}, 15", f"s_lshr_b32 s{sCNT}, s{sCNT}, 4", f"s_sub_u32 s{sP0}, 0, s{sNV}", f"s_and_b32 s{sP0}, s{sP0}, 14",
      f"s_sub_u32 s{sCNT}, s{sCNT}, 1", f"s_cmp_gt_i32 s{sCNT}, 0", f"s_cselect_b32 s{sP0}, s{sP0}, 0", f"s_lshl_b32 s{sOFF}, s{sP0}, 2",
      f"s_sub_u32 s{sBASE}, s{sBASE}, s{sOFF}")

    def scatter(i):
        e(f"s_mov_b64 exec, s[{sVm[i]}:{sVm[i]+1}]")
        e(f"ds_write_b32 v{CA+i}, v{SKR+4*i+2}")

    e("s_waitcnt lgkmcnt(1)")
    for i in range(3):
        e(f"v_lshl_add_u32 v{CA+i}, v{CA+i}, 2, v{G1+i}")
    for i in range(3):
        scatter(i)
    e("s_mov_b64 exec, -1")
    e(f"s_cmp_gt_i32 s{sNW}, 192", "s_cbranch_scc1 L_r3")
    e.label("L_r3b")
    bea(3)
    ts.stamp("list")
    e(f"v_add_u32 v{LA}, s{sBASE}, v{LAC}", f"v_add_u32 v{LB}, s{sBASE}, v{LBC}",
      f"s_and_b32 s{sOFF}, s{sOFF}, 32", f"v_add_u32 v{T+4}, s{sOFF}, v{LA}", f"s_and_b32 s{SK+8}, s{sP0}, 6")
    e(f"s_mov_b32 s{sT2}, 0x00fffc38", f"s_mov_b32 s{sNR}, 0xffffff00", f"s_mov_b32 s{sBASE}, {SHST}")
    if P["PRIO"] == 1:
        e("s_cmp_lt_u32 s3, 4", "s_cbranch_scc1 L_np", "s_setprio 1")
        e.label("L_np")
    e("s_waitcnt lgkmcnt(0)", "s_barrier")
    ts.stamp("b4")
    if P["B4P"] == 0:
        bea(4)
    e(f"ds_read_b32 v{K}, v{T+4}", f"ds_read_b32 v{ENT+2}, v{LB}", f"ds_read_b32 v{KN}, v{LA} offset:{4*D}", f"ds_read_b32 v{NOD}, v{cNOD} offset:{CNT2}")
    if P["B4P"] == 1:
        bea(4)
    e(f"s_cmp_eq_u32 s{sNV}, 0", "s_cbranch_scc1 L_empty")

    def agaddr():
        e(f"v_lshlrev_b32 v{T+4}, 2, v{LANE}", f"s_lshl_b32 s{sOFF}, s3, 7")
        e(f"v_and_b32 v{NOD}, 0x7380, v{NOD}", f"v_xor_b32 v{NOD}, s{sOFF}, v{NOD}")
        e(f"v_alignbit_b32 v{NOD}, v{NOD}, v{NOD}, 12")
        m = [f"s[{q}:{q+1}]" for q in sVm] + ["vcc"]
        for j in range(5):
            e(f"v_cmp_eq_u32 {m[j]}, {j}, v{NOD}")
        for j in range(5):
            e(f"s_ff1_i32_b64 s{sNODE+j}, {m[j]}", f"s_mul_i32 s{sNODE+j}, s{sNODE+j}, 1152", f"v_add_u32 v{eAG[j]}, s{sNODE+j}, v{T+4}")

    AL = P["ALIGN"]

    def al():
        if AL:
            e(".p2align 3")

    def ea_reads():
        e(f"v_lshrrev_b32 v{T}, 21, v{ENT+2}", f"v_lshl_add_u32 v{T+3}, v{T}, 3, s{sBASE}", f"v_lshl_add_u32 v{T}, v{T}, 5, v{EAC}")
        e(f"ds_read_b64 {vr(ENT,2)}, v{T+3}")
        e(f"ds_read_b128 {vr(EA0,4)}, v{T}")

    def wfr(*qs):
        for q in qs:
            e(f"ds_read_b128 {vr(WF[q],4)}, v{eWF} offset:{1024*q}")

    def zq(q):
        e(f"ds_read_b128 {vr(RW+4*q,4)}, v{ZAD}", f"ds_read_b128 {vr(RW+16+4*q,4)}, v{ZAD}")

    def pq(j):
        p = PQ + 2 * (j % 2)
        if P["PQP"]:
            pr = [f"v_perm_b32 v{p}, v{T+1}, v{T+1}, v{(MP, 254)[j%2]}", f"v_perm_b32 v{p+1}, v{T+1}, v{T+1}, v{(MQ, 255)[j%2]}"]
            return pr if j % 2 else [f"v_cvt_pk_bf16_f32 v{T+1}, v{AGN+j}, v{AGN+j+1}"] + pr
        return [f"v_cvt_pk_bf16_f32 v{T+1+j%2}, v{AGN+j}, v{AGN+j}", f"v_and_b32 v{p}, v{MP}, v{T+1+j%2}", f"v_and_b32 v{p+1}, v{MQ}, v{T+1+j%2}"]

    def head(kind):
        if P["PRIO"] in (4, 5) and kind != "first":
            e("s_setprio 3")
        e(f"s_waitcnt lgkmcnt({0 if kind == 'first' else 2})"); al()
        for q in range(4):
            e(f"v_mfma_f32_4x4x4_16b_bf16 {vr(AGN+4*q,4)}, {vr(ENT,2)}, {vr(CGF,2)}, 0 cbsz:4 abid:{2*q}")
        e(f"v_lshlrev_b32 v{K}, 3, v{KN}", f"v_and_b32 v{K}, s{sT2}, v{K}")
        rd = []
        if kind != "last":
            e(f"v_add_u32 v{LA}, 64, v{LA}", f"v_add_u32 v{LB}, 64, v{LB}")
            rd = [f"ds_read_b32 v{KN}, v{LA} offset:{4*D}", f"ds_read_b32 v{ENT+2}, v{LB}"]
        if kind != "first":
            e("s_waitcnt lgkmcnt(0)"); al()
        groups = [rd + (pq(0) if kind != "first" else []), []]
        for h in range(2):
            e(f"v_smfmac_f32_32x32x32_bf16 {vr(RW+16*h,16)}, {vr(EA0,4)}, {vr(WRF+8*h,8)}, v{SIX}")
            e(*groups[h])

    def pks(j):
        t = TP + 8 * (j % 2)
        for h in range(2):
            r = RW + 16 * h + j
            rp = r & ~1
            sel = "op_sel:[0,1,0] op_sel_hi:[1,1,1]" if r & 1 else "op_sel_hi:[1,0,1]"
            for q in range(2):
                a = ACC + 4 * h + 2 * q
                e(f"v_pk_fma_f32 {vr(a,2)}, {vr(t+4*h+2*q,2)}, {vr(rp,2)}, {vr(a,2)} {sel}")

    def mf(j, h):
        t, p, s = TP + 8 * (j % 2), PQ + 2 * (j % 2), XR + 4 * (j % R)
        e(f"v_mfma_f32_16x16x16_bf16 {vr(t+4*h,4)}, {vr(p,2)}, {vr(s+2*h,2)}, 0")

    def rl(q, lane):
        e(f"v_readlane_b32 s{SK + q % 8}, v{K}, {lane}")

    def sand(q):
        e(f"s_and_b32 s{sOFF}, s{SK + q % 8}, s{sNR}")

    def xl(q):
        e(f"buffer_load_dwordx4 {vr(XR + 4 * (q % R),4)}, v{X16}, {sr(sX)}, s{sOFF} offen {str(P['XPOL']).replace('+', ' ')}".rstrip())

    def body(last):
        for j in range(0, 16, 2):
            ld = not last or j + D < 16
            if not last or j == 0:
                e.label(f"L_{'f' if last else 'j'}{j}")
            nx = pq(j + 1)
            if P["PRIO"] == 4 and j % 4 == 0 and j:
                e(f"s_setprio {3 - j // 4}")
            if P["PRIO"] == 5:
                e(f"s_setprio {3 - (j // 2) % 4}")
            e(f"s_waitcnt vmcnt({D-1 if ld else 15-j})"); al()
            mf(j, 0)
            if ld:
                rl(j + D, j)
            e(*nx[:1]); mf(j, 1); e(*nx[1:])
            if ld and P["SCH"] == 2:
                sand(j + D); e(f"s_waitcnt vmcnt({D-2})"); xl(j + D)
            elif ld:
                sand(j + D); xl(j + D); e(f"s_waitcnt vmcnt({D-1})")
            else:
                e(f"s_waitcnt vmcnt({14-j})"); al()
            nx = pq(j + 2) if j < 14 else []
            mf(j + 1, 0)
            if ld:
                rl(j + 1 + D, j + 1)
            e(*nx[:1]); mf(j + 1, 1); e(*nx[1:])
            if last and j == 2 and P["AGP"] == 2:
                agaddr(); al()
            if j == 2 and not last:
                e("s_waitcnt lgkmcnt(0)")
                ea_reads(); al()
            if ld:
                sand(j + 1 + D)
            e(f"s_set_gpr_idx_on s{SK + j % 8}, gpr_idx(SRC2,DST)")
            xl(j + 1 + D) if ld else al()
            pks(j)
            e(f"s_set_gpr_idx_idx s{SK + (j + 1) % 8}")
            if j == 14 and not last:
                e(f"s_sub_u32 s{sCNT}, s{sCNT}, 1")
            al()
            pks(j + 1)
            if j % 4 == 2 and not last:
                zq(j // 4)
            if last and j >= 6 and P["WFT"]:
                wfr(*((14, 15) if j == 6 else (j - 2, j - 1)))
            e("s_set_gpr_idx_off")

    e("s_waitcnt lgkmcnt(3)")
    e(f"v_lshlrev_b32 v{K}, 3, v{K}", f"v_and_b32 v{K}, s{sT2}, v{K}")
    if late_wf:
        wfr(*range(NK))
    NB5 = P["NB5"]

    def pair(q):
        rl(q, q); rl(q + 1, q + 1)
        sand(q); xl(q); sand(q + 1); xl(q + 1)

    for q in (2, 4, 6):
        e(f"s_cmp_eq_u32 s{SK+8}, {q}", f"s_cbranch_scc1 L_p{q}")
    for q0 in (0, 2, 4, 6):
        e.label(f"L_p{q0}")
        for i in range(NB5):
            pair(q0 + 2 * i)
        if P["AGP"] == 0:
            e("s_waitcnt lgkmcnt(0)")
            agaddr()
        e(f"s_waitcnt vmcnt({2*NB5 + (1 if DH and P['XPF'] and P['XPOS'] == 5 else 0) + (1 if P['XP2'] and ORDER.index(P['XQ']) >= max(ORDER.index(q) for q in bstage) else 0)}) lgkmcnt(0)", "s_barrier")
        ea_reads()
        for i in range(NB5, 3):
            pair(q0 + 2 * i)
        if q0 < 6:
            e("s_branch L_pd")
    e.label("L_pd")
    if P["AGP"] == 1:
        agaddr()
    ts.stamp("b5")
    head("first")
    e(f"s_set_gpr_idx_on s{sP0}, gpr_idx(SRC0,SRC1)")
    e.idx_range, keep = {("v", i) for i in range(AGN, AGN + 16)}, e.idx_range
    e(pq(0)[0])
    e.idx_range = keep
    e("s_set_gpr_idx_off")
    e(*pq(0)[1:])
    e("s_waitcnt lgkmcnt(0)")
    ea_reads()
    e(f"s_cmp_eq_u32 s{sCNT}, 0", "s_cbranch_scc1 L_f0")
    for j in range(0, 14, 2):
        e(f"s_cmp_eq_u32 s{sP0}, {j}", f"s_cbranch_scc1 L_j{j}")
        if j % 4 == 2:
            zq(j // 4)
    e("s_branch L_j14")
    if P["LAL"] < 0:
        e(".p2align 3")
    else:
        e(".p2align 6")
        for _ in range(P["LAL"] // 4):
            e.raw("    s_nop 0")
    e.label("L_loop")
    head("mid")
    body(False)
    e(f"s_cmp_lg_u32 s{sCNT}, 0", "s_cbranch_scc1 L_loop")
    head("last")
    body(True)
    e.label("L_swept")
    ts.stamp("swept")
    e(f"s_add_u32 s{sROFF}, s{sROFF}, {CAPW}", f"s_cmp_lt_u32 s{sROFF}, s{sN}", "s_cbranch_scc1 L_again")
    AF, DD, OB, OT = ACC, 160, 64, 80
    if P["EPRIO"] >= 0:
        e(f"s_setprio {P['EPRIO']}")
    for s in range(5):
        for w in range(4):
            e(f"v_cvt_pk_bf16_f32 v{RW+4*s+w}, v{ACC+8*s+w}, v{ACC+8*s+4+w}")
        for w in (0, 2):
            e(f"ds_write2_b32 v{eAG[s]}, v{RW+4*s+w}, v{RW+4*s+w+1} offset0:{72*w} offset1:{72*w+72}")
    NPRE = 16
    if not P["WFT"]:
        wfr(*range(NK, 16))
    e(f"s_waitcnt lgkmcnt({0 if P['WFT'] else NPRE - NK})", "s_barrier")
    ts.stamp("agb")
    lq = [f"w{q}" for q in range(NPRE)]

    def lop(tag, text):
        e(text); lq.append(tag)

    def lwait(*tags):
        n = len(lq) - 1 - max(lq.index(t) for t in tags)
        e(f"s_waitcnt lgkmcnt({min(n, 15)})")

    def afrag(k, ss=range(4)):
        for s in ss:
            lop(f"a{k}{s}", f"ds_read_b128 {vr(AF+16*k+4*s,4)}, v{eFR} offset:{AGL + 4608*k + 64*s}")

    def post(k, pol=P['OUTPOL']):
        d, o = DD + 16 * (k % 2), OB + 8 * (k % 2)
        x = []
        for r in range(2):
            for c in range(2):
                x.append(f"v_cvt_pk_bf16_f32 v{o+4*r+c}, v{d+8*c+r}, v{d+8*c+4+r}")
                x.append(f"v_cvt_pk_bf16_f32 v{OT+2*r+c}, v{d+8*c+r}, v{d+8*c+4+r}")
                x.append(f"v_cvt_pk_bf16_f32 v{o+4*r+2+c}, v{d+8*c+r+2}, v{d+8*c+4+r+2}")
            for c in range(2):
                x.append(f"v_mov_b32_dpp v{o+4*r+c}, v{o+4*r+2+c} row_ror:8 row_mask:0xf bank_mask:0xc")
            for c in range(2):
                x.append(f"v_mov_b32_dpp v{o+4*r+2+c}, v{OT+2*r+c} row_ror:8 row_mask:0xf bank_mask:0x3")
            x.append(f"buffer_store_dwordx4 {vr(o+4*r,4)}, v{eST}, {sr(sOUT)}, s{sEO} offen offset:{256*r} {pol}")
        x.append(f"s_add_u32 s{sEO}, s{sEO}, 4096")
        return x

    def tile(k, pend):
        d = DD + 16 * (k % 2)
        for s in range(4):
            if k == 0:
                lwait(f"a0{s}", f"w{4*s+3}")
            elif s == 0:
                lwait(f"a{k}3")
            for t in range(4):
                c = "0" if s == 0 else vr(d + 4 * t, 4)
                e(f"v_mfma_f32_16x16x32_bf16 {vr(d+4*t,4)}, {vr(AF+16*k+4*s,4)}, {vr(WF[4*s+t],4)}, {c}")
                if 4 * s + t >= 4:
                    e(*pend[:2]); pend = pend[2:]
            if k == 0 and s == 0:
                afrag(1)
            if k == 0 and s == 1:
                afrag(2)
        e(*pend)

    for s in range(4):
        afrag(0, [s])
        for q in range(max(NPRE, 4 * s), 4 * s + 4):
            lop(f"w{q}", f"ds_read_b128 {vr(WF[q],4)}, v{eWF} offset:{1024*q}")
    tile(0, [])
    tile(1, post(0))
    e("s_cmp_ge_u32 s3, 4", "s_cbranch_scc1 L_two")
    tile(2, post(1))
    e(*post(2, P['LASTPOL']))
    e.label("L_stored")
    ts.stamp("stored")
    if P["DIAGW"] and P["DIAGAT"] == "fin":
        e("s_waitcnt vmcnt(0)")
        ts.stamp("fin")
    if P["DIAGW"]:
        e(f"s_add_u32 s6, s{sTSP+1}, {P['DIAGW']}", "s_min_u32 s6, s6, 30000")
        e.label("L_diag")
        e("s_memrealtime s[4:5]", "s_waitcnt lgkmcnt(0)", f"s_sub_u32 s4, s4, s{sTSP}", "s_cmp_lt_u32 s4, s6", "s_cbranch_scc1 L_diag")
    if P["TS"]:
        e("s_waitcnt vmcnt(0)")
        ts.stamp("end")
        e(f"s_lshl_b32 s{sT}, s2, 3", f"s_add_u32 s{sT}, s{sT}, s3", f"s_lshl_b32 s{sT}, s{sT}, 8", f"s_add_u32 s{sT}, s{sT}, {WS_TS}")
        e(f"v_lshl_add_u32 v{T}, v{LANE}, 2, s{sT}", f"global_store_dword v{T}, v{TSV}, s[14:15]")
        if P["DBG"]:
            e(f"s_cmp_lg_u32 s2, {P['DBG']}", "s_cbranch_scc1 L_done", "s_cmp_lg_u32 s3, 0", "s_cbranch_scc1 L_done")
            e("s_load_dwordx2 s[4:5], s[0:1], 72", f"v_readlane_b32 s{sT}, v{TSV}, 0", f"v_lshlrev_b32 v{T}, 2, v{LANE}")
            e(f"v_subrev_u32 v{TSV}, s{sT}, v{TSV}", "s_waitcnt lgkmcnt(0)", f"global_store_dword v{T}, v{TSV}, s[4:5]")
    e.label("L_done")
    e("s_endpgm")
    e.label("L_again")
    e("s_waitcnt vmcnt(0) lgkmcnt(0)", "s_barrier")
    init_round(False)
    for i in range(32):
        e(f"v_mov_b32 v{RW+i}, 0")
    e(f"v_add_u32 v{RLEN}, v{RLEN}, v{RBASE}", f"v_subrev_u32 v{RLEN}, {CAPW}, v{RLEN}", f"v_max_i32 v{RLEN}, 0, v{RLEN}")
    e(f"v_subrev_u32 v{RBASE}, {CAPW}, v{RBASE}", f"v_max_i32 v{RBASE}, 0, v{RBASE}", f"v_sub_u32 v{RLEN}, v{RLEN}, v{RBASE}")
    e(f"v_add_u32 v{RG0}, {CAPW}, v{RG0}", f"s_sub_i32 s{sNW}, s{sNW}, {CAPW}", f"v_lshl_add_u32 v{T}, v{RBASE}, 2, v{cMAPW}")
    e("s_waitcnt lgkmcnt(0)", "s_barrier")
    e.label("L_clip")
    e(f"v_add_u32 v{T+2}, v{RBASE}, v{RLEN}", f"v_min_i32 v{T+2}, {CAPW}, v{T+2}", f"v_sub_u32 v{T+2}, v{T+2}, v{RBASE}", f"v_add_u32 v{T+2}, v{T+2}, v{cODD}")
    e.label("L_masks")
    e(*cmps)
    e("s_nop 0", "s_branch L_mapw")
    e.label("L_map2")
    e(f"v_add_u32 v{T}, {8*MU}, v{T}", f"v_subrev_u32 v{T+2}, {2*MU}, v{T+2}")
    e("s_branch L_masks")
    e.label("L_r1")
    e(f"ds_read_b32 v{G1+3}, v{cMAP1} offset:768", f"ds_read_b32 v{G2+6}, v{cMAP2} offset:768")
    e("s_waitcnt lgkmcnt(0)")
    skld(3)
    for i in (6,):
        e(f"v_lshl_add_u32 v{G2+i}, v{G2+i}, 5, v{X16}")
        if not (DH and P["FL"]):
            bea1(i)
    e("s_branch L_r1b")
    if DH and P["FL"]:
        e.label("L_r1e")
        bea1(6)
        e("s_branch L_r1eb")
        e.label("L_fpoll")
        e(f"s_mov_b32 s{SK+13}, {SPIN}")
        e.label("L_fpoll2")
        e(f"buffer_load_dwordx2 {vr(PL2,2)}, v{cFLG}, {sr(sTAB)}, s{sFL} offen sc1", f"s_sub_u32 s{SK+13}, s{SK+13}, 1", "s_cbranch_scc1 L_done", "s_waitcnt vmcnt(0)")
        e(f"v_xor_b32 v{T+3}, s{sTAG2}, v{PL2}", f"v_xor_b32 v{T+4}, s{sTAG}, v{PL2+1}", f"v_or_b32 v{T+3}, v{T+3}, v{T+4}")
        e(f"v_cmp_ne_u32 vcc, 0, v{T+3}", "s_cbranch_vccnz L_fpoll2", "s_branch L_flagged")
    e.label("L_r2")
    count(3)
    entry(3)
    e("s_branch L_r2b")
    e.label("L_r3")
    e(f"ds_read_b32 v{CA+3}, v{CA+3} offset:{CNT2}", "s_waitcnt lgkmcnt(0)")
    e(*place(3))
    e(f"ds_read_b32 v{G1+3}, v{G1+3} offset:{START}", "s_waitcnt lgkmcnt(0)")
    e(f"v_lshl_add_u32 v{CA+3}, v{CA+3}, 2, v{G1+3}")
    scatter(3)
    e("s_mov_b64 exec, -1", "s_branch L_r3b")
    e.label("L_tag")
    e(f"v_mov_b32 v{T+3}, s{sTAG}", f"s_mov_b32 s{sT}, {WS_W}")
    e(f"buffer_store_dword v{T+3}, v{cMAP1}, {sr(sTAB)}, s{sT} offen sc1")
    e("s_branch L_tagged")
    e.label("L_empty")
    e("s_waitcnt vmcnt(0) lgkmcnt(0)", "s_barrier")
    agaddr()
    if late_wf:
        wfr(*range(NK))
    if P["WFT"]:
        wfr(*range(NK, 16))
    e("s_branch L_swept")
    e.label("L_two", pad=8)
    e(*post(1, P['LASTPOL']))
    e("s_branch L_stored")
    e.label("L_poll")
    e(poll1, f"s_sub_u32 s{sCNT}, s{sCNT}, 1", "s_cbranch_scc1 L_done", "s_waitcnt vmcnt(0)")
    tagcheck()
    e("s_cbranch_execnz L_poll", "s_branch L_polled")
    e.label("L_rank2")
    for j in range(5):
        e(f"ds_read_b32 v{CN+j}, v{cROW} offset:{CNT2 + 128*j}")
    if P["ENP"] == 0:
        for i in range(3):
            entry(i)
    e("s_waitcnt lgkmcnt(0)")
    e.label("L_end")
    e("s_branch L_ranked")
    return e.text(), LDS, 256, 102


HEADER = """; Kernarg layout for this problem (88 bytes, ptrs only, base s[0:1]):
"""


def generate(**kw):
    P = dict(DEF)
    P.update(kw)
    k, lds, v, s = gen(P)
    n = NAME + "_kernel"
    out = HEADER
    out += f"; @launch grid=(256,1,1) block=(512,1,1) lds={lds}\n"
    out += '.amdgcn_target "amdgcn-amd-amdhsa--gfx950"\n.text\n'
    out += f".globl {n}\n.p2align 8\n.type {n},@function\n{n}:\n{k}"
    out += '.section .rodata,"a"\n'
    out += (f".p2align 6\n.amdhsa_kernel {n}\n  .amdhsa_next_free_vgpr {v}\n  .amdhsa_next_free_sgpr {s}\n"
            f"  .amdhsa_accum_offset {(v+3)//4*4}\n  .amdhsa_group_segment_fixed_size 0\n  .amdhsa_kernarg_size 88\n"
            f"  .amdhsa_user_sgpr_count 2\n  .amdhsa_user_sgpr_kernarg_segment_ptr 1\n  .amdhsa_system_sgpr_workgroup_id_x 1\n"
            f"  .amdhsa_float_denorm_mode_32 3\n.end_amdhsa_kernel\n")
    return out


if __name__ == "__main__":
    kw = {}
    for a in sys.argv[1:]:
        k, v = a.split("=", 1)
        kw[k] = int(v) if v.lstrip("-").isdigit() else v
    sys.stdout.write(generate(**kw))
```

```python
import sys, os
sys.path.insert(0, os.path.dirname(os.path.abspath(__file__)))
from emit import Emitter

NAME = "gather_scatter__tensor_product_equiv_mace__graph"
N, E = 10000, 320000
CH, NCH, CS = 1250, 256, 1280
WS_TAB, WS_W, WS_SK, WS_EA, WS_TS = 0, 0x80000, 0x100000, 0x500000, 0x2000000
CAPW, GAP = 224, 16
CAP = 8 * CAPW
SPIN = 200000

DEF = dict(LAL=-1, XPOS=0, PQP=1, NB5=1, AGP=2, ENP=0, PW=0, WFT=1, WFK=6, LASTPOL='sc1', EPRIO=0, BIAS=30, SCH=2, ALIGN=0, PRIO=1, DIAGW=0, DIAGK=0, DIAGAT='tab', D=6, TS=0, DBG=0, APOL="nt", AEA="00011", BEA="001223", SKBAR=1, ABAR=2, XPF=18, CPF=2, MU=7, OUTPOL="sc1", LDPOL="sc1", WST=3, WOST=3, ACCZ=2, CPOS=2, WGN=0)

PART39 = [[3, 11, 21, 31, 36], [5, 8, 20, 27, 38], [0, 6, 7, 13, 39], [9, 14, 18, 25, 34], [10, 16, 19, 24, 32], [4, 12, 26, 29, 33], [1, 17, 23, 28, 37], [2, 15, 22, 30, 35]]
PART40 = [[1, 10, 15, 30, 39], [2, 9, 21, 28, 37], [4, 14, 22, 27, 31], [6, 12, 18, 24, 35], [3, 8, 16, 29, 38], [5, 13, 17, 26, 34], [0, 20, 23, 32, 36], [7, 11, 19, 25, 33]]
PARTS = {0: (PART39, PART40)}
PARTS[12] = ([[12, 16, 24, 26, 30], [8, 14, 15, 31, 36], [2, 10, 23, 34, 37], [5, 17, 18, 22, 38], [0, 1, 7, 19, 39], [3, 11, 20, 29, 35], [6, 9, 25, 27, 32], [4, 13, 21, 28, 33]],
    [[9, 12, 19, 28, 32], [3, 10, 22, 29, 37], [7, 8, 23, 26, 36], [0, 18, 20, 34, 38], [5, 6, 14, 21, 39], [4, 11, 16, 24, 35], [1, 15, 25, 27, 31], [2, 13, 17, 30, 33]])
PARTS[20] = ([[13, 17, 24, 26, 31], [4, 16, 25, 29, 36], [5, 19, 23, 28, 35], [1, 6, 8, 10, 39], [7, 9, 20, 27, 32], [3, 12, 14, 33, 34], [2, 15, 18, 22, 37], [0, 11, 21, 30, 38]],
    [[11, 12, 17, 20, 38], [3, 16, 26, 28, 34], [8, 10, 19, 29, 36], [7, 14, 25, 27, 31], [6, 13, 15, 24, 30], [0, 9, 22, 23, 39], [2, 4, 21, 32, 35], [1, 5, 18, 33, 37]])
PARTS[30] = ([[12, 16, 25, 29, 32], [0, 5, 9, 20, 39], [1, 18, 27, 34, 37], [7, 19, 22, 30, 35], [2, 6, 24, 26, 36], [4, 11, 13, 31, 33], [10, 15, 17, 21, 28], [3, 8, 14, 23, 38]],
    [[6, 9, 26, 28, 37], [1, 11, 24, 35, 38], [5, 17, 23, 31, 33], [8, 12, 21, 29, 36], [2, 4, 15, 22, 39], [7, 10, 14, 18, 34], [0, 16, 20, 30, 32], [3, 13, 19, 25, 27]])
PARTS[40] = ([[7, 13, 28, 29, 37], [10, 17, 22, 30, 36], [1, 4, 6, 23, 39], [9, 19, 26, 31, 33], [5, 12, 15, 18, 35], [2, 11, 16, 27, 34], [0, 8, 24, 25, 38], [3, 14, 20, 21, 32]],
    [[8, 17, 25, 31, 32], [3, 19, 22, 28, 38], [6, 15, 18, 33, 37], [2, 14, 24, 29, 39], [0, 12, 21, 27, 34], [1, 9, 13, 26, 36], [5, 7, 10, 23, 35], [4, 11, 16, 20, 30]])
PARTS[50] = ([[2, 19, 28, 35, 37], [0, 6, 11, 24, 39], [15, 17, 27, 29, 34], [1, 20, 30, 32, 38], [4, 7, 18, 23, 33], [9, 10, 12, 21, 31], [5, 13, 16, 25, 26], [3, 8, 14, 22, 36]],
    [[7, 15, 27, 30, 36], [8, 18, 19, 28, 38], [4, 14, 31, 33, 35], [6, 13, 20, 29, 39], [2, 3, 22, 23, 34], [0, 11, 12, 26, 37], [1, 9, 17, 24, 32], [5, 10, 16, 21, 25]])
PARTS[-10] = ([[5, 13, 17, 28, 34], [7, 12, 16, 30, 32], [1, 9, 25, 26, 38], [11, 14, 18, 22, 33], [0, 2, 10, 20, 39], [3, 6, 23, 35, 37], [15, 19, 21, 24, 29], [4, 8, 27, 31, 36]],
    [[0, 13, 22, 31, 37], [3, 8, 20, 28, 35], [4, 12, 16, 27, 34], [9, 11, 14, 18, 36], [5, 7, 19, 23, 39], [2, 15, 26, 30, 32], [6, 10, 17, 24, 38], [1, 21, 25, 29, 33]])
PARTS[-20] = ([[7, 13, 19, 20, 34], [6, 10, 23, 28, 30], [2, 5, 27, 29, 36], [0, 15, 22, 26, 38], [4, 11, 25, 31, 37], [1, 3, 9, 12, 39], [14, 18, 21, 24, 33], [8, 16, 17, 32, 35]],
    [[5, 9, 16, 20, 36], [8, 10, 15, 21, 33], [3, 7, 22, 25, 34], [4, 14, 18, 26, 28], [6, 12, 17, 29, 37], [0, 11, 23, 35, 39], [2, 19, 27, 30, 32], [1, 13, 24, 31, 38]])


def vr(a, n):
    return f"v[{a}:{a+n-1}]" if n > 1 else f"v{a}"


def sr(a, n=4):
    return f"s[{a}:{a+n-1}]"


def scan_dpp(e, v, full):
    for k in (1, 2, 4, 8):
        e(f"v_add_u32_dpp v{v}, v{v}, v{v} row_shr:{k} row_mask:0xf bank_mask:0xf")
    e(f"v_add_u32_dpp v{v}, v{v}, v{v} row_bcast:15 row_mask:0xa bank_mask:0xf")
    if full:
        e(f"v_add_u32_dpp v{v}, v{v}, v{v} row_bcast:31 row_mask:0xc bank_mask:0xf")


class TS:
    last = None

    def __init__(self, e, on, pair, vreg):
        self.e, self.on, self.pair, self.v, self.names = e, on, pair, vreg, []
        TS.last = self

    diag = None

    def stamp(self, name):
        if self.diag and self.diag[0] == name:
            self.e("s_memrealtime s[4:5]", "s_waitcnt lgkmcnt(0)", f"s_sub_u32 s4, s4, s{self.pair}", f"s_mul_i32 s{self.pair+1}, s4, {self.diag[1]}")
        if self.on and (self.on == 1 or name in str(self.on).split(",") or name in ("start", "end")):
            e, p = self.e, self.pair
            e(f"s_memrealtime s[{p}:{p+1}]", "s_waitcnt lgkmcnt(0)", f"v_writelane_b32 v{self.v}, s{p}, {len(self.names)}")
            self.names.append(name)


class VQ:
    def __init__(self, e):
        self.e, self.q = e, []

    def op(self, tag, text):
        self.e(text)
        self.q.append(tag)

    def n(self, tag):
        idx = max(i for i, t in enumerate(self.q) if t == tag)
        return len(self.q) - 1 - idx

    def wait(self, tag, extra=""):
        self.e(f"s_waitcnt vmcnt({self.n(tag)}) {extra}".strip())


def gen(P):
    e = Emitter()
    vq = VQ(e)
    D = P["D"]
    R = 8
    MAP, CNT2, WB, DEG, TOT, NODEOF, START, WR, WO = 0, 8192, 13312, 14336, 15360, 15616, 16384, 17408, 46080
    LIST = WO + 32768
    SHST = LIST + (CAP + 8 * GAP + 128) * 4
    EAST = SHST + CAP * 8
    assert SHST + CAP * 8 <= EAST
    ZERO = EAST + CAP * 32
    LDS = ZERO + 64
    AGL = 0
    ACNT, ASTART, AINV, ASKS = 23552, 24576, 25600, 30720
    assert ASKS + CS * 12 <= WO and LDS <= 163840
    LANE, X16, RLEN, RBASE, RG0, ONE, PFV = 1, 2, 3, 4, 5, 6, 7
    T = 8
    ACC, RW, XR, TP, AGN, PQ, EA0, EA1, WRF, CGF, ENT = 16, 64, 96, 128, 144, 160, 164, 168, 172, 188, 192
    MP, MQ = CGF + 2, CGF + 3
    SIX, ZAD = EA1, EA1 + 1
    eAG, eFR, eST, eWF, NOD = [208, 209, 210, 211, 212], 213, 214, 215, 205
    NK = P["WFK"]
    assert NK == 6
    WF = [216 + 4 * q for q in range(NK)] + [XR + 4 * q for q in range(8)] + [AGN, AGN + 4]
    K, KN, LA, LB, EAC, LAC, LBC, RT, TSV = 196, 197, 198, 199, 200, 201, 202, 203, 204
    cODD, cMAPW, cMAP1, cMAP2, cL12, cDEG, cSH, cR21, cROW, cTIE, cBIN, cNOD, cLST, c380 = range(240, 254)
    e.idx_range = {("v", i) for i in range(ACC, ACC + 48)}
    sX, sTAB, sSK, sEA, sA0, sA1, sOUT = 16, 20, 24, 28, 32, 36, 40
    sB, sNB, sNCNT, sN, sROFF, sNR, sNV, sBASE, sEM, sCNT, sT, sT2 = 44, 45, 46, 47, 48, 49, 50, 51, 52, 53, 54, 55
    sNODE = 56
    sOFF = 61
    sTAG, sTAG2 = 62, 63
    SK = 64
    sV = 80
    sM0, sEO = 86, 87
    sASG = [90, 91, 92, 93, 94]
    sNW, sK4 = 95, 98
    sA2, sTSP = 96, 100
    ts = TS(e, P["TS"], sTSP, TSV)
    if P["DIAGW"]:
        ts.diag = (P["DIAGAT"], P["DIAGK"])
    apol, ldpol = P["APOL"], P["LDPOL"]
    astage = [int(c) for c in str(P["AEA"]).zfill(5)]
    bstage = [int(c) for c in str(P["BEA"]).zfill(6)]

    def srd(s, lo, hi, off, size):
        if off is None:
            e(f"s_mov_b32 s{s}, s{lo}", f"s_mov_b32 s{s+1}, s{hi}")
        else:
            e(f"s_add_u32 s{s}, s{lo}, {off}", f"s_addc_u32 s{s+1}, s{hi}, 0")
        e(f"s_mov_b32 s{s+2}, {size}", f"s_mov_b32 s{s+3}, 0x20000")

    def init_round(first):
        e(f"v_lshlrev_b32 v{T+3}, 2, v0", f"v_mov_b32 v{T+4}, 0x00700000", f"v_mov_b32 v{T+5}, 0")
        for i in range(4):
            e(f"ds_write_b32 v{T+3}, v{T+4} offset:{MAP + i*2048}")
        for i in range(4 if first else 3):
            e(f"ds_write_b32 v{T+3}, v{T+5} offset:{CNT2 + i*2048}")

    DSTV, SRCV, SHV, BK, BA, RK, NL, KEY, CT, ST, PS = 64, 68, 72, 80, 84, 88, 92, 96, 100, 104, 108
    TABV = 112
    OUTV = 128
    IV = 156
    CGR = 120
    if P["TS"]:
        e("s_memrealtime s[92:93]")
    e("s_cmp_ge_u32 s2, 256", "s_cbranch_scc1 L_done")
    e("s_load_dwordx4 s[4:7], s[0:1], 8")
    e("s_load_dwordx4 s[8:11], s[0:1], 24")
    e("s_load_dwordx2 s[14:15], s[0:1], 80")
    e(f"s_load_dwordx2 s[{SK}:{SK+1}], s[0:1], 0")
    e(f"s_load_dwordx2 s[{SK+2}:{SK+3}], s[0:1], 40")
    e(f"s_load_dwordx4 s[{SK+4}:{SK+7}], s[0:1], 48")
    e("s_load_dwordx2 s[12:13], s[0:1], 64")

    def cpf():
        e(f"s_getpc_b64 s[{sV}:{sV+1}]")
        e.label("L_pc")
        e(f"s_and_b32 s{sB}, s2, 0xf8", f"s_lshl_b32 s{sB}, s{sB}, 6")
        e(f"v_and_b32 v{T+3}, 0x180, v{T+2}", f"v_add_u32 v{T+3}, s{sB}, v{T+3}", f"v_min_u32 v{T+3}, L_end-L_pc, v{T+3}")
        e(f"v_mov_b32 v{TABV+1}, s{sV+1}", f"v_add_co_u32 v{TABV}, vcc, s{sV}, v{T+3}", f"v_addc_co_u32 v{TABV+1}, vcc, 0, v{TABV+1}, vcc")
        vq.op("cpf", f"global_load_dword v{TSV+1}, {vr(TABV,2)}, off")

    def srd_hi(s, size):
        e(f"s_mov_b32 s{s+2}, {size}", f"s_mov_b32 s{s+3}, 0x20000")

    def srd_lo(s, lo, off):
        e(f"s_add_u32 s{s}, s{lo}, {off}", f"s_addc_u32 s{s+1}, s{lo+1}, 0")

    e(f"v_lshlrev_b32 v{T+2}, 3, v0")
    if P["CPF"] == 2:
        cpf()
    e(f"v_lshrrev_b32 v{T}, 6, v0", f"v_and_b32 v{LANE}, 63, v0", f"v_lshlrev_b32 v{T+1}, 2, v0", f"v_mov_b32 v{T+5}, 0")
    e(f"v_readfirstlane_b32 s3, v{T}")
    e(f"ds_write_b32 v{T+1}, v{T+5} offset:{ACNT}", f"ds_write_b32 v{T+1}, v{T+5} offset:{AINV+3072}")
    e(f"s_mul_i32 s{sT}, s2, {CH*4}", f"s_mul_i32 s{sT2}, s2, {CH*8}", f"s_mul_i32 s{sOFF}, s2, {CH*32}")
    e(f"v_lshlrev_b32 v{X16}, 4, v{LANE}", f"v_lshlrev_b32 v{T+7}, 4, v0", f"v_mov_b32 v{ONE}, 1")
    e(f"s_lshl_b32 s{sEM}, s3, 10", f"s_add_u32 s{sEM}, s{sEM}, {EAST}", f"s_movk_i32 s{sCNT}, 4096", f"s_movk_i32 s{sNV}, 8192")
    srd_hi(sA0, CH * 4); srd_hi(sA1, CH * 4); srd_hi(sA2, CH * 8); srd_hi(sEA, CH * 32)
    if P["DIAGW"]:
        e(f"s_memrealtime s[{sTSP}:{sTSP+1}]")
    e("s_waitcnt lgkmcnt(0)")
    if P["TS"]:
        e(f"v_writelane_b32 v{TSV}, s92, 0")
        ts.names.append("first")
    ts.stamp("start")
    srd_lo(sA0, 6, f"s{sT}")
    for i in range(3):
        o = f"0 offen offset:{2048*i}" if i < 2 else f"s{sCNT} offen"
        vq.op("dst", f"buffer_load_dword v{DSTV+i}, v{T+1}, {sr(sA0)}, {o} {apol}")
    srd_lo(sA1, 4, f"s{sT}")
    if P["ABAR"] == 2:
        e("s_barrier")
    for i in range(3):
        o = f"0 offen offset:{2048*i}" if i < 2 else f"s{sCNT} offen"
        vq.op("src", f"buffer_load_dword v{SRCV+i}, v{T+1}, {sr(sA1)}, {o} {apol}")
    e(f"s_load_dword s{sTAG}, s[14:15], {WS_W}")
    if P["CPF"] == 1:
        cpf()
    srd_lo(sA2, 8, f"s{sT2}")
    srd_lo(sEA, 10, f"s{sOFF}")
    if P["ABAR"] == 1:
        e("s_barrier")
    for i, o in enumerate(("0", f"s{sCNT}", f"s{sNV}")):
        vq.op("sh", f"buffer_load_dwordx2 {vr(SHV+2*i,2)}, v{T+2}, {sr(sA2)}, {o} offen {apol}")

    def aea(p):
        for i in range(5):
            if astage[i] == p:
                e(f"s_add_u32 m0, s{sEM}, {8192*i}", f"s_mov_b32 s{sT}, {8192*i}")
                vq.op("ea", f"buffer_load_dwordx4 v{T+7}, {sr(sEA)}, s{sT} offen {apol} lds")
        if P["WST"] == p:
            weights()
        if P["WOST"] == p:
            wout()

    def weights():
        e("s_cmp_lt_u32 s3, 4")
        e(f"s_cselect_b32 s{sX}, s{SK+4}, s{SK+2}", f"s_cselect_b32 s{sX+1}, s{SK+5}, s{SK+3}", f"s_movk_i32 s{sT}, 128",
          f"s_cselect_b32 s{sX+2}, s{sCNT}, s{sT}", f"s_mov_b32 s{sX+3}, 0x20000")
        e(f"s_min_u32 s{sT}, s3, 5", f"s_lshl_b32 s{sT}, s{sT}, 10", f"s_add_u32 m0, s{sT}, {WR}", f"s_and_b32 s{sT}, s{sT}, 0xc00")
        vq.op("w", f"buffer_load_dwordx4 v{X16}, {sr(sX)}, s{sT} offen lds")

    def wout():
        srd(sOUT, SK + 6, SK + 7, None, 32768)
        e(f"s_lshl_b32 s{sT2}, s3, 12", f"s_add_u32 m0, s{sT2}, {WO}")
        for i in range(4):
            vq.op("w", f"buffer_load_dwordx4 v{X16}, {sr(sOUT)}, s{sT2} offen offset:{i*1024} lds")

    aea(0)
    if not P["ABAR"]:
        e("s_barrier")
    e(f"s_mov_b32 s{SK+8}, 109951168", f"s_movk_i32 s{SK+9}, 625", f"s_movk_i32 s{SK+10}, 838")
    e(f"v_cmp_gt_u32 s[{sV+4}:{sV+5}], {CH-1024}, v0") if CH - 1024 <= 64 else e(f"s_movk_i32 s{sT}, {CH-1024}", f"v_cmp_gt_u32 s[{sV+4}:{sV+5}], s{sT}, v0")
    srd(sTAB, 14, 15, None, WS_W + 64)
    init_round(True)
    if P["ACCZ"] == 9:
        for i in range(48):
            e(f"v_mov_b32 v{ACC+i}, 0")
    vq.wait("dst")
    ts.stamp("dst")
    for k in range(3):
        e(f"v_mul_hi_u32 v{BK+k}, v{DSTV+k}, s{SK+8}")
    for k in range(3):
        e(f"v_lshlrev_b32 v{BA+k}, 2, v{BK+k}")
        if k == 2:
            e(f"s_mov_b64 exec, s[{sV+4}:{sV+5}]")
        e(f"ds_add_rtn_u32 v{RK+k}, v{BA+k}, v{ONE} offset:{ACNT}")
    e("s_mov_b64 exec, -1")
    e("s_waitcnt lgkmcnt(0)", "s_barrier")
    ts.stamp("hist")
    e(f"ds_read_b128 {vr(CT,4)}, v{X16} offset:{ACNT}")
    e(f"s_mul_i32 s{sTAG}, s{sTAG}, 0x9e3779b1", f"s_add_u32 s{sTAG}, s{sTAG}, 0x7f4a7c15")
    e(f"s_mul_i32 s{sTAG2}, s{sTAG}, 0x85ebca6b", f"s_and_b32 s{sTAG2}, s{sTAG2}, 0xffc00000")
    aea(1)
    for k in range(3):
        e(f"v_mad_u32_u24 v{NL+k}, v{BK+k}, s{SK+9}, 15", f"v_lshrrev_b32 v{NL+k}, 4, v{NL+k}", f"v_sub_u32 v{NL+k}, v{DSTV+k}, v{NL+k}")
    e("s_waitcnt lgkmcnt(0)")
    e(f"v_add_u32 v{T+3}, v{CT}, v{CT+1}", f"v_add3_u32 v{T+3}, v{T+3}, v{CT+2}, v{CT+3}", f"v_mov_b32 v{T+4}, v{T+3}")
    scan_dpp(e, T + 4, True)
    e(f"v_sub_u32 v{ST}, v{T+4}, v{T+3}")
    for k in range(3):
        e(f"v_add_u32 v{ST+1+k}, v{ST+k}, v{CT+k}")
    e(f"ds_write_b128 v{X16}, {vr(ST,4)} offset:{ASTART}")
    for k in range(3):
        e(f"ds_read_b32 v{PS+k}, v{BA+k} offset:{ASTART}")
    vq.wait("src")
    for k in range(3):
        e(f"v_mul_u32_u24 v{KEY+k}, s{SK+10}, v{SRCV+k}", f"v_bfe_u32 v{KEY+k}, v{KEY+k}, 18, 5")
        e(f"v_lshl_or_b32 v{KEY+k}, v{NL+k}, 5, v{KEY+k}",
          f"v_lshlrev_b32 v{KEY+k}, 21, v{KEY+k}", f"v_lshl_or_b32 v{KEY+k}, v{SRCV+k}, 7, v{KEY+k}")
    e(f"v_lshlrev_b32 v{NL}, 5, v0", f"v_add_u32 v{NL+1}, {512*32}, v{NL}", f"v_add_u32 v{NL+2}, {1024*32}, v{NL}")
    e(f"s_mov_b32 s{sT2}, {ASKS}")
    vq.wait("sh", "lgkmcnt(0)")
    for k in range(3):
        e(f"v_add_u32 v{PS+k}, v{PS+k}, v{RK+k}")
        e(f"v_lshlrev_b32 v{BA+k}, 2, v{PS+k}", f"v_mad_u32_u24 v{PS+k}, v{PS+k}, 12, s{sT2}")
        if k == 2:
            e(f"s_mov_b64 exec, s[{sV+4}:{sV+5}]")
        e(f"ds_write_b32 v{BA+k}, v{NL+k} offset:{AINV}")
        e(f"ds_write2_b32 v{PS+k}, v{SHV+2*k}, v{SHV+2*k+1} offset0:0 offset1:1")
        e(f"ds_write_b32 v{PS+k}, v{KEY+k} offset:8")
    e("s_mov_b64 exec, -1")
    aea(2)
    e(f"s_lshl_b32 s{sT}, s3, 7", f"v_lshl_add_u32 v{T+3}, v{LANE}, 3, s{sT}")
    e(f"ds_read_b64 {vr(CT,2)}, v{T+3} offset:{ACNT}", f"ds_read_b64 {vr(ST,2)}, v{T+3} offset:{ASTART}")
    e(f"s_mul_i32 s{sT}, s2, {CS*12}", f"s_add_u32 s{sT}, s{sT}, {WS_SK}")
    srd(sA0, 14, 15, f"s{sT}", CS * 12)
    e(f"s_mul_i32 s{sT}, s2, {CS*32}", f"s_add_u32 s{sT}, s{sT}, {WS_EA}")
    srd(sA1, 14, 15, f"s{sT}", CH * 32)
    e(f"v_lshrrev_b32 v{T+3}, 1, v0", f"v_lshlrev_b32 v{T+3}, 2, v{T+3}")
    e(f"v_and_b32 v{T+4}, 1, v0", f"v_lshlrev_b32 v{T+4}, 4, v{T+4}", f"v_add_u32 v{T+4}, {EAST}, v{T+4}", f"v_add_u32 v{T+6}, {ASKS}, v{T+7}")
    e("s_waitcnt lgkmcnt(0)", "s_barrier")
    ts.stamp("scat")
    e(f"ds_read_b128 {vr(OUTV,4)}, v{T+6}", f"ds_read_b128 {vr(OUTV+4,4)}, v{T+6} offset:8192")
    for i in range(5):
        e(f"ds_read_b32 v{IV+i}, v{T+3} offset:{AINV + i*1024}")
    aea(3)

    def skst():
        vq.op("skst", f"buffer_store_dwordx4 {vr(OUTV,4)}, v{T+7}, {sr(sA0)}, 0 offen sc1")
        vq.op("skst", f"buffer_store_dwordx4 {vr(OUTV+4,4)}, v{T+7}, {sr(sA0)}, s{sNV} offen sc1")

    def frag_r(F0, t0, t1, t2):
        e(f"v_lshrrev_b32 v{t0}, 5, v{LANE}", f"v_lshlrev_b32 v{t0}, 10, v{t0}", f"v_and_b32 v{t1}, 15, v{LANE}", f"v_lshl_add_u32 v{t0}, v{t1}, 4, v{t0}")
        for i in range(8):
            e(f"ds_read_b128 {vr(F0+4*i,4)}, v{t0} offset:{WR + 2048*(i//4) + 256*(i%4)}")
        e(f"v_lshrrev_b32 v{t0}, 4, v{LANE}", f"v_lshlrev_b32 v{t0}, 5, v{t0}", f"v_and_b32 v{t1}, 3, v{LANE}", f"v_lshl_add_u32 v{t0}, v{t1}, 1, v{t0}")
        for v in range(4):
            e(f"ds_read_u16 v{F0+32+v}, v{t0} offset:{WR + 4096 + 8*v}")
        e(f"v_bfe_i32 v{t2}, v{LANE}, 4, 1", f"v_and_b32 v{t2}, 0x02020202, v{t2}", f"v_add_u32 v{t2}, 0x05040100, v{t2}")
        e("s_waitcnt lgkmcnt(0)")
        for h in range(2):
            for t in range(2):
                for ip in range(4):
                    e(f"v_perm_b32 v{WRF+8*h+2*ip+t}, v{F0+4*(2*ip+1)+t+2*h}, v{F0+4*(2*ip)+t+2*h}, v{t2}")
        e(f"v_lshl_or_b32 v{CGF}, v{F0+33}, 16, v{F0+32}", f"v_lshl_or_b32 v{CGF+1}, v{F0+35}, 16, v{F0+34}")

    def frag_o(F0, F1, t0, t1, sM):
        e(f"v_and_b32 v{t1}, 7, v{LANE}", f"v_lshrrev_b32 v{t0}, 4, v{LANE}", f"v_lshlrev_b32 v{t0}, 13, v{t0}", f"v_lshl_add_u32 v{t0}, v{t1}, 4, v{t0}",
          f"v_and_b32 v{t1}, 8, v{LANE}", f"s_and_b32 s{sM}, s3, 3", f"s_lshl_b32 s{sM}, s{sM}, 8", f"s_lshr_b32 s{sM+1}, s3, 2", f"s_lshl_b32 s{sM+1}, s{sM+1}, 7",
          f"s_add_u32 s{sM}, s{sM}, s{sM+1}", f"s_add_u32 s{sM}, s{sM}, {WO}", f"v_add3_u32 v{t0}, v{t0}, v{t1}, s{sM}")
        for ip in range(4):
            e(f"ds_read2st64_b64 {vr(F0+4*ip,4)}, v{t0} offset0:{4*ip} offset1:{4*ip+2}")
        e(f"s_mov_b32 s{sM}, 0x05040100", f"s_mov_b32 s{sM+1}, 0x07060302")
        for ip in range(4):
            e(f"s_waitcnt lgkmcnt({3-ip})")
            for t in range(4):
                e(f"v_perm_b32 v{F1+4*t+ip}, v{F0+4*ip+2+t//2}, v{F0+4*ip+t//2}, s{sM+t%2}")

    def consts():
        e(f"s_and_b32 s{sB}, s2, 7", f"s_lshl_b32 s{sB}, s{sB}, 5", f"s_lshr_b32 s{sT}, s2, 3", f"s_add_u32 s{sB}, s{sB}, s{sT}")
        e(f"s_mul_i32 s{sNB}, s{sB}, 625", f"s_add_u32 s{sNCNT}, s{sNB}, 640", f"s_add_u32 s{sNB}, s{sNB}, 15",
          f"s_lshr_b32 s{sNB}, s{sNB}, 4", f"s_lshr_b32 s{sNCNT}, s{sNCNT}, 4", f"s_sub_u32 s{sNCNT}, s{sNCNT}, s{sNB}")
        e(f"v_bfe_i32 v{SIX}, v{LANE}, 2, 1", f"v_and_b32 v{SIX}, 0xaaaa, v{SIX}", f"v_add_u32 v{SIX}, 0x4444, v{SIX}")
        e(f"v_mov_b32 v{ZAD}, {ZERO}", f"v_and_b32 v{T+3}, 60, v{T+1}", f"v_add_u32 v{T+3}, v{T+3}, v{ZAD}", f"ds_write_b32 v{T+3}, v{T+5}")
        e(f"v_and_b32 v{T+3}, 4, v{LANE}", f"v_lshlrev_b32 v{T+3}, 2, v{T+3}", f"v_mov_b32 v{T+4}, 0xffff", f"v_lshlrev_b32 v{T+4}, v{T+3}, v{T+4}")
        e(f"v_bfe_i32 v{T+3}, v{LANE}, 3, 1", f"v_and_b32 v{MQ}, v{T+3}, v{T+4}", f"v_xor_b32 v{MP}, v{MQ}, v{T+4}")
        if P["PQP"]:
            e(f"v_mov_b32 v{T+3}, 0x0c0c0c0c", f"v_mov_b32 v{T+4}, 0x03020302")
            e(f"v_bfi_b32 v254, v{MP}, v{T+4}, v{T+3}", f"v_bfi_b32 v255, v{MQ}, v{T+4}, v{T+3}", f"v_mov_b32 v{T+4}, 0x01000100")
            e(f"v_bfi_b32 v{MP}, v{MP}, v{T+4}, v{T+3}", f"v_bfi_b32 v{MQ}, v{MQ}, v{T+4}, v{T+3}")
        e(f"v_lshrrev_b32 v{EAC}, 5, v{LANE}", f"v_lshlrev_b32 v{EAC}, 4, v{EAC}", f"v_add_u32 v{EAC}, {EAST}, v{EAC}")
        e(f"v_and_b32 v{LAC}, 15, v{LANE}", f"v_lshlrev_b32 v{LAC}, 2, v{LAC}")
        e(f"v_bfe_u32 v{T+3}, v{LANE}, 3, 2", f"v_and_b32 v{T+4}, 3, v{LANE}", f"v_lshl_add_u32 v{T+3}, v{T+3}, 2, v{T+4}", f"v_lshlrev_b32 v{LBC}, 2, v{T+3}")
        e(f"v_bfe_i32 v{cODD}, v0, 0, 1", f"s_lshl_b32 s{sT}, s3, 10", f"v_and_b32 v{cMAPW}, 4, v{cODD}", f"v_add_u32 v{cMAPW}, s{sT}, v{cMAPW}")
        e(f"v_lshl_add_u32 v{cMAP1}, v{LANE}, 2, s{sT}", f"v_lshrrev_b32 v{cMAP2}, 1, v{LANE}", f"v_lshl_add_u32 v{cMAP2}, v{cMAP2}, 2, s{sT}")
        e(f"v_mul_u32_u24 v{cL12}, 12, v{LANE}", f"v_and_b32 v{cDEG}, 12, v{cMAP1}", f"v_and_b32 v{cBIN}, 124, v{cMAP1}")
        e(f"s_mul_i32 s{sT}, s3, {CAPW}", f"v_add_u32 v{cR21}, s{sT}, v{LANE}", f"v_lshlrev_b32 v{cSH}, 3, v{cR21}", f"v_add_u32 v{cSH}, {SHST}, v{cSH}", f"v_lshlrev_b32 v{cR21}, 21, v{cR21}")
        e(f"s_mul_i32 s{sT}, s3, 640", f"v_add_u32 v{cROW}, s{sT}, v{cBIN}", f"v_sub_u32 v{cTIE}, 63, v{LANE}")
        e(f"s_getreg_b32 s{sM0}, hwreg(HW_REG_XCC_ID, 0, 3)", f"s_lshl_b32 s{sT}, s{sM0}, 4", f"v_subrev_u32 v{cBIN}, s{sT}, v{cBIN}", f"v_and_b32 v{cBIN}, 124, v{cBIN}")
        e(f"v_min_u32 v{cNOD}, 39, v{LANE}", f"v_lshlrev_b32 v{cNOD}, 7, v{cNOD}", f"v_mov_b32 v{c380}, 0x380")
        e(f"v_lshrrev_b32 v{cLST}, 3, v{LANE}", f"v_mul_u32_u24 v{cLST}, {GAP*4}, v{cLST}", f"v_add_u32 v{cLST}, {LIST}, v{cLST}")
        e(f"s_lshr_b32 s{sEO}, s3, 1", f"s_mul_i32 s{sEO}, s{sEO}, 3", f"s_min_u32 s{sEO}, s{sEO}, 8", f"s_mul_i32 s{sT}, s{sEO}, 4608")
        e(f"v_and_b32 v{T+3}, 15, v{LANE}", f"v_lshrrev_b32 v{T+4}, 4, v{LANE}")
        e(f"v_mul_u32_u24 v{eFR}, 288, v{T+3}", f"v_lshl_add_u32 v{eFR}, v{T+4}, 4, v{eFR}", f"v_add_u32 v{eFR}, s{sT}, v{eFR}")
        e(f"v_lshrrev_b32 v{T+4}, 3, v{LANE}", f"v_lshlrev_b32 v{T+4}, 9, v{T+4}", f"v_and_b32 v{T+3}, 7, v{LANE}", f"v_lshl_add_u32 v{eST}, v{T+3}, 4, v{T+4}")
        e(f"s_lshl_b32 s{sEO}, s{sEO}, 12", f"s_and_b32 s{sT}, s3, 1", f"s_lshl_b32 s{sT}, s{sT}, 7", f"s_add_u32 s{sEO}, s{sEO}, s{sT}",
          f"s_lshl_b32 s{sT}, s{sT}, 7", f"s_add_u32 s{sT}, s{sT}, {WO}", f"v_add_u32 v{eWF}, s{sT}, v{X16}")
        e(f"s_cmp_eq_u32 s{sNCNT}, 40")
        tabs = []
        for part in PARTS[P["BIAS"]]:
            t = [0] * 40
            for w, p in enumerate(part):
                for sl, r in enumerate(p):
                    t[r] = w * 8 + sl
            tabs.append([sum(t[5 * q + i] << (6 * i) for i in range(5)) for q in range(8)])
        e(f"v_mov_b32 v{RT}, 0")
        for q in range(8):
            e(f"s_mov_b32 s{sT}, {tabs[0][q]}", f"s_cselect_b32 s{sT}, {tabs[1][q]}, s{sT}")
            m = 31 << (5 * q)
            e(f"s_mov_b32 exec_lo, {m & 0xffffffff}", f"s_mov_b32 exec_hi, {m >> 32}", f"v_mov_b32 v{RT}, s{sT}")
        e("s_mov_b64 exec, -1")
        e(f"v_mul_u32_u24 v{T+3}, 52, v{LANE}", f"v_lshrrev_b32 v{T+3}, 8, v{T+3}", f"v_mad_i32_i24 v{T+3}, v{T+3}, -5, v{LANE}",
          f"v_mul_u32_u24 v{T+3}, 6, v{T+3}", f"v_lshrrev_b32 v{RT}, v{T+3}, v{RT}")
        e(f"v_and_b32 v{T+3}, 7, v{RT}", f"v_bfe_u32 v{RT}, v{RT}, 3, 3", f"v_lshlrev_b32 v{T+3}, 12, v{T+3}", f"v_lshl_or_b32 v{RT}, v{RT}, 7, v{T+3}")
        srd(sSK, 14, 15, WS_SK, NCH * CS * 12)

    def extra(pos):
        if P["CPOS"] == pos:
            consts()
        if P["ACCZ"] == pos:
            for i in range(48):
                e(f"v_mov_b32 v{ACC+i}, 0")

    e("s_waitcnt lgkmcnt(0)")
    for i in range(5):
        e(f"v_add_u32 v{IV+i}, v{T+4}, v{IV+i}")
    for k in range(2):
        e(f"v_lshl_or_b32 v{TABV+2*k}, v{CT+k}, 11, v{ST+k}", f"v_or_b32 v{TABV+2*k}, s{sTAG2}, v{TABV+2*k}", f"v_mov_b32 v{TABV+2*k+1}, s{sTAG}")
    extra(0)
    e(f"s_waitcnt vmcnt({min(vq.n('w') + P['WGN'], vq.n('ea'))})")
    e("s_barrier")
    ts.stamp("land")
    for i in range(5):
        e(f"ds_read_b128 {vr(OUTV+8+4*i,4)}, v{IV+i}")
    extra(1)
    ts.stamp("guard")
    skst()
    for i in range(5):
        e(f"s_mov_b32 s{sT}, {8192*i}", f"s_waitcnt lgkmcnt({4-i})")
        vq.op("st", f"buffer_store_dwordx4 {vr(OUTV+8+4*i,4)}, v{T+7}, {sr(sA1)}, s{sT} offen sc1")
    aea(4)
    ts.stamp("issued")

    extra(2)
    e(f"s_lshl_b32 s{sT}, s2, 3", f"s_add_u32 s{sT}, s{sT}, s3", f"s_lshl_b32 s{sT}, s{sT}, 8")
    srd(sX, SK, SK + 1, None, N * 1024)
    srd(sEA, 14, 15, WS_EA, NCH * CS * 32)
    if P["XPF"]:
        n = P["XPF"]
        e(f"s_and_b32 s{sBASE}, s{sM0}, 7", f"s_mul_i32 s{sBASE}, s{sBASE}, {1252*1024}", f"s_and_b32 s{sT2}, s2, 0xf8",
          f"s_add_u32 s{sT2}, s{sT2}, s3", f"s_mul_i32 s{sT2}, s{sT2}, {n*128}", f"s_add_u32 s{sBASE}, s{sBASE}, s{sT2}")
        e(f"v_min_u32 v{T+6}, {n-1}, v{LANE}", f"v_lshlrev_b32 v{T+6}, 7, v{T+6}")
    xpf = f"buffer_load_dword v{PFV}, v{T+6}, {sr(sX)}, s{sBASE} offen"
    if P["XPF"] and P["XPOS"] < 0:
        e(f"s_waitcnt vmcnt({-P['XPOS']-1})", xpf, "s_waitcnt vmcnt(1)", "s_barrier")
    else:
        e("s_waitcnt vmcnt(0)", "s_barrier")
    ts.stamp("drained")
    e("s_mov_b64 exec, 0xffff")
    e(f"buffer_store_dwordx4 {vr(TABV,4)}, v{X16}, {sr(sTAB)}, s{sT} offen sc1")
    e("s_mov_b64 exec, -1")
    if P["XPF"] and P["XPOS"] == 0:
        e(xpf)
    e(f"s_lshl_b32 s{sT}, s{sNB}, 10", f"s_add_u32 s{sOUT}, s12, s{sT}", f"s_addc_u32 s{sOUT+1}, s13, 0",
      f"s_lshl_b32 s{sOUT+2}, s{sNCNT}, 10", f"s_mov_b32 s{sOUT+3}, 0x20000")
    frag_r(RW, T, T + 1, T + 2)
    if P["XPF"] and P["XPOS"] == 1:
        e(xpf)
    frag_o(128, 144, T, T + 1, SK + 8)
    for i in range(32):
        e(f"v_mov_b32 v{RW+i}, 0")
    e(f"s_lshl_b32 s{sT}, s3, 12", f"v_add_u32 v{T}, s{sT}, v{X16}")
    extra(3)
    if P["XPF"] and P["XPOS"] == 3:
        e("s_waitcnt vmcnt(0)")
    if P["XPF"] and P["XPOS"] >= 2:
        e(xpf)
    e(f"v_lshrrev_b32 v{T+1}, 1, v0", f"v_lshlrev_b32 v{T+2}, 11, v{T+1}", f"s_lshl_b32 s{sNR}, s{sB}, 3")
    e(f"v_mul_u32_u24 v{RG0}, {CS}, v{T+1}", f"s_mov_b32 s{sROFF}, 0", f"s_mov_b32 s{sCNT}, {SPIN}", f"s_mov_b32 s{sT2}, 0xffc00000")
    e(f"s_mul_i32 s{sEM}, s3, {CAPW*32}", f"s_add_u32 s{sEM}, s{sEM}, {EAST}", f"s_movk_i32 s{sK4}, 4096")
    e(f"s_waitcnt vmcnt({P['PW']})", "s_barrier")
    ts.stamp("frag")
    PL = 206
    poll1 = f"buffer_load_dwordx2 {vr(PL,2)}, v{T+2}, {sr(sTAB)}, s{sNR} offen sc1"

    def tagcheck():
        e(f"v_xor_b32 v{T+3}, s{sTAG2}, v{PL}", f"v_xor_b32 v{T+4}, s{sTAG}, v{PL+1}", f"v_and_or_b32 v{T+3}, v{T+3}, s{sT2}, v{T+4}")
        e(f"v_cmpx_ne_u32 vcc, 0, v{T+3}")

    e(poll1)
    for t in range(4):
        e(f"ds_write_b128 v{T}, {vr(144+4*t,4)} offset:{WO + 1024*t}")
    e("s_waitcnt vmcnt(0)")
    tagcheck()
    e("s_cbranch_execnz L_poll")
    e.label("L_polled")
    e("s_mov_b64 exec, -1")
    ts.stamp("tab")
    G1, G2, SKR, RNK, CA = TP + 8, TP + 12, TP + 20, TP, TP + 4
    MU = P["MU"]
    sVm = [sV, sV + 2, sV + 4, sA2]

    m0st = [None]

    def bea1(i):
        if m0st[0] != i // 4 or i == 6:
            e(f"s_add_u32 m0, s{sEM}, {4096*(i//4)}")
        m0st[0] = i // 4
        vq.op("ea", f"buffer_load_dwordx4 v{G2+i}, {sr(sEA)}, {'0' if i < 4 else 's%d' % sK4} offen offset:{1024*(i%4)} {ldpol} lds")

    def bea(p):
        for i in range(6):
            if bstage[i] == p:
                bea1(i)

    def skld(i):
        e(f"v_mad_u32_u24 v{G1+i}, v{G1+i}, 12, v{cL12}")
        vq.op(f"sk{i}", f"buffer_load_dwordx3 {vr(SKR+4*i,3)}, v{G1+i}, {sr(sSK)}, 0 offen offset:{768*i} {ldpol}")

    cmps = [f"v_cmp_lt_i32 s[{SK+2*i}:{SK+2*i+1}], {2*i}, v{T+2}" for i in range(MU + 1)]
    e(f"v_bfe_u32 v{RLEN}, v{PL}, 11, 11", f"v_and_b32 v{RBASE}, v{RLEN}, v{cODD}", f"v_add_u32 v{T+2}, v{RLEN}, v{cODD}")
    fill = [f"v_and_b32 v{T+3}, 0x7ff, v{PL}"] + cmps + [f"v_add_u32 v{RG0}, v{RG0}, v{T+3}"]
    e(fill.pop(0))
    for mod in ("row_shr:1 row_mask:0xf", "row_shr:2 row_mask:0xf", "row_shr:4 row_mask:0xf", "row_shr:8 row_mask:0xf", "row_bcast:15 row_mask:0xa", "row_bcast:31 row_mask:0xc"):
        e(f"v_add_u32_dpp v{RBASE}, v{RBASE}, v{RBASE} {mod} bank_mask:0xf")
        e(*fill[:2]); fill = fill[2:]
    e(f"v_readlane_b32 s{sNW}, v{RBASE}, 63")
    e(f"v_mov_b32_dpp v{RBASE}, v{RBASE} quad_perm:[0,0,2,2] row_mask:0xf bank_mask:0xf")
    e(f"v_sub_u32 v{RG0}, v{RG0}, v{RBASE}")
    e(f"v_lshl_add_u32 v{T}, v{RBASE}, 2, v{cMAPW}")
    e(f"s_cmp_gt_u32 s{sNW}, {CAPW}", "s_cbranch_scc1 L_clip")
    e.label("L_mapw")
    for i in range(MU):
        e(f"s_mov_b64 exec, s[{SK+2*i}:{SK+2*i+1}]")
        e(f"ds_write_b32 v{T}, v{RG0} offset:{8*i}")
    e("s_mov_b64 exec, -1")
    e(f"s_cmp_lg_u64 s[{SK+2*MU}:{SK+2*MU+1}], 0", "s_cbranch_scc1 L_map2")
    for i in range(3):
        e(f"ds_read_b32 v{G1+i}, v{cMAP1} offset:{256*i}")
    for i in range(6):
        e(f"ds_read_b32 v{G2+i}, v{cMAP2} offset:{128*i}")
    e(f"s_cmp_gt_i32 s{sNW}, 192", "s_cbranch_scc1 L_r1")
    e.label("L_r1b")
    e("s_waitcnt lgkmcnt(6)")
    ts.stamp("map")
    for i in range(3):
        skld(i)
    e(f"v_mov_b32 v{T+3}, s{sNW}", "s_mov_b64 exec, 1", f"ds_max_i32 v{T+5}, v{T+3} offset:{TOT}", "s_mov_b64 exec, -1")
    e("s_waitcnt lgkmcnt(1)")
    for i in range(6):
        e(f"v_lshl_add_u32 v{G2+i}, v{G2+i}, 5, v{X16}")
    if P["SKBAR"]:
        e("s_barrier")
    ts.stamp("skiss")
    bea(0)
    assert 5 not in bstage
    e(f"s_min_i32 s{sT}, s{sNW}, {CAPW}")
    for i in range(4):
        e(f"v_cmp_gt_i32 s[{sVm[i]}:{sVm[i]+1}], s{sT}, v{LANE}", f"s_sub_i32 s{sT}, s{sT}, 64")
    e(f"s_mov_b32 s{sT2}, 0x1fff80", f"s_mul_i32 s{sOFF}, s3, 5")
    assert P["SKBAR"]
    for q in range(NK):
        e(f"ds_read_b128 {vr(WF[q],4)}, v{eWF} offset:{1024*q}")

    def count(i):
        key = SKR + 4 * i + 2
        e(f"v_lshrrev_b32 v{CA+i}, 21, v{key}", f"v_lshlrev_b32 v{CA+i}, 2, v{CA+i}")
        e(f"v_lshrrev_b32 v{T+3}, 26, v{key}", f"v_lshl_or_b32 v{T+3}, v{T+3}, 4, v{cDEG}")
        e(f"s_mov_b64 exec, s[{sVm[i]}:{sVm[i]+1}]")
        e(f"ds_add_rtn_u32 v{RNK+i}, v{CA+i}, v{ONE} offset:{CNT2}")
        e(f"ds_add_u32 v{T+3}, v{ONE} offset:{DEG}")
        e("s_mov_b64 exec, -1")

    def entry(i):
        key = SKR + 4 * i + 2
        if i == 3:
            e("s_mov_b32 exec_hi, 0")
        e(f"ds_write_b64 v{cSH}, {vr(SKR+4*i,2)} offset:{512*i}")
        if i == 3:
            e("s_mov_b32 exec_hi, -1")
        e(f"v_and_or_b32 v{key}, v{key}, s{sT2}, v{cR21}")
        if i:
            e(f"v_add_u32 v{key}, {64*i << 21}, v{key}")

    for i in range(3):
        vq.wait(f"sk{i}")
        if i == 0:
            ts.stamp("sk")
        count(i)
    e(f"s_cmp_gt_i32 s{sNW}, 192", "s_cbranch_scc1 L_r2")
    e.label("L_r2b")
    ts.stamp("atom")
    e(f"s_or_b32 s{sT}, s2, s3", "s_cbranch_scc0 L_tag")
    e.label("L_tagged")
    bea(1)
    for j in range(1, 5):
        e(f"s_add_u32 s{SK+j}, s{sOFF}, {j}")
    e("s_waitcnt lgkmcnt(0)", "s_barrier")
    ts.stamp("b1")
    CN, CAD = XR, XR + 8
    e(f"s_cmp_lg_u32 s{sROFF}, 0", "s_cbranch_scc1 L_rank2")
    e(f"ds_read_b128 {vr(CAD,4)}, v{X16} offset:{DEG}")
    for j in range(5):
        e(f"ds_read_b32 v{CN+j}, v{cROW} offset:{CNT2 + 128*j}")
    e(f"ds_read_b32 v{T+6}, v{T+5} offset:{TOT}")
    if P["ENP"] == 0:
        for i in range(3):
            entry(i)
    e(f"s_waitcnt lgkmcnt({9 if P['ENP'] == 0 else 6})")
    e(f"v_add_u32 v{T+1}, v{CAD}, v{CAD+1}", f"v_add3_u32 v{T+1}, v{T+1}, v{CAD+2}, v{CAD+3}")
    e(f"v_lshl_or_b32 v{T+1}, v{T+1}, 6, v{cTIE}")
    for j in range(5):
        e(f"v_readlane_b32 s{SK+j}, v{T+1}, s{SK+j if j else sOFF}")
    for j in range(5):
        e(f"v_cmp_lt_u32 s[{SK+6+2*j}:{SK+7+2*j}], s{SK+j}, v{T+1}")
    for j in range(5):
        e(f"s_bcnt1_i32_b64 s{SK+j}, s[{SK+6+2*j}:{SK+7+2*j}]")
    e(f"s_waitcnt lgkmcnt({3 if P['ENP'] == 0 else 0})")
    for j in range(5):
        e(f"v_readlane_b32 s{sASG[j]}, v{RT}, s{SK+j}")
    e(f"v_readfirstlane_b32 s{sN}, v{T+6}")
    e.label("L_ranked")
    e("s_mov_b32 exec_hi, 0")
    for j in range(5):
        e(f"v_and_or_b32 v{CAD+j}, s{sASG[j]}, v{c380}, v{cBIN}")
        e(f"ds_add_rtn_u32 v{CN+j}, v{CAD+j}, v{CN+j} offset:{WB}")
    for j in range(5):
        e(f"v_or_b32 v{CAD+j}, s{sASG[j]}, v{cBIN}")
    e(f"s_lshl_b32 s{sT}, s3, 3", f"s_add_u32 s{sOFF}, s{sT}, 7")
    for j in range(5):
        if j in (0, 2):
            e(f"s_waitcnt lgkmcnt({3 if j == 0 else 2})")
        e(f"v_lshl_or_b32 v{CN+j}, v{CN+j}, 16, v{CAD+j}")
        e(f"ds_write_b32 v{cROW}, v{CN+j} offset:{CNT2 + 128*j}")
    e("s_mov_b32 exec_hi, -1")
    ts.stamp("rank")
    bea(2)
    if P["ENP"] == 1:
        for i in range(3):
            entry(i)
    e(f"s_waitcnt lgkmcnt({3 if P['ENP'] == 1 else 0})", "s_barrier")
    ts.stamp("b2")
    e(f"ds_read_b128 {vr(CN,4)}, v{X16} offset:{WB}")
    for i in range(3):
        e(f"ds_read_b32 v{CA+i}, v{CA+i} offset:{CNT2}")
    bea(6)
    e("s_waitcnt lgkmcnt(3)")
    e(f"v_add_u32 v{T+1}, v{CN}, v{CN+1}", f"v_add3_u32 v{T+1}, v{T+1}, v{CN+2}, v{CN+3}", f"v_mov_b32 v{T+2}, v{T+1}")
    e("s_waitcnt lgkmcnt(0)")

    def place(i):
        key = SKR + 4 * i + 2
        return [f"v_bfe_u32 v{T+7}, v{CA+i}, 12, 3", f"v_or_b32 v{key}, v{T+7}, v{key}", f"v_and_b32 v{G1+i}, 0x3ff, v{CA+i}",
                f"v_lshrrev_b32 v{CA+i}, 16, v{CA+i}", f"v_add_u32 v{CA+i}, v{CA+i}, v{RNK+i}"]

    fill = place(0) + place(1) + place(2)
    e(fill.pop(0))
    for mod in ("row_shr:1 row_mask:0xf", "row_shr:2 row_mask:0xf", "row_shr:4 row_mask:0xf", "row_shr:8 row_mask:0xf", "row_bcast:15 row_mask:0xa", "row_bcast:31 row_mask:0xc"):
        e(f"v_add_u32_dpp v{T+2}, v{T+2}, v{T+2} {mod} bank_mask:0xf")
        e(*fill[:2]); fill = fill[2:]
    e(f"v_sub_u32 v{T+1}, v{T+2}, v{T+1}")
    e(f"v_lshl_add_u32 v{CAD}, v{T+1}, 2, v{cLST}")
    for k in range(3):
        e(f"v_lshl_add_u32 v{CAD+1+k}, v{CN+k}, 2, v{CAD+k}")
    e(f"ds_write_b128 v{X16}, {vr(CAD,4)} offset:{START}")
    for i in range(3):
        e(f"ds_read_b32 v{G1+i}, v{G1+i} offset:{START}")
    e(*fill)
    e(f"v_readlane_b32 s{sNV}, v{T+2}, s{sOFF}", f"v_readlane_b32 s{sCNT}, v{T+1}, s{sT}", f"v_readlane_b32 s{sBASE}, v{CAD}, s{sT}")
    e(f"v_mov_b32 v{T+6}, {(0x3fff << 7) | 5}")
    e(f"s_sub_u32 s{sNV}, s{sNV}, s{sCNT}", f"s_lshl2_add_u32 s{sT2}, s{sNV}, s{sBASE}", f"v_add_u32 v{T+1}, s{sT2}, v{LAC}")
    e(f"ds_write_b32 v{T+1}, v{T+6}")
    assert D == 6
    sP0 = sT
    e(f"s_add_u32 s{sCNT}, s{sNV}, 15", f"s_lshr_b32 s{sCNT}, s{sCNT}, 4", f"s_sub_u32 s{sP0}, 0, s{sNV}", f"s_and_b32 s{sP0}, s{sP0}, 14",
      f"s_sub_u32 s{sCNT}, s{sCNT}, 1", f"s_cmp_gt_i32 s{sCNT}, 0", f"s_cselect_b32 s{sP0}, s{sP0}, 0", f"s_lshl_b32 s{sOFF}, s{sP0}, 2",
      f"s_sub_u32 s{sBASE}, s{sBASE}, s{sOFF}")

    def scatter(i):
        e(f"s_mov_b64 exec, s[{sVm[i]}:{sVm[i]+1}]")
        e(f"ds_write_b32 v{CA+i}, v{SKR+4*i+2}")

    e("s_waitcnt lgkmcnt(1)")
    for i in range(3):
        e(f"v_lshl_add_u32 v{CA+i}, v{CA+i}, 2, v{G1+i}")
    for i in range(3):
        scatter(i)
    e("s_mov_b64 exec, -1")
    e(f"s_cmp_gt_i32 s{sNW}, 192", "s_cbranch_scc1 L_r3")
    e.label("L_r3b")
    bea(3)
    ts.stamp("list")
    e(f"v_add_u32 v{LA}, s{sBASE}, v{LAC}", f"v_add_u32 v{LB}, s{sBASE}, v{LBC}",
      f"s_and_b32 s{sOFF}, s{sOFF}, 32", f"v_add_u32 v{T+4}, s{sOFF}, v{LA}", f"s_and_b32 s{SK+8}, s{sP0}, 6")
    e(f"s_mov_b32 s{sT2}, 0x00fffc38", f"s_mov_b32 s{sNR}, 0xffffff00", f"s_mov_b32 s{sBASE}, {SHST}")
    if P["PRIO"] == 1:
        e("s_cmp_lt_u32 s3, 4", "s_cbranch_scc1 L_np", "s_setprio 1")
        e.label("L_np")
    e("s_waitcnt lgkmcnt(0)", "s_barrier")
    ts.stamp("b4")
    e(f"ds_read_b32 v{K}, v{T+4}", f"ds_read_b32 v{ENT+2}, v{LB}", f"ds_read_b32 v{KN}, v{LA} offset:{4*D}", f"ds_read_b32 v{NOD}, v{cNOD} offset:{CNT2}")
    e(f"s_cmp_eq_u32 s{sNV}, 0", "s_cbranch_scc1 L_empty")

    def agaddr():
        e(f"v_lshlrev_b32 v{T+4}, 2, v{LANE}", f"s_lshl_b32 s{sOFF}, s3, 7")
        e(f"v_and_b32 v{NOD}, 0x7380, v{NOD}", f"v_xor_b32 v{NOD}, s{sOFF}, v{NOD}")
        e(f"v_alignbit_b32 v{NOD}, v{NOD}, v{NOD}, 12")
        m = [f"s[{q}:{q+1}]" for q in sVm] + ["vcc"]
        for j in range(5):
            e(f"v_cmp_eq_u32 {m[j]}, {j}, v{NOD}")
        for j in range(5):
            e(f"s_ff1_i32_b64 s{sNODE+j}, {m[j]}", f"s_mul_i32 s{sNODE+j}, s{sNODE+j}, 1152", f"v_add_u32 v{eAG[j]}, s{sNODE+j}, v{T+4}")

    AL = P["ALIGN"]

    def al():
        if AL:
            e(".p2align 3")

    def ea_reads():
        e(f"v_lshrrev_b32 v{T}, 21, v{ENT+2}", f"v_lshl_add_u32 v{T+3}, v{T}, 3, s{sBASE}", f"v_lshl_add_u32 v{T}, v{T}, 5, v{EAC}")
        e(f"ds_read_b64 {vr(ENT,2)}, v{T+3}")
        e(f"ds_read_b128 {vr(EA0,4)}, v{T}")

    def wfr(*qs):
        for q in qs:
            e(f"ds_read_b128 {vr(WF[q],4)}, v{eWF} offset:{1024*q}")

    def zq(q):
        e(f"ds_read_b128 {vr(RW+4*q,4)}, v{ZAD}", f"ds_read_b128 {vr(RW+16+4*q,4)}, v{ZAD}")

    def pq(j):
        p = PQ + 2 * (j % 2)
        if P["PQP"]:
            pr = [f"v_perm_b32 v{p}, v{T+1}, v{T+1}, v{(MP, 254)[j%2]}", f"v_perm_b32 v{p+1}, v{T+1}, v{T+1}, v{(MQ, 255)[j%2]}"]
            return pr if j % 2 else [f"v_cvt_pk_bf16_f32 v{T+1}, v{AGN+j}, v{AGN+j+1}"] + pr
        return [f"v_cvt_pk_bf16_f32 v{T+1+j%2}, v{AGN+j}, v{AGN+j}", f"v_and_b32 v{p}, v{MP}, v{T+1+j%2}", f"v_and_b32 v{p+1}, v{MQ}, v{T+1+j%2}"]

    def head(kind):
        if P["PRIO"] in (4, 5) and kind != "first":
            e("s_setprio 3")
        e(f"s_waitcnt lgkmcnt({0 if kind == 'first' else 2})"); al()
        for q in range(4):
            e(f"v_mfma_f32_4x4x4_16b_bf16 {vr(AGN+4*q,4)}, {vr(ENT,2)}, {vr(CGF,2)}, 0 cbsz:4 abid:{2*q}")
        e(f"v_lshlrev_b32 v{K}, 3, v{KN}", f"v_and_b32 v{K}, s{sT2}, v{K}")
        rd = []
        if kind != "last":
            e(f"v_add_u32 v{LA}, 64, v{LA}", f"v_add_u32 v{LB}, 64, v{LB}")
            rd = [f"ds_read_b32 v{KN}, v{LA} offset:{4*D}", f"ds_read_b32 v{ENT+2}, v{LB}"]
        if kind != "first":
            e("s_waitcnt lgkmcnt(0)"); al()
        groups = [rd + (pq(0) if kind != "first" else []), []]
        for h in range(2):
            e(f"v_smfmac_f32_32x32x32_bf16 {vr(RW+16*h,16)}, {vr(EA0,4)}, {vr(WRF+8*h,8)}, v{SIX}")
            e(*groups[h])

    def pks(j):
        t = TP + 8 * (j % 2)
        for h in range(2):
            r = RW + 16 * h + j
            rp = r & ~1
            sel = "op_sel:[0,1,0] op_sel_hi:[1,1,1]" if r & 1 else "op_sel_hi:[1,0,1]"
            for q in range(2):
                a = ACC + 4 * h + 2 * q
                e(f"v_pk_fma_f32 {vr(a,2)}, {vr(t+4*h+2*q,2)}, {vr(rp,2)}, {vr(a,2)} {sel}")

    def mf(j, h):
        t, p, s = TP + 8 * (j % 2), PQ + 2 * (j % 2), XR + 4 * (j % R)
        e(f"v_mfma_f32_16x16x16_bf16 {vr(t+4*h,4)}, {vr(p,2)}, {vr(s+2*h,2)}, 0")

    def rl(q, lane):
        e(f"v_readlane_b32 s{SK + q % 8}, v{K}, {lane}")

    def sand(q):
        e(f"s_and_b32 s{sOFF}, s{SK + q % 8}, s{sNR}")

    def xl(q):
        e(f"buffer_load_dwordx4 {vr(XR + 4 * (q % R),4)}, v{X16}, {sr(sX)}, s{sOFF} offen")

    def body(last):
        for j in range(0, 16, 2):
            ld = not last or j + D < 16
            if not last or j == 0:
                e.label(f"L_{'f' if last else 'j'}{j}")
            nx = pq(j + 1)
            if P["PRIO"] == 4 and j % 4 == 0 and j:
                e(f"s_setprio {3 - j // 4}")
            if P["PRIO"] == 5:
                e(f"s_setprio {3 - (j // 2) % 4}")
            e(f"s_waitcnt vmcnt({D-1 if ld else 15-j})"); al()
            mf(j, 0)
            if ld:
                rl(j + D, j)
            e(*nx[:1]); mf(j, 1); e(*nx[1:])
            if ld and P["SCH"] == 2:
                sand(j + D); e(f"s_waitcnt vmcnt({D-2})"); xl(j + D)
            elif ld:
                sand(j + D); xl(j + D); e(f"s_waitcnt vmcnt({D-1})")
            else:
                e(f"s_waitcnt vmcnt({14-j})"); al()
            nx = pq(j + 2) if j < 14 else []
            mf(j + 1, 0)
            if ld:
                rl(j + 1 + D, j + 1)
            e(*nx[:1]); mf(j + 1, 1); e(*nx[1:])
            if last and j == 2 and P["AGP"] == 2:
                agaddr(); al()
            if j == 2 and not last:
                e("s_waitcnt lgkmcnt(0)")
                ea_reads(); al()
            if ld:
                sand(j + 1 + D)
            e(f"s_set_gpr_idx_on s{SK + j % 8}, gpr_idx(SRC2,DST)")
            xl(j + 1 + D) if ld else al()
            pks(j)
            e(f"s_set_gpr_idx_idx s{SK + (j + 1) % 8}")
            if j == 14 and not last:
                e(f"s_sub_u32 s{sCNT}, s{sCNT}, 1")
            al()
            pks(j + 1)
            if j % 4 == 2 and not last:
                zq(j // 4)
            if last and j >= 6 and P["WFT"]:
                wfr(*((14, 15) if j == 6 else (j - 2, j - 1)))
            e("s_set_gpr_idx_off")

    e("s_waitcnt lgkmcnt(3)")
    e(f"v_lshlrev_b32 v{K}, 3, v{K}", f"v_and_b32 v{K}, s{sT2}, v{K}")
    NB5 = P["NB5"]

    def pair(q):
        rl(q, q); rl(q + 1, q + 1)
        sand(q); xl(q); sand(q + 1); xl(q + 1)

    for q in (2, 4, 6):
        e(f"s_cmp_eq_u32 s{SK+8}, {q}", f"s_cbranch_scc1 L_p{q}")
    for q0 in (0, 2, 4, 6):
        e.label(f"L_p{q0}")
        for i in range(NB5):
            pair(q0 + 2 * i)
        if P["AGP"] == 0:
            e("s_waitcnt lgkmcnt(0)")
            agaddr()
        e(f"s_waitcnt vmcnt({2*NB5}) lgkmcnt(0)", "s_barrier")
        ea_reads()
        for i in range(NB5, 3):
            pair(q0 + 2 * i)
        if q0 < 6:
            e("s_branch L_pd")
    e.label("L_pd")
    if P["AGP"] == 1:
        agaddr()
    ts.stamp("b5")
    head("first")
    e(f"s_set_gpr_idx_on s{sP0}, gpr_idx(SRC0,SRC1)")
    e.idx_range, keep = {("v", i) for i in range(AGN, AGN + 16)}, e.idx_range
    e(pq(0)[0])
    e.idx_range = keep
    e("s_set_gpr_idx_off")
    e(*pq(0)[1:])
    e("s_waitcnt lgkmcnt(0)")
    ea_reads()
    e(f"s_cmp_eq_u32 s{sCNT}, 0", "s_cbranch_scc1 L_f0")
    for j in range(0, 14, 2):
        e(f"s_cmp_eq_u32 s{sP0}, {j}", f"s_cbranch_scc1 L_j{j}")
        if j % 4 == 2:
            zq(j // 4)
    e("s_branch L_j14")
    if P["LAL"] < 0:
        e(".p2align 3")
    else:
        e(".p2align 6")
        for _ in range(P["LAL"] // 4):
            e.raw("    s_nop 0")
    e.label("L_loop")
    head("mid")
    body(False)
    e(f"s_cmp_lg_u32 s{sCNT}, 0", "s_cbranch_scc1 L_loop")
    head("last")
    body(True)
    e.label("L_swept")
    ts.stamp("swept")
    e(f"s_add_u32 s{sROFF}, s{sROFF}, {CAPW}", f"s_cmp_lt_u32 s{sROFF}, s{sN}", "s_cbranch_scc1 L_again")
    AF, DD, OB, OT = ACC, 160, 64, 80
    if P["EPRIO"] >= 0:
        e(f"s_setprio {P['EPRIO']}")
    for s in range(5):
        for w in range(4):
            e(f"v_cvt_pk_bf16_f32 v{RW+4*s+w}, v{ACC+8*s+w}, v{ACC+8*s+4+w}")
        for w in (0, 2):
            e(f"ds_write2_b32 v{eAG[s]}, v{RW+4*s+w}, v{RW+4*s+w+1} offset0:{72*w} offset1:{72*w+72}")
    NPRE = 16
    if not P["WFT"]:
        wfr(*range(NK, 16))
    e(f"s_waitcnt lgkmcnt({0 if P['WFT'] else NPRE - NK})", "s_barrier")
    ts.stamp("agb")
    lq = [f"w{q}" for q in range(NPRE)]

    def lop(tag, text):
        e(text); lq.append(tag)

    def lwait(*tags):
        n = len(lq) - 1 - max(lq.index(t) for t in tags)
        e(f"s_waitcnt lgkmcnt({min(n, 15)})")

    def afrag(k, ss=range(4)):
        for s in ss:
            lop(f"a{k}{s}", f"ds_read_b128 {vr(AF+16*k+4*s,4)}, v{eFR} offset:{AGL + 4608*k + 64*s}")

    def post(k, pol=P['OUTPOL']):
        d, o = DD + 16 * (k % 2), OB + 8 * (k % 2)
        x = []
        for r in range(2):
            for c in range(2):
                x.append(f"v_cvt_pk_bf16_f32 v{o+4*r+c}, v{d+8*c+r}, v{d+8*c+4+r}")
                x.append(f"v_cvt_pk_bf16_f32 v{OT+2*r+c}, v{d+8*c+r}, v{d+8*c+4+r}")
                x.append(f"v_cvt_pk_bf16_f32 v{o+4*r+2+c}, v{d+8*c+r+2}, v{d+8*c+4+r+2}")
            for c in range(2):
                x.append(f"v_mov_b32_dpp v{o+4*r+c}, v{o+4*r+2+c} row_ror:8 row_mask:0xf bank_mask:0xc")
            for c in range(2):
                x.append(f"v_mov_b32_dpp v{o+4*r+2+c}, v{OT+2*r+c} row_ror:8 row_mask:0xf bank_mask:0x3")
            x.append(f"buffer_store_dwordx4 {vr(o+4*r,4)}, v{eST}, {sr(sOUT)}, s{sEO} offen offset:{256*r} {pol}")
        x.append(f"s_add_u32 s{sEO}, s{sEO}, 4096")
        return x

    def tile(k, pend):
        d = DD + 16 * (k % 2)
        for s in range(4):
            if k == 0:
                lwait(f"a0{s}", f"w{4*s+3}")
            elif s == 0:
                lwait(f"a{k}3")
            for t in range(4):
                c = "0" if s == 0 else vr(d + 4 * t, 4)
                e(f"v_mfma_f32_16x16x32_bf16 {vr(d+4*t,4)}, {vr(AF+16*k+4*s,4)}, {vr(WF[4*s+t],4)}, {c}")
                if 4 * s + t >= 4:
                    e(*pend[:2]); pend = pend[2:]
            if k == 0 and s == 0:
                afrag(1)
            if k == 0 and s == 1:
                afrag(2)
        e(*pend)

    for s in range(4):
        afrag(0, [s])
        for q in range(max(NPRE, 4 * s), 4 * s + 4):
            lop(f"w{q}", f"ds_read_b128 {vr(WF[q],4)}, v{eWF} offset:{1024*q}")
    tile(0, [])
    tile(1, post(0))
    e("s_cmp_ge_u32 s3, 4", "s_cbranch_scc1 L_two")
    tile(2, post(1))
    e(*post(2, P['LASTPOL']))
    e.label("L_stored")
    ts.stamp("stored")
    if P["DIAGW"] and P["DIAGAT"] == "fin":
        e("s_waitcnt vmcnt(0)")
        ts.stamp("fin")
    if P["DIAGW"]:
        e(f"s_add_u32 s6, s{sTSP+1}, {P['DIAGW']}", "s_min_u32 s6, s6, 30000")
        e.label("L_diag")
        e("s_memrealtime s[4:5]", "s_waitcnt lgkmcnt(0)", f"s_sub_u32 s4, s4, s{sTSP}", "s_cmp_lt_u32 s4, s6", "s_cbranch_scc1 L_diag")
    if P["TS"]:
        e("s_waitcnt vmcnt(0)")
        ts.stamp("end")
        e(f"s_lshl_b32 s{sT}, s2, 3", f"s_add_u32 s{sT}, s{sT}, s3", f"s_lshl_b32 s{sT}, s{sT}, 8", f"s_add_u32 s{sT}, s{sT}, {WS_TS}")
        e(f"v_lshl_add_u32 v{T}, v{LANE}, 2, s{sT}", f"global_store_dword v{T}, v{TSV}, s[14:15]")
        if P["DBG"]:
            e(f"s_cmp_lg_u32 s2, {P['DBG']}", "s_cbranch_scc1 L_done", "s_cmp_lg_u32 s3, 0", "s_cbranch_scc1 L_done")
            e("s_load_dwordx2 s[4:5], s[0:1], 72", f"v_readlane_b32 s{sT}, v{TSV}, 0", f"v_lshlrev_b32 v{T}, 2, v{LANE}")
            e(f"v_subrev_u32 v{TSV}, s{sT}, v{TSV}", "s_waitcnt lgkmcnt(0)", f"global_store_dword v{T}, v{TSV}, s[4:5]")
    e.label("L_done")
    e("s_endpgm")
    e.label("L_again")
    e("s_waitcnt vmcnt(0) lgkmcnt(0)", "s_barrier")
    init_round(False)
    for i in range(32):
        e(f"v_mov_b32 v{RW+i}, 0")
    e(f"v_add_u32 v{RLEN}, v{RLEN}, v{RBASE}", f"v_subrev_u32 v{RLEN}, {CAPW}, v{RLEN}", f"v_max_i32 v{RLEN}, 0, v{RLEN}")
    e(f"v_subrev_u32 v{RBASE}, {CAPW}, v{RBASE}", f"v_max_i32 v{RBASE}, 0, v{RBASE}", f"v_sub_u32 v{RLEN}, v{RLEN}, v{RBASE}")
    e(f"v_add_u32 v{RG0}, {CAPW}, v{RG0}", f"s_sub_i32 s{sNW}, s{sNW}, {CAPW}", f"v_lshl_add_u32 v{T}, v{RBASE}, 2, v{cMAPW}")
    e("s_waitcnt lgkmcnt(0)", "s_barrier")
    e.label("L_clip")
    e(f"v_add_u32 v{T+2}, v{RBASE}, v{RLEN}", f"v_min_i32 v{T+2}, {CAPW}, v{T+2}", f"v_sub_u32 v{T+2}, v{T+2}, v{RBASE}", f"v_add_u32 v{T+2}, v{T+2}, v{cODD}")
    e.label("L_masks")
    e(*cmps)
    e("s_nop 0", "s_branch L_mapw")
    e.label("L_map2")
    e(f"v_add_u32 v{T}, {8*MU}, v{T}", f"v_subrev_u32 v{T+2}, {2*MU}, v{T+2}")
    e("s_branch L_masks")
    e.label("L_r1")
    e(f"ds_read_b32 v{G1+3}, v{cMAP1} offset:768", f"ds_read_b32 v{G2+6}, v{cMAP2} offset:768")
    e("s_waitcnt lgkmcnt(0)")
    skld(3)
    for i in (6,):
        e(f"v_lshl_add_u32 v{G2+i}, v{G2+i}, 5, v{X16}")
        bea1(i)
    e("s_branch L_r1b")
    e.label("L_r2")
    count(3)
    entry(3)
    e("s_branch L_r2b")
    e.label("L_r3")
    e(f"ds_read_b32 v{CA+3}, v{CA+3} offset:{CNT2}", "s_waitcnt lgkmcnt(0)")
    e(*place(3))
    e(f"ds_read_b32 v{G1+3}, v{G1+3} offset:{START}", "s_waitcnt lgkmcnt(0)")
    e(f"v_lshl_add_u32 v{CA+3}, v{CA+3}, 2, v{G1+3}")
    scatter(3)
    e("s_mov_b64 exec, -1", "s_branch L_r3b")
    e.label("L_tag")
    e(f"v_mov_b32 v{T+3}, s{sTAG}", f"s_mov_b32 s{sT}, {WS_W}")
    e(f"buffer_store_dword v{T+3}, v{cMAP1}, {sr(sTAB)}, s{sT} offen sc1")
    e("s_branch L_tagged")
    e.label("L_empty")
    e("s_waitcnt vmcnt(0) lgkmcnt(0)", "s_barrier")
    agaddr()
    if P["WFT"]:
        wfr(*range(NK, 16))
    e("s_branch L_swept")
    e.label("L_two", pad=8)
    e(*post(1, P['LASTPOL']))
    e("s_branch L_stored")
    e.label("L_poll")
    e(poll1, f"s_sub_u32 s{sCNT}, s{sCNT}, 1", "s_cbranch_scc1 L_done", "s_waitcnt vmcnt(0)")
    tagcheck()
    e("s_cbranch_execnz L_poll", "s_branch L_polled")
    e.label("L_rank2")
    for j in range(5):
        e(f"ds_read_b32 v{CN+j}, v{cROW} offset:{CNT2 + 128*j}")
    if P["ENP"] == 0:
        for i in range(3):
            entry(i)
    e("s_waitcnt lgkmcnt(0)")
    e.label("L_end")
    e("s_branch L_ranked")
    return e.text(), LDS, 256, 102


HEADER = """; Kernarg layout for this problem (88 bytes, ptrs only, base s[0:1]):
"""


def generate(**kw):
    P = dict(DEF)
    P.update(kw)
    k, lds, v, s = gen(P)
    n = NAME + "_kernel"
    out = HEADER
    out += f"; @launch grid=(256,1,1) block=(512,1,1) lds={lds}\n"
    out += '.amdgcn_target "amdgcn-amd-amdhsa--gfx950"\n.text\n'
    out += f".globl {n}\n.p2align 8\n.type {n},@function\n{n}:\n{k}"
    out += '.section .rodata,"a"\n'
    out += (f".p2align 6\n.amdhsa_kernel {n}\n  .amdhsa_next_free_vgpr {v}\n  .amdhsa_next_free_sgpr {s}\n"
            f"  .amdhsa_accum_offset {(v+3)//4*4}\n  .amdhsa_group_segment_fixed_size 0\n  .amdhsa_kernarg_size 88\n"
            f"  .amdhsa_user_sgpr_count 2\n  .amdhsa_user_sgpr_kernarg_segment_ptr 1\n  .amdhsa_system_sgpr_workgroup_id_x 1\n"
            f"  .amdhsa_float_denorm_mode_32 3\n.end_amdhsa_kernel\n")
    return out


if __name__ == "__main__":
    kw = {}
    for a in sys.argv[1:]:
        k, v = a.split("=", 1)
        kw[k] = int(v) if v.lstrip("-").isdigit() else v
    sys.stdout.write(generate(**kw))
```

```python
import sys, os
sys.path.insert(0, os.path.dirname(os.path.abspath(__file__)))
from emit import Emitter

NAME = "gather_scatter__tensor_product_equiv_mace__graph"
N, E = 10000, 320000
CH, NCH, CS = 1250, 256, 1280
WS_TAB, WS_W, WS_SK, WS_EA, WS_TS = 0, 0xc0000, 0x100000, 0x580000, 0x2000000
WS_FL = 0xd0000
CAPW, GAP = 224, 16
CAP = 8 * CAPW
SPIN = 200000

DEF = dict(PT=0, SKF=0, CS=1280, TST=2048, WV=0, EAF=1, TPW=0, XPOL="", WSO=0, XP2=0, XQ=3, PPOS=0, KE=2, B4P=1, RWZ=3, DH=0, FL=1, FRP=0, FP=1, FQ=2, NREP=8, LAL=-1, XPOS=0, PQP=1, NB5=1, AGP=2, ENP=0, PW=0, WFT=1, WFK=6, LASTPOL='sc1', EPRIO=0, BIAS=30, SCH=2, ALIGN=0, PRIO=1, DIAGW=0, DIAGK=0, DIAGAT='tab', D=6, TS=0, DBG=0, APOL="nt", AEA="00011", BEA="001223", SKBAR=1, ABAR=2, XPF=18, CPF=2, MU=7, OUTPOL="sc1", LDPOL="sc1", WST=3, WOST=3, ACCZ=2, CPOS=2, WGN=0)

PART39 = [[3, 11, 21, 31, 36], [5, 8, 20, 27, 38], [0, 6, 7, 13, 39], [9, 14, 18, 25, 34], [10, 16, 19, 24, 32], [4, 12, 26, 29, 33], [1, 17, 23, 28, 37], [2, 15, 22, 30, 35]]
PART40 = [[1, 10, 15, 30, 39], [2, 9, 21, 28, 37], [4, 14, 22, 27, 31], [6, 12, 18, 24, 35], [3, 8, 16, 29, 38], [5, 13, 17, 26, 34], [0, 20, 23, 32, 36], [7, 11, 19, 25, 33]]
PARTS = {0: (PART39, PART40)}
PARTS[12] = ([[12, 16, 24, 26, 30], [8, 14, 15, 31, 36], [2, 10, 23, 34, 37], [5, 17, 18, 22, 38], [0, 1, 7, 19, 39], [3, 11, 20, 29, 35], [6, 9, 25, 27, 32], [4, 13, 21, 28, 33]],
    [[9, 12, 19, 28, 32], [3, 10, 22, 29, 37], [7, 8, 23, 26, 36], [0, 18, 20, 34, 38], [5, 6, 14, 21, 39], [4, 11, 16, 24, 35], [1, 15, 25, 27, 31], [2, 13, 17, 30, 33]])
PARTS[20] = ([[13, 17, 24, 26, 31], [4, 16, 25, 29, 36], [5, 19, 23, 28, 35], [1, 6, 8, 10, 39], [7, 9, 20, 27, 32], [3, 12, 14, 33, 34], [2, 15, 18, 22, 37], [0, 11, 21, 30, 38]],
    [[11, 12, 17, 20, 38], [3, 16, 26, 28, 34], [8, 10, 19, 29, 36], [7, 14, 25, 27, 31], [6, 13, 15, 24, 30], [0, 9, 22, 23, 39], [2, 4, 21, 32, 35], [1, 5, 18, 33, 37]])
PARTS[30] = ([[12, 16, 25, 29, 32], [0, 5, 9, 20, 39], [1, 18, 27, 34, 37], [7, 19, 22, 30, 35], [2, 6, 24, 26, 36], [4, 11, 13, 31, 33], [10, 15, 17, 21, 28], [3, 8, 14, 23, 38]],
    [[6, 9, 26, 28, 37], [1, 11, 24, 35, 38], [5, 17, 23, 31, 33], [8, 12, 21, 29, 36], [2, 4, 15, 22, 39], [7, 10, 14, 18, 34], [0, 16, 20, 30, 32], [3, 13, 19, 25, 27]])
PARTS[40] = ([[7, 13, 28, 29, 37], [10, 17, 22, 30, 36], [1, 4, 6, 23, 39], [9, 19, 26, 31, 33], [5, 12, 15, 18, 35], [2, 11, 16, 27, 34], [0, 8, 24, 25, 38], [3, 14, 20, 21, 32]],
    [[8, 17, 25, 31, 32], [3, 19, 22, 28, 38], [6, 15, 18, 33, 37], [2, 14, 24, 29, 39], [0, 12, 21, 27, 34], [1, 9, 13, 26, 36], [5, 7, 10, 23, 35], [4, 11, 16, 20, 30]])
PARTS[50] = ([[2, 19, 28, 35, 37], [0, 6, 11, 24, 39], [15, 17, 27, 29, 34], [1, 20, 30, 32, 38], [4, 7, 18, 23, 33], [9, 10, 12, 21, 31], [5, 13, 16, 25, 26], [3, 8, 14, 22, 36]],
    [[7, 15, 27, 30, 36], [8, 18, 19, 28, 38], [4, 14, 31, 33, 35], [6, 13, 20, 29, 39], [2, 3, 22, 23, 34], [0, 11, 12, 26, 37], [1, 9, 17, 24, 32], [5, 10, 16, 21, 25]])
PARTS[-10] = ([[5, 13, 17, 28, 34], [7, 12, 16, 30, 32], [1, 9, 25, 26, 38], [11, 14, 18, 22, 33], [0, 2, 10, 20, 39], [3, 6, 23, 35, 37], [15, 19, 21, 24, 29], [4, 8, 27, 31, 36]],
    [[0, 13, 22, 31, 37], [3, 8, 20, 28, 35], [4, 12, 16, 27, 34], [9, 11, 14, 18, 36], [5, 7, 19, 23, 39], [2, 15, 26, 30, 32], [6, 10, 17, 24, 38], [1, 21, 25, 29, 33]])
PARTS[-20] = ([[7, 13, 19, 20, 34], [6, 10, 23, 28, 30], [2, 5, 27, 29, 36], [0, 15, 22, 26, 38], [4, 11, 25, 31, 37], [1, 3, 9, 12, 39], [14, 18, 21, 24, 33], [8, 16, 17, 32, 35]],
    [[5, 9, 16, 20, 36], [8, 10, 15, 21, 33], [3, 7, 22, 25, 34], [4, 14, 18, 26, 28], [6, 12, 17, 29, 37], [0, 11, 23, 35, 39], [2, 19, 27, 30, 32], [1, 13, 24, 31, 38]])


def vr(a, n):
    return f"v[{a}:{a+n-1}]" if n > 1 else f"v{a}"


def sr(a, n=4):
    return f"s[{a}:{a+n-1}]"


def scan_dpp(e, v, full):
    for k in (1, 2, 4, 8):
        e(f"v_add_u32_dpp v{v}, v{v}, v{v} row_shr:{k} row_mask:0xf bank_mask:0xf")
    e(f"v_add_u32_dpp v{v}, v{v}, v{v} row_bcast:15 row_mask:0xa bank_mask:0xf")
    if full:
        e(f"v_add_u32_dpp v{v}, v{v}, v{v} row_bcast:31 row_mask:0xc bank_mask:0xf")


class TS:
    last = None

    def __init__(self, e, on, pair, vreg):
        self.e, self.on, self.pair, self.v, self.names = e, on, pair, vreg, []
        TS.last = self

    diag = None

    def stamp(self, name):
        if self.diag and self.diag[0] == name:
            self.e("s_memrealtime s[4:5]", "s_waitcnt lgkmcnt(0)", f"s_sub_u32 s4, s4, s{self.pair}", f"s_mul_i32 s{self.pair+1}, s4, {self.diag[1]}")
        if self.on and (self.on == 1 or name in str(self.on).split(",") or name in ("start", "end")):
            e, p = self.e, self.pair
            e(f"s_memrealtime s[{p}:{p+1}]", "s_waitcnt lgkmcnt(0)", f"v_writelane_b32 v{self.v}, s{p}, {len(self.names)}")
            self.names.append(name)


class VQ:
    def __init__(self, e):
        self.e, self.q = e, []

    def op(self, tag, text):
        self.e(text)
        self.q.append(tag)

    def n(self, tag):
        idx = max(i for i, t in enumerate(self.q) if t == tag)
        return len(self.q) - 1 - idx

    def wait(self, tag, extra=""):
        self.e(f"s_waitcnt vmcnt({self.n(tag)}) {extra}".strip())


def gen(P):
    CS, TST = P["CS"], P["TST"]
    assert CS % 32 == 0 and TST % 128 == 0 and TST >= 2048 and NCH * TST <= WS_W and WS_SK + NCH * CS * 12 <= WS_EA
    e = Emitter()
    vq = VQ(e)
    D = P["D"]
    R = 8
    MAP, CNT2, WB, DEG, TOT, NODEOF, START, WR, WO = 0, 8192, 13312, 14336, 15360, 15616, 16384, 17408, 46080
    LIST = WO + 32768
    SHST = LIST + (CAP + 8 * GAP + 128) * 4
    EAST = SHST + CAP * 8
    assert SHST + CAP * 8 <= EAST
    ZERO = EAST + CAP * 32
    LDS = ZERO + 64
    AGL = 0
    ACNT, ASTART, AINV, ASKS = 23552, 24576, 25600, 30720
    assert ASKS + CH * 12 <= WO and LDS <= 163840
    LANE, X16, RLEN, RBASE, RG0, ONE, PFV = 1, 2, 3, 4, 5, 6, 7
    T = 8
    ACC, RW, XR, TP, AGN, PQ, EA0, EA1, WRF, CGF, ENT = 16, 64, 96, 128, 144, 160, 164, 168, 172, 188, 192
    MP, MQ = CGF + 2, CGF + 3
    SIX, ZAD = EA1, EA1 + 1
    eAG, eFR, eST, eWF, NOD = [208, 209, 210, 211, 212], 213, 214, 215, 205
    NK = P["WFK"]
    assert NK == 6
    WF = [216 + 4 * q for q in range(NK)] + [XR + 4 * q for q in range(8)] + [AGN, AGN + 4]
    K, KN, LA, LB, EAC, LAC, LBC, RT, TSV = 196, 197, 198, 199, 200, 201, 202, 203, 204
    cODD, cMAPW, cMAP1, cMAP2, cL12, cDEG, cSH, cR21, cROW, cTIE, cBIN, cNOD, cLST, c380 = range(240, 254)
    cFLG = 195
    e.idx_range = {("v", i) for i in range(ACC, ACC + 48)}
    sX, sTAB, sSK, sEA, sA0, sA1, sOUT = 16, 20, 24, 28, 32, 36, 40
    sB, sNB, sNCNT, sN, sROFF, sNR, sNV, sBASE, sEM, sCNT, sT, sT2 = 44, 45, 46, 47, 48, 49, 50, 51, 52, 53, 54, 55
    sNODE = 56
    sOFF = 61
    sTAG, sTAG2 = 62, 63
    SK = 64
    sV = 80
    sM0, sEO = 86, 87
    sASG = [90, 91, 92, 93, 94]
    sNW, sK4 = 95, 98
    sA2, sTSP = 96, 100
    sFL = 88
    ts = TS(e, P["TS"], sTSP, TSV)
    if P["DIAGW"]:
        ts.diag = (P["DIAGAT"], P["DIAGK"])
    apol, ldpol = P["APOL"], P["LDPOL"]
    astage = [int(c) for c in str(P["AEA"]).zfill(5)]
    bstage = [int(c) for c in str(P["BEA"]).zfill(6)]

    def srd(s, lo, hi, off, size):
        if off is None:
            e(f"s_mov_b32 s{s}, s{lo}", f"s_mov_b32 s{s+1}, s{hi}")
        else:
            e(f"s_add_u32 s{s}, s{lo}, {off}", f"s_addc_u32 s{s+1}, s{hi}, 0")
        e(f"s_mov_b32 s{s+2}, {size}", f"s_mov_b32 s{s+3}, 0x20000")

    def init_round(first):
        e(f"v_lshlrev_b32 v{T+3}, 2, v0", f"v_mov_b32 v{T+4}, 0x00700000", f"v_mov_b32 v{T+5}, 0")
        for i in range(4):
            e(f"ds_write_b32 v{T+3}, v{T+4} offset:{MAP + i*2048}")
        for i in range(4 if first else 3):
            e(f"ds_write_b32 v{T+3}, v{T+5} offset:{CNT2 + i*2048}")

    DSTV, SRCV, SHV, BK, BA, RK, NL, KEY, CT, ST, PS = 64, 68, 72, 80, 84, 88, 92, 96, 100, 104, 108
    TABV = 112
    OUTV = 128
    IV = 156
    CGR = 120
    if P["TS"]:
        e("s_memrealtime s[92:93]")
    e("s_cmp_ge_u32 s2, 256", "s_cbranch_scc1 L_done")
    e("s_load_dwordx4 s[4:7], s[0:1], 8")
    e("s_load_dwordx4 s[8:11], s[0:1], 24")
    e("s_load_dwordx2 s[14:15], s[0:1], 80")
    e(f"s_load_dwordx2 s[{SK}:{SK+1}], s[0:1], 0")
    e(f"s_load_dwordx2 s[{SK+2}:{SK+3}], s[0:1], 40")
    e(f"s_load_dwordx4 s[{SK+4}:{SK+7}], s[0:1], 48")
    e("s_load_dwordx2 s[12:13], s[0:1], 64")

    def cpf():
        e(f"s_getpc_b64 s[{sV}:{sV+1}]")
        e.label("L_pc")
        e(f"s_and_b32 s{sB}, s2, 0xf8", f"s_lshl_b32 s{sB}, s{sB}, 6")
        e(f"v_and_b32 v{T+3}, 0x180, v{T+2}", f"v_add_u32 v{T+3}, s{sB}, v{T+3}", f"v_min_u32 v{T+3}, L_end-L_pc, v{T+3}")
        e(f"v_mov_b32 v{TABV+1}, s{sV+1}", f"v_add_co_u32 v{TABV}, vcc, s{sV}, v{T+3}", f"v_addc_co_u32 v{TABV+1}, vcc, 0, v{TABV+1}, vcc")
        vq.op("cpf", f"global_load_dword v{TSV+1}, {vr(TABV,2)}, off")

    def tabrow():
        if TST == 2048:
            e(f"s_lshl_b32 s{sT}, s2, 3", f"s_add_u32 s{sT}, s{sT}, s3", f"s_lshl_b32 s{sT}, s{sT}, 8")
        else:
            e(f"s_mul_i32 s{sT}, s2, {TST // 128}", f"s_lshl1_add_u32 s{sT}, s3, s{sT}", f"s_lshl_b32 s{sT}, s{sT}, 7")

    def srd_hi(s, size):
        e(f"s_mov_b32 s{s+2}, {size}", f"s_mov_b32 s{s+3}, 0x20000")

    def srd_lo(s, lo, off):
        e(f"s_add_u32 s{s}, s{lo}, {off}", f"s_addc_u32 s{s+1}, s{lo+1}, 0")

    e(f"v_lshlrev_b32 v{T+2}, 3, v0")
    if P["CPF"] == 2:
        cpf()
    e(f"v_lshrrev_b32 v{T}, 6, v0", f"v_and_b32 v{LANE}, 63, v0", f"v_lshlrev_b32 v{T+1}, 2, v0", f"v_mov_b32 v{T+5}, 0")
    e(f"v_readfirstlane_b32 s3, v{T}")
    e(f"ds_write_b32 v{T+1}, v{T+5} offset:{ACNT}", f"ds_write_b32 v{T+1}, v{T+5} offset:{AINV+3072}")
    e(f"s_mul_i32 s{sT}, s2, {CH*4}", f"s_mul_i32 s{sT2}, s2, {CH*8}", f"s_mul_i32 s{sOFF}, s2, {CH*32}")
    e(f"v_lshlrev_b32 v{X16}, 4, v{LANE}", f"v_lshlrev_b32 v{T+7}, 4, v0", f"v_mov_b32 v{ONE}, 1")
    e(f"s_lshl_b32 s{sEM}, s3, 10", f"s_add_u32 s{sEM}, s{sEM}, {EAST}", f"s_movk_i32 s{sCNT}, 4096", f"s_movk_i32 s{sNV}, 8192")
    srd_hi(sA0, CH * 4); srd_hi(sA1, CH * 4); srd_hi(sA2, CH * 8); srd_hi(sEA, CH * 32)
    if P["DIAGW"]:
        e(f"s_memrealtime s[{sTSP}:{sTSP+1}]")
    e("s_waitcnt lgkmcnt(0)")
    if P["WSO"]:
        e(f"s_add_u32 s14, s14, {P['WSO'] << 20}", "s_addc_u32 s15, s15, 0")
    if P["TS"]:
        e(f"v_writelane_b32 v{TSV}, s92, 0")
        ts.names.append("first")
    ts.stamp("start")
    srd_lo(sA0, 6, f"s{sT}")
    for i in range(3):
        o = f"0 offen offset:{2048*i}" if i < 2 else f"s{sCNT} offen"
        vq.op("dst", f"buffer_load_dword v{DSTV+i}, v{T+1}, {sr(sA0)}, {o} {apol}")
    srd_lo(sA1, 4, f"s{sT}")
    if P["ABAR"] == 2:
        e("s_barrier")
    for i in range(3):
        o = f"0 offen offset:{2048*i}" if i < 2 else f"s{sCNT} offen"
        vq.op("src", f"buffer_load_dword v{SRCV+i}, v{T+1}, {sr(sA1)}, {o} {apol}")
    if P["WV"]:
        e(f"v_mov_b32 v{CGR+2}, {WS_W}")
        vq.op("tagw", f"global_load_dword v{CGR+1}, v{CGR+2}, s[14:15]")
    else:
        e(f"s_load_dword s{sTAG}, s[14:15], {WS_W}")
    if P["CPF"] == 1:
        cpf()
    srd_lo(sA2, 8, f"s{sT2}")
    srd_lo(sEA, 10, f"s{sOFF}")
    if P["ABAR"] == 1:
        e("s_barrier")
    for i, o in enumerate(("0", f"s{sCNT}", f"s{sNV}")):
        vq.op("sh", f"buffer_load_dwordx2 {vr(SHV+2*i,2)}, v{T+2}, {sr(sA2)}, {o} offen {apol}")

    def pretouch():
        pages = []
        for pg in range((WS_EA + NCH * CS * 32 + 0x1fffff) >> 21):
            lo, hi = pg << 21, (pg + 1) << 21
            cand = None
            if lo <= 0x98000 < hi:
                cand = 0x98000
            for c in range(NCH):
                for a in (WS_SK + c * CS * 12 + CS * 12 - 128, WS_EA + c * CS * 32 + CS * 32 - 128):
                    if cand is None and lo <= a < hi:
                        cand = a
            pages.append(cand)
        assert P["SKF"] and len(pages) <= 8 and all(pages)
        pages += [pages[0]] * (8 - len(pages))
        e(f"s_mov_b32 s{sA2+1}, {pages[0]}")
        for w in range(1, 8):
            e(f"s_cmp_eq_u32 s3, {w}", f"s_cselect_b32 s{sA2+1}, {pages[w]}, s{sA2+1}")
        e(f"v_mov_b32 v{CGR}, s{sA2+1}", "s_mov_b64 exec, 1")
        vq.op("pt", f"global_load_dword v{CGR+1}, v{CGR}, s[14:15]")
        e("s_mov_b64 exec, -1")
        if P["PT"] >= 2:
            e(f"s_min_u32 s{sA2+1}, s3, 4", f"s_lshl_b32 s{sA2+1}, s{sA2+1}, 21", f"v_mov_b32 v{CGR}, s{sA2+1}", "s_mov_b64 exec, 1")
            vq.op("pt", f"global_load_dword v{CGR+2}, v{CGR}, s[{SK}:{SK+1}]")
            e("s_mov_b64 exec, -1")

    def aea(p):
        for i in range(5):
            if astage[i] == p:
                e(f"s_add_u32 m0, s{sEM}, {8192*i}", f"s_mov_b32 s{sT}, {8192*i}")
                vq.op("ea", f"buffer_load_dwordx4 v{T+7}, {sr(sEA)}, s{sT} offen {apol} lds")
        if P["WST"] == p:
            weights()
        if P["WOST"] == p:
            wout()

    def weights():
        e("s_cmp_lt_u32 s3, 4")
        e(f"s_cselect_b32 s{sX}, s{SK+4}, s{SK+2}", f"s_cselect_b32 s{sX+1}, s{SK+5}, s{SK+3}", f"s_movk_i32 s{sT}, 128",
          f"s_cselect_b32 s{sX+2}, s{sCNT}, s{sT}", f"s_mov_b32 s{sX+3}, 0x20000")
        e(f"s_min_u32 s{sT}, s3, 5", f"s_lshl_b32 s{sT}, s{sT}, 10", f"s_add_u32 m0, s{sT}, {WR}", f"s_and_b32 s{sT}, s{sT}, 0xc00")
        vq.op("w", f"buffer_load_dwordx4 v{X16}, {sr(sX)}, s{sT} offen lds")

    def wout():
        srd(sOUT, SK + 6, SK + 7, None, 32768)
        e(f"s_lshl_b32 s{sT2}, s3, 12", f"s_add_u32 m0, s{sT2}, {WO}")
        for i in range(4):
            vq.op("w", f"buffer_load_dwordx4 v{X16}, {sr(sOUT)}, s{sT2} offen offset:{i*1024} lds")

    aea(0)
    if P["PT"]:
        pretouch()
    if not P["ABAR"]:
        e("s_barrier")
    e(f"s_mov_b32 s{SK+8}, 109951168", f"s_movk_i32 s{SK+9}, 625", f"s_movk_i32 s{SK+10}, 838")
    e(f"v_cmp_gt_u32 s[{sV+4}:{sV+5}], {CH-1024}, v0") if CH - 1024 <= 64 else e(f"s_movk_i32 s{sT}, {CH-1024}", f"v_cmp_gt_u32 s[{sV+4}:{sV+5}], s{sT}, v0")
    srd(sTAB, 14, 15, None, (WS_FL + 0x10000) if P["DH"] else WS_W + 64)
    init_round(True)
    if P["ACCZ"] == 9:
        for i in range(48):
            e(f"v_mov_b32 v{ACC+i}, 0")
    vq.wait("dst")
    ts.stamp("dst")
    for k in range(3):
        e(f"v_mul_hi_u32 v{BK+k}, v{DSTV+k}, s{SK+8}")
    for k in range(3):
        e(f"v_lshlrev_b32 v{BA+k}, 2, v{BK+k}")
        if k == 2:
            e(f"s_mov_b64 exec, s[{sV+4}:{sV+5}]")
        e(f"ds_add_rtn_u32 v{RK+k}, v{BA+k}, v{ONE} offset:{ACNT}")
    e("s_mov_b64 exec, -1")
    e("s_waitcnt lgkmcnt(0)", "s_barrier")
    ts.stamp("hist")
    e(f"ds_read_b128 {vr(CT,4)}, v{X16} offset:{ACNT}")
    def taghash():
        e(f"s_mul_i32 s{sTAG}, s{sTAG}, 0x9e3779b1", f"s_add_u32 s{sTAG}, s{sTAG}, 0x7f4a7c15")
        e(f"s_mul_i32 s{sTAG2}, s{sTAG}, 0x85ebca6b", f"s_and_b32 s{sTAG2}, s{sTAG2}, 0xffc00000")
    if not P["WV"]:
        taghash()
    def tpw():
        e(f"s_not_b32 s{sT}, s{sTAG}")
        for k in range(4):
            e(f"v_mov_b32 v{TABV+4+k}, s{sT}")
        tabrow()
        e("s_mov_b64 exec, 0xffff")
        vq.op("tpw", f"buffer_store_dwordx4 {vr(TABV+4,4)}, v{X16}, {sr(sTAB)}, s{sT} offen sc1")
        e("s_mov_b64 exec, -1")
    if P["TPW"] == 1:
        tpw()
    aea(1)
    for k in range(3):
        e(f"v_mad_u32_u24 v{NL+k}, v{BK+k}, s{SK+9}, 15", f"v_lshrrev_b32 v{NL+k}, 4, v{NL+k}", f"v_sub_u32 v{NL+k}, v{DSTV+k}, v{NL+k}")
    e("s_waitcnt lgkmcnt(0)")
    e(f"v_add_u32 v{T+3}, v{CT}, v{CT+1}", f"v_add3_u32 v{T+3}, v{T+3}, v{CT+2}, v{CT+3}", f"v_mov_b32 v{T+4}, v{T+3}")
    scan_dpp(e, T + 4, True)
    e(f"v_sub_u32 v{ST}, v{T+4}, v{T+3}")
    for k in range(3):
        e(f"v_add_u32 v{ST+1+k}, v{ST+k}, v{CT+k}")
    e(f"ds_write_b128 v{X16}, {vr(ST,4)} offset:{ASTART}")
    for k in range(3):
        e(f"ds_read_b32 v{PS+k}, v{BA+k} offset:{ASTART}")
    vq.wait("src")
    for k in range(3):
        e(f"v_mul_u32_u24 v{KEY+k}, s{SK+10}, v{SRCV+k}", f"v_bfe_u32 v{KEY+k}, v{KEY+k}, 18, 5")
        e(f"v_lshl_or_b32 v{KEY+k}, v{NL+k}, 5, v{KEY+k}",
          f"v_lshlrev_b32 v{KEY+k}, 21, v{KEY+k}", f"v_lshl_or_b32 v{KEY+k}, v{SRCV+k}, 7, v{KEY+k}")
    e(f"v_lshlrev_b32 v{NL}, 5, v0", f"v_add_u32 v{NL+1}, {512*32}, v{NL}", f"v_add_u32 v{NL+2}, {1024*32}, v{NL}")
    e(f"s_mov_b32 s{sT2}, {ASKS}")
    vq.wait("sh", "lgkmcnt(0)")
    if P["WV"]:
        e(f"v_readfirstlane_b32 s{sTAG}, v{CGR+1}")
    for k in range(3):
        e(f"v_add_u32 v{PS+k}, v{PS+k}, v{RK+k}")
        e(f"v_lshlrev_b32 v{BA+k}, 2, v{PS+k}", f"v_mad_u32_u24 v{PS+k}, v{PS+k}, 12, s{sT2}")
        if k == 2:
            e(f"s_mov_b64 exec, s[{sV+4}:{sV+5}]")
        e(f"ds_write_b32 v{BA+k}, v{NL+k} offset:{AINV}")
        e(f"ds_write2_b32 v{PS+k}, v{SHV+2*k}, v{SHV+2*k+1} offset0:0 offset1:1")
        e(f"ds_write_b32 v{PS+k}, v{KEY+k} offset:8")
    e("s_mov_b64 exec, -1")
    if P["WV"]:
        taghash()
    if P["TPW"] == 2:
        tpw()
    aea(2)
    e(f"s_lshl_b32 s{sT}, s3, 7", f"v_lshl_add_u32 v{T+3}, v{LANE}, 3, s{sT}")
    e(f"ds_read_b64 {vr(CT,2)}, v{T+3} offset:{ACNT}", f"ds_read_b64 {vr(ST,2)}, v{T+3} offset:{ASTART}")
    e(f"s_mul_i32 s{sT}, s2, {CS*12}", f"s_add_u32 s{sT}, s{sT}, {WS_SK}")
    srd(sA0, 14, 15, f"s{sT}", (CH * 12 + 127) // 128 * 128 if P["SKF"] else CS * 12)
    e(f"s_mul_i32 s{sT}, s2, {CS*32}", f"s_add_u32 s{sT}, s{sT}, {WS_EA}")
    srd(sA1, 14, 15, f"s{sT}", (CH * 32 + 127) // 128 * 128 if P["EAF"] else CH * 32)
    e(f"v_lshrrev_b32 v{T+3}, 1, v0", f"v_lshlrev_b32 v{T+3}, 2, v{T+3}")
    e(f"v_and_b32 v{T+4}, 1, v0", f"v_lshlrev_b32 v{T+4}, 4, v{T+4}", f"v_add_u32 v{T+4}, {EAST}, v{T+4}", f"v_add_u32 v{T+6}, {ASKS}, v{T+7}")
    e("s_waitcnt lgkmcnt(0)", "s_barrier")
    ts.stamp("scat")
    e(f"ds_read_b128 {vr(OUTV,4)}, v{T+6}", f"ds_read_b128 {vr(OUTV+4,4)}, v{T+6} offset:8192")
    for i in range(5):
        e(f"ds_read_b32 v{IV+i}, v{T+3} offset:{AINV + i*1024}")

    def skst():
        vq.op("skst", f"buffer_store_dwordx4 {vr(OUTV,4)}, v{T+7}, {sr(sA0)}, 0 offen sc1")
        vq.op("skst", f"buffer_store_dwordx4 {vr(OUTV+4,4)}, v{T+7}, {sr(sA0)}, s{sNV} offen sc1")
    DH = P["DH"]
    if DH == 1:
        e("s_waitcnt lgkmcnt(5)")
        skst()
    aea(3)
    if DH == 2:
        e("s_waitcnt lgkmcnt(5)")
        skst()

    def frag_r(F0, t0, t1, t2):
        e(f"v_lshrrev_b32 v{t0}, 5, v{LANE}", f"v_lshlrev_b32 v{t0}, 10, v{t0}", f"v_and_b32 v{t1}, 15, v{LANE}", f"v_lshl_add_u32 v{t0}, v{t1}, 4, v{t0}")
        for i in range(8):
            e(f"ds_read_b128 {vr(F0+4*i,4)}, v{t0} offset:{WR + 2048*(i//4) + 256*(i%4)}")
        e(f"v_lshrrev_b32 v{t0}, 4, v{LANE}", f"v_lshlrev_b32 v{t0}, 5, v{t0}", f"v_and_b32 v{t1}, 3, v{LANE}", f"v_lshl_add_u32 v{t0}, v{t1}, 1, v{t0}")
        for v in range(4):
            e(f"ds_read_u16 v{F0+32+v}, v{t0} offset:{WR + 4096 + 8*v}")
        e(f"v_bfe_i32 v{t2}, v{LANE}, 4, 1", f"v_and_b32 v{t2}, 0x02020202, v{t2}", f"v_add_u32 v{t2}, 0x05040100, v{t2}")
        e("s_waitcnt lgkmcnt(0)")
        for h in range(2):
            for t in range(2):
                for ip in range(4):
                    e(f"v_perm_b32 v{WRF+8*h+2*ip+t}, v{F0+4*(2*ip+1)+t+2*h}, v{F0+4*(2*ip)+t+2*h}, v{t2}")
        e(f"v_lshl_or_b32 v{CGF}, v{F0+33}, 16, v{F0+32}", f"v_lshl_or_b32 v{CGF+1}, v{F0+35}, 16, v{F0+34}")

    def frag_o(F0, F1, t0, t1, sM):
        e(f"v_and_b32 v{t1}, 7, v{LANE}", f"v_lshrrev_b32 v{t0}, 4, v{LANE}", f"v_lshlrev_b32 v{t0}, 13, v{t0}", f"v_lshl_add_u32 v{t0}, v{t1}, 4, v{t0}",
          f"v_and_b32 v{t1}, 8, v{LANE}", f"s_and_b32 s{sM}, s3, 3", f"s_lshl_b32 s{sM}, s{sM}, 8", f"s_lshr_b32 s{sM+1}, s3, 2", f"s_lshl_b32 s{sM+1}, s{sM+1}, 7",
          f"s_add_u32 s{sM}, s{sM}, s{sM+1}", f"s_add_u32 s{sM}, s{sM}, {WO}", f"v_add3_u32 v{t0}, v{t0}, v{t1}, s{sM}")
        for ip in range(4):
            e(f"ds_read2st64_b64 {vr(F0+4*ip,4)}, v{t0} offset0:{4*ip} offset1:{4*ip+2}")
        e(f"s_mov_b32 s{sM}, 0x05040100", f"s_mov_b32 s{sM+1}, 0x07060302")
        for ip in range(4):
            e(f"s_waitcnt lgkmcnt({3-ip})")
            for t in range(4):
                e(f"v_perm_b32 v{F1+4*t+ip}, v{F0+4*ip+2+t//2}, v{F0+4*ip+t//2}, s{sM+t%2}")

    def consts():
        e(f"s_and_b32 s{sB}, s2, 7", f"s_lshl_b32 s{sB}, s{sB}, 5", f"s_lshr_b32 s{sT}, s2, 3", f"s_add_u32 s{sB}, s{sB}, s{sT}")
        e(f"s_mul_i32 s{sNB}, s{sB}, 625", f"s_add_u32 s{sNCNT}, s{sNB}, 640", f"s_add_u32 s{sNB}, s{sNB}, 15",
          f"s_lshr_b32 s{sNB}, s{sNB}, 4", f"s_lshr_b32 s{sNCNT}, s{sNCNT}, 4", f"s_sub_u32 s{sNCNT}, s{sNCNT}, s{sNB}")
        e(f"v_bfe_i32 v{SIX}, v{LANE}, 2, 1", f"v_and_b32 v{SIX}, 0xaaaa, v{SIX}", f"v_add_u32 v{SIX}, 0x4444, v{SIX}")
        e(f"v_mov_b32 v{ZAD}, {ZERO}", f"v_and_b32 v{T+3}, 60, v{T+1}", f"v_add_u32 v{T+3}, v{T+3}, v{ZAD}", f"ds_write_b32 v{T+3}, v{T+5}")
        e(f"v_and_b32 v{T+3}, 4, v{LANE}", f"v_lshlrev_b32 v{T+3}, 2, v{T+3}", f"v_mov_b32 v{T+4}, 0xffff", f"v_lshlrev_b32 v{T+4}, v{T+3}, v{T+4}")
        e(f"v_bfe_i32 v{T+3}, v{LANE}, 3, 1", f"v_and_b32 v{MQ}, v{T+3}, v{T+4}", f"v_xor_b32 v{MP}, v{MQ}, v{T+4}")
        if P["PQP"]:
            e(f"v_mov_b32 v{T+3}, 0x0c0c0c0c", f"v_mov_b32 v{T+4}, 0x03020302")
            e(f"v_bfi_b32 v254, v{MP}, v{T+4}, v{T+3}", f"v_bfi_b32 v255, v{MQ}, v{T+4}, v{T+3}", f"v_mov_b32 v{T+4}, 0x01000100")
            e(f"v_bfi_b32 v{MP}, v{MP}, v{T+4}, v{T+3}", f"v_bfi_b32 v{MQ}, v{MQ}, v{T+4}, v{T+3}")
        e(f"v_lshrrev_b32 v{EAC}, 5, v{LANE}", f"v_lshlrev_b32 v{EAC}, 4, v{EAC}", f"v_add_u32 v{EAC}, {EAST}, v{EAC}")
        e(f"v_and_b32 v{LAC}, 15, v{LANE}", f"v_lshlrev_b32 v{LAC}, 2, v{LAC}")
        e(f"v_bfe_u32 v{T+3}, v{LANE}, 3, 2", f"v_and_b32 v{T+4}, 3, v{LANE}", f"v_lshl_add_u32 v{T+3}, v{T+3}, 2, v{T+4}", f"v_lshlrev_b32 v{LBC}, 2, v{T+3}")
        e(f"v_bfe_i32 v{cODD}, v0, 0, 1", f"s_lshl_b32 s{sT}, s3, 10", f"v_and_b32 v{cMAPW}, 4, v{cODD}", f"v_add_u32 v{cMAPW}, s{sT}, v{cMAPW}")
        e(f"v_lshl_add_u32 v{cMAP1}, v{LANE}, 2, s{sT}", f"v_lshrrev_b32 v{cMAP2}, 1, v{LANE}", f"v_lshl_add_u32 v{cMAP2}, v{cMAP2}, 2, s{sT}")
        e(f"v_mul_u32_u24 v{cL12}, 12, v{LANE}", f"v_and_b32 v{cDEG}, 12, v{cMAP1}", f"v_and_b32 v{cBIN}, 124, v{cMAP1}")
        e(f"s_mul_i32 s{sT}, s3, {CAPW}", f"v_add_u32 v{cR21}, s{sT}, v{LANE}", f"v_lshlrev_b32 v{cSH}, 3, v{cR21}", f"v_add_u32 v{cSH}, {SHST}, v{cSH}", f"v_lshlrev_b32 v{cR21}, 21, v{cR21}")
        e(f"s_mul_i32 s{sT}, s3, 640", f"v_add_u32 v{cROW}, s{sT}, v{cBIN}", f"v_sub_u32 v{cTIE}, 63, v{LANE}")
        e(f"s_getreg_b32 s{sM0}, hwreg(HW_REG_XCC_ID, 0, 3)", f"s_lshl_b32 s{sT}, s{sM0}, 4", f"v_subrev_u32 v{cBIN}, s{sT}, v{cBIN}", f"v_and_b32 v{cBIN}, 124, v{cBIN}")
        e(f"v_min_u32 v{cNOD}, 39, v{LANE}", f"v_lshlrev_b32 v{cNOD}, 7, v{cNOD}", f"v_mov_b32 v{c380}, 0x380")
        e(f"v_lshrrev_b32 v{cLST}, 3, v{LANE}", f"v_mul_u32_u24 v{cLST}, {GAP*4}, v{cLST}", f"v_add_u32 v{cLST}, {LIST}, v{cLST}")
        e(f"s_lshr_b32 s{sEO}, s3, 1", f"s_mul_i32 s{sEO}, s{sEO}, 3", f"s_min_u32 s{sEO}, s{sEO}, 8", f"s_mul_i32 s{sT}, s{sEO}, 4608")
        e(f"v_and_b32 v{T+3}, 15, v{LANE}", f"v_lshrrev_b32 v{T+4}, 4, v{LANE}")
        e(f"v_mul_u32_u24 v{eFR}, 288, v{T+3}", f"v_lshl_add_u32 v{eFR}, v{T+4}, 4, v{eFR}", f"v_add_u32 v{eFR}, s{sT}, v{eFR}")
        e(f"v_lshrrev_b32 v{T+4}, 3, v{LANE}", f"v_lshlrev_b32 v{T+4}, 9, v{T+4}", f"v_and_b32 v{T+3}, 7, v{LANE}", f"v_lshl_add_u32 v{eST}, v{T+3}, 4, v{T+4}")
        e(f"s_lshl_b32 s{sEO}, s{sEO}, 12", f"s_and_b32 s{sT}, s3, 1", f"s_lshl_b32 s{sT}, s{sT}, 7", f"s_add_u32 s{sEO}, s{sEO}, s{sT}",
          f"s_lshl_b32 s{sT}, s{sT}, 7", f"s_add_u32 s{sT}, s{sT}, {WO}", f"v_add_u32 v{eWF}, s{sT}, v{X16}")
        e(f"s_cmp_eq_u32 s{sNCNT}, 40")
        tabs = []
        for part in PARTS[P["BIAS"]]:
            t = [0] * 40
            for w, p in enumerate(part):
                for sl, r in enumerate(p):
                    t[r] = w * 8 + sl
            tabs.append([sum(t[5 * q + i] << (6 * i) for i in range(5)) for q in range(8)])
        e(f"v_mov_b32 v{RT}, 0")
        for q in range(8):
            e(f"s_mov_b32 s{sT}, {tabs[0][q]}", f"s_cselect_b32 s{sT}, {tabs[1][q]}, s{sT}")
            m = 31 << (5 * q)
            e(f"s_mov_b32 exec_lo, {m & 0xffffffff}", f"s_mov_b32 exec_hi, {m >> 32}", f"v_mov_b32 v{RT}, s{sT}")
        e("s_mov_b64 exec, -1")
        e(f"v_mul_u32_u24 v{T+3}, 52, v{LANE}", f"v_lshrrev_b32 v{T+3}, 8, v{T+3}", f"v_mad_i32_i24 v{T+3}, v{T+3}, -5, v{LANE}",
          f"v_mul_u32_u24 v{T+3}, 6, v{T+3}", f"v_lshrrev_b32 v{RT}, v{T+3}, v{RT}")
        e(f"v_and_b32 v{T+3}, 7, v{RT}", f"v_bfe_u32 v{RT}, v{RT}, 3, 3", f"v_lshlrev_b32 v{T+3}, 12, v{T+3}", f"v_lshl_or_b32 v{RT}, v{RT}, 7, v{T+3}")
        srd(sSK, 14, 15, WS_SK, NCH * CS * 12)

    def extra(pos):
        if P["CPOS"] == pos:
            consts()
        if P["ACCZ"] == pos:
            for i in range(48):
                e(f"v_mov_b32 v{ACC+i}, 0")

    e("s_waitcnt lgkmcnt(0)")
    for i in range(5):
        e(f"v_add_u32 v{IV+i}, v{T+4}, v{IV+i}")
    for k in range(2):
        e(f"v_lshl_or_b32 v{TABV+2*k}, v{CT+k}, 11, v{ST+k}", f"v_or_b32 v{TABV+2*k}, s{sTAG2}, v{TABV+2*k}", f"v_mov_b32 v{TABV+2*k+1}, s{sTAG}")
    extra(0)

    def publish():
        e("s_mov_b64 exec, 0xffff")
        vq.op("tab", f"buffer_store_dwordx4 {vr(TABV,4)}, v{X16}, {sr(sTAB)}, s{sT} offen sc1")
        e("s_mov_b64 exec, -1")

    if DH:
        tabrow()
    e(f"s_waitcnt vmcnt({min(vq.n('w') + P['WGN'], vq.n('ea'))})")
    e("s_barrier")
    ts.stamp("land")
    if DH in (1, 2):
        publish()
    for i in range(5):
        e(f"ds_read_b128 {vr(OUTV+8+4*i,4)}, v{IV+i}")
    extra(1)
    if P["TPW"] == 3:
        tpw()
    ts.stamp("guard")
    if DH in (0, 3):
        skst()
    for i in range(5):
        if DH == 3 and i == P["KE"]:
            extra(4)
            tabrow()
            vq.wait("skst")
            e("s_barrier")
            ts.stamp("skdr")
            publish()
        e(f"s_mov_b32 s{sT}, {8192*i}", f"s_waitcnt lgkmcnt({4-i})")
        vq.op("st", f"buffer_store_dwordx4 {vr(OUTV+8+4*i,4)}, v{T+7}, {sr(sA1)}, s{sT} offen sc1")
    if DH == 3 and P["KE"] == 5:
        extra(4)
        tabrow()
        vq.wait("skst")
        e("s_barrier")
        ts.stamp("skdr")
        publish()
    aea(4)
    ts.stamp("issued")

    extra(2)
    tabrow()
    srd(sX, SK, SK + 1, None, N * 1024)
    srd(sEA, 14, 15, WS_EA, NCH * CS * 32)
    if P["XPF"]:
        n = P["XPF"]
        e(f"s_and_b32 s{sBASE}, s{sM0}, 7", f"s_mul_i32 s{sBASE}, s{sBASE}, {1252*1024}", f"s_and_b32 s{sT2}, s2, 0xf8",
          f"s_add_u32 s{sT2}, s{sT2}, s3", f"s_mul_i32 s{sT2}, s{sT2}, {n*128}", f"s_add_u32 s{sBASE}, s{sBASE}, s{sT2}")
        e(f"v_min_u32 v{PFV}, {n-1}, v{LANE}", f"v_lshlrev_b32 v{PFV}, 7, v{PFV}")
    if P["XP2"]:
        n2 = P["XP2"]
        e(f"s_and_b32 s89, s{sM0}, 7", f"s_mul_i32 s89, s89, {1252*1024}", f"s_and_b32 s{sT2}, s2, 0xf8",
          f"s_add_u32 s{sT2}, s{sT2}, s3", f"s_mul_i32 s{sT2}, s{sT2}, {n2*128}", f"s_add_u32 s89, s89, s{sT2}", f"s_add_u32 s89, s89, {P['XPF']*128*256}")
        e(f"v_min_u32 v195, {n2-1}, v{LANE}", f"v_lshlrev_b32 v195, 7, v195")
    xpf = f"buffer_load_dword v{PFV}, v{PFV}, {sr(sX)}, s{sBASE} offen"
    PL = 206
    PL2 = 170
    poll1 = f"buffer_load_dwordx2 {vr(PL,2)}, v{T+2}, {sr(sTAB)}, s{sNR} offen sc1"

    def tagcheck(pl=PL):
        e(f"v_xor_b32 v{T+3}, s{sTAG2}, v{pl}", f"v_xor_b32 v{T+4}, s{sTAG}, v{pl+1}", f"v_and_or_b32 v{T+3}, v{T+3}, s{sT2}, v{T+4}")
        e(f"v_cmpx_ne_u32 vcc, 0, v{T+3}")

    def outsrd():
        e(f"s_lshl_b32 s{sT}, s{sNB}, 10", f"s_add_u32 s{sOUT}, s12, s{sT}", f"s_addc_u32 s{sOUT+1}, s13, 0",
          f"s_lshl_b32 s{sOUT+2}, s{sNCNT}, 10", f"s_mov_b32 s{sOUT+3}, 0x20000")

    def rwzero():
        for i in range(32):
            e(f"v_mov_b32 v{RW+i}, 0")

    def pollsetup():
        e(f"v_lshrrev_b32 v{T+1}, 1, v0", f"v_lshlrev_b32 v{T+2}, 11, v{T+1}" if TST == 2048 else f"v_mul_u32_u24 v{T+2}, {TST}, v{T+1}", f"s_lshl_b32 s{sNR}, s{sB}, 3")
        e(f"v_mul_u32_u24 v{RG0}, {CS}, v{T+1}", f"s_mov_b32 s{sROFF}, 0", f"s_mov_b32 s{sCNT}, {SPIN}", f"s_mov_b32 s{sT2}, 0xffc00000")
        e(f"s_mul_i32 s{sEM}, s3, {CAPW*32}", f"s_add_u32 s{sEM}, s{sEM}, {EAST}", f"s_movk_i32 s{sK4}, 4096")

    def wofrag_write():
        for t in range(4):
            e(f"ds_write_b128 v{T}, {vr(144+4*t,4)} offset:{WO + 1024*t}")

    if not DH:
        if P["XPF"] and P["XPOS"] < 0:
            e(f"s_waitcnt vmcnt({-P['XPOS']-1})", xpf, "s_waitcnt vmcnt(1)", "s_barrier")
        else:
            e("s_waitcnt vmcnt(0)", "s_barrier")
        ts.stamp("drained")
        publish()
        if P["XPF"] and P["XPOS"] == 0:
            e(xpf)
        outsrd()
        frag_r(RW, T, T + 1, T + 2)
        if P["XPF"] and P["XPOS"] == 1:
            e(xpf)
        frag_o(128, 144, T, T + 1, SK + 8)
        rwzero()
        e(f"s_lshl_b32 s{sT}, s3, 12", f"v_add_u32 v{T}, s{sT}, v{X16}")
        extra(3)
        if P["XPF"] and P["XPOS"] == 3:
            e("s_waitcnt vmcnt(0)")
        if P["XPF"] and P["XPOS"] >= 2:
            e(xpf)
        pollsetup()
        e(f"s_waitcnt vmcnt({P['PW']})", "s_barrier")
        ts.stamp("frag")
        e(poll1)
        wofrag_write()
        e("s_waitcnt vmcnt(0)")
    else:
        outsrd()
        if P["FRP"] == 0:
            frag_r(RW, T, T + 1, T + 2)
            frag_o(128, 144, T, T + 1, SK + 8)
            rwzero()
        extra(3)
        e(f"s_lshl_b32 s{sT}, s3, 11", f"s_lshl_b32 s{sNR}, s2, 3", f"s_add_u32 s{sT}, s{sT}, s{sNR}", f"s_add_u32 s{sFL}, s{sT}, {WS_FL}")
        e(f"v_mov_b32 v{PL2}, s{sTAG2}", f"v_mov_b32 v{PL2+1}, s{sTAG}", f"v_mov_b32 v{T+3}, 0")
        pollsetup()
        e(f"s_lshl_b32 s{sT}, s3, 12", f"v_add_u32 v{T}, s{sT}, v{X16}")
        if P["PPOS"] == 0:
            ts.stamp("frag")
            e(poll1)
            e("s_waitcnt vmcnt(1)", "s_barrier")
        else:
            e("s_waitcnt vmcnt(0)", "s_barrier")
        ts.stamp("drained")
        n_after = 0
        if P["FL"]:
            e("s_mov_b64 exec, 1")
            e(f"buffer_store_dwordx2 {vr(PL2,2)}, v{T+3}, {sr(sTAB)}, s{sFL} offen sc1")
            e("s_mov_b64 exec, -1")
            n_after += 1
        if P["PPOS"] == 1:
            e(poll1)
            n_after = 0
        if P["XPF"] and P["XPOS"] == 0:
            e(xpf)
            n_after += 1
        if P["FRP"] == 0:
            wofrag_write()
        if P["FRP"] == 2:
            frag_r(RW, T, T + 1, T + 3)
            frag_o(XR, XR + 16, T, T + 1, SK + 8)
            rwzero()
        if P["PPOS"] == 2:
            e(poll1)
            n_after = 0
        e(f"s_lshr_b32 s{sFL}, s{sB}, 5", f"s_lshl_b32 s{sFL}, s{sFL}, 11", f"s_add_u32 s{sFL}, s{sFL}, {WS_FL}")
        e(f"v_lshrrev_b32 v{cFLG}, 1, v0", f"v_lshlrev_b32 v{cFLG}, 3, v{cFLG}")
        if P["PPOS"]:
            ts.stamp("frag")
        e(f"s_waitcnt vmcnt({n_after})")
    tagcheck()
    e("s_cbranch_execnz L_poll")
    e.label("L_polled")
    e("s_mov_b64 exec, -1")
    ts.stamp("tab")
    G1, G2, SKR, RNK, CA = TP + 8, TP + 12, TP + 20, TP, TP + 4
    MU = P["MU"]
    sVm = [sV, sV + 2, sV + 4, sA2]

    m0st = [None]

    def bea1(i):
        if m0st[0] != i // 4 or i == 6:
            e(f"s_add_u32 m0, s{sEM}, {4096*(i//4)}")
        m0st[0] = i // 4
        vq.op("ea", f"buffer_load_dwordx4 v{G2+i}, {sr(sEA)}, {'0' if i < 4 else 's%d' % sK4} offen offset:{1024*(i%4)} {ldpol} lds")

    def bea(p):
        if DH and P["FL"]:
            if p == P["FP"]:
                vq.op("fp", f"buffer_load_dwordx2 {vr(PL2,2)}, v{cFLG}, {sr(sTAB)}, s{sFL} offen sc1")
            if p == P["FQ"]:
                ts.stamp("fq0")
                vq.wait("fp")
                e(f"v_xor_b32 v{T+3}, s{sTAG2}, v{PL2}", f"v_xor_b32 v{T+4}, s{sTAG}, v{PL2+1}", f"v_or_b32 v{T+3}, v{T+3}, v{T+4}")
                e(f"v_cmp_ne_u32 vcc, 0, v{T+3}", "s_cbranch_vccnz L_fpoll")
                e.label("L_flagged")
                ts.stamp("fq1")
                e(f"s_cmp_gt_i32 s{sNW}, 192", "s_cbranch_scc1 L_r1e")
                e.label("L_r1eb")
                m0st[0] = None
        for i in range(6):
            if bstage[i] == p:
                bea1(i)
        if DH and P["XPF"] and P["XPOS"] == 5 and p == max(bstage, key=lambda q: ORDER.index(q)):
            e(xpf)
        if P["XP2"] and p == P["XQ"]:
            vq.op("xp2", f"buffer_load_dword v195, v195, {sr(sX)}, s89 offen")
    ORDER = [0, 1, 2, 6, 3, 4]
    if DH and P["FL"]:
        assert all(ORDER.index(q) >= ORDER.index(P["FQ"]) for q in bstage), "edge_attr loads before the flag check"
        assert ORDER.index(P["FP"]) <= ORDER.index(P["FQ"])

    def skld(i):
        e(f"v_mad_u32_u24 v{G1+i}, v{G1+i}, 12, v{cL12}")
        vq.op(f"sk{i}", f"buffer_load_dwordx3 {vr(SKR+4*i,3)}, v{G1+i}, {sr(sSK)}, 0 offen offset:{768*i} {ldpol}")

    cmps = [f"v_cmp_lt_i32 s[{SK+2*i}:{SK+2*i+1}], {2*i}, v{T+2}" for i in range(MU + 1)]
    e(f"v_bfe_u32 v{RLEN}, v{PL}, 11, 11", f"v_and_b32 v{RBASE}, v{RLEN}, v{cODD}", f"v_add_u32 v{T+2}, v{RLEN}, v{cODD}")
    fill = [f"v_and_b32 v{T+3}, 0x7ff, v{PL}"] + cmps + [f"v_add_u32 v{RG0}, v{RG0}, v{T+3}"]
    e(fill.pop(0))
    for mod in ("row_shr:1 row_mask:0xf", "row_shr:2 row_mask:0xf", "row_shr:4 row_mask:0xf", "row_shr:8 row_mask:0xf", "row_bcast:15 row_mask:0xa", "row_bcast:31 row_mask:0xc"):
        e(f"v_add_u32_dpp v{RBASE}, v{RBASE}, v{RBASE} {mod} bank_mask:0xf")
        e(*fill[:2]); fill = fill[2:]
    e(f"v_readlane_b32 s{sNW}, v{RBASE}, 63")
    e(f"v_mov_b32_dpp v{RBASE}, v{RBASE} quad_perm:[0,0,2,2] row_mask:0xf bank_mask:0xf")
    e(f"v_sub_u32 v{RG0}, v{RG0}, v{RBASE}")
    e(f"v_lshl_add_u32 v{T}, v{RBASE}, 2, v{cMAPW}")
    e(f"s_cmp_gt_u32 s{sNW}, {CAPW}", "s_cbranch_scc1 L_clip")
    e.label("L_mapw")
    for i in range(MU):
        e(f"s_mov_b64 exec, s[{SK+2*i}:{SK+2*i+1}]")
        e(f"ds_write_b32 v{T}, v{RG0} offset:{8*i}")
    e("s_mov_b64 exec, -1")
    e(f"s_cmp_lg_u64 s[{SK+2*MU}:{SK+2*MU+1}], 0", "s_cbranch_scc1 L_map2")
    for i in range(3):
        e(f"ds_read_b32 v{G1+i}, v{cMAP1} offset:{256*i}")
    for i in range(6):
        e(f"ds_read_b32 v{G2+i}, v{cMAP2} offset:{128*i}")
    e(f"s_cmp_gt_i32 s{sNW}, 192", "s_cbranch_scc1 L_r1")
    e.label("L_r1b")
    e("s_waitcnt lgkmcnt(6)")
    ts.stamp("map")
    for i in range(3):
        skld(i)
    e(f"v_mov_b32 v{T+3}, s{sNW}", "s_mov_b64 exec, 1", f"ds_max_i32 v{T+5}, v{T+3} offset:{TOT}", "s_mov_b64 exec, -1")
    e("s_waitcnt lgkmcnt(1)")
    for i in range(6):
        e(f"v_lshl_add_u32 v{G2+i}, v{G2+i}, 5, v{X16}")
    if P["SKBAR"]:
        e("s_barrier")
    ts.stamp("skiss")
    if DH and P["XPF"] and P["XPOS"] == 6:
        vq.op("xpf", xpf)
    bea(0)
    if DH and P["FRP"] == 1:
        e(f"s_cmp_lg_u32 s{sROFF}, 0", "s_cbranch_scc1 L_nofrag")
        frag_r(RW, T, T + 1, T + 2)
        frag_o(XR, XR + 16, T, T + 1, SK + 8)
        rwzero()
        e.label("L_nofrag")
    assert 5 not in bstage
    e(f"s_min_i32 s{sT}, s{sNW}, {CAPW}")
    for i in range(4):
        e(f"v_cmp_gt_i32 s[{sVm[i]}:{sVm[i]+1}], s{sT}, v{LANE}", f"s_sub_i32 s{sT}, s{sT}, 64")
    e(f"s_mov_b32 s{sT2}, 0x1fff80", f"s_mul_i32 s{sOFF}, s3, 5")
    assert P["SKBAR"]
    late_wf = DH and P["FRP"] in (1, 2)
    if not late_wf:
        for q in range(NK):
            e(f"ds_read_b128 {vr(WF[q],4)}, v{eWF} offset:{1024*q}")

    def count(i):
        key = SKR + 4 * i + 2
        e(f"v_lshrrev_b32 v{CA+i}, 21, v{key}", f"v_lshlrev_b32 v{CA+i}, 2, v{CA+i}")
        e(f"v_lshrrev_b32 v{T+3}, 26, v{key}", f"v_lshl_or_b32 v{T+3}, v{T+3}, 4, v{cDEG}")
        e(f"s_mov_b64 exec, s[{sVm[i]}:{sVm[i]+1}]")
        e(f"ds_add_rtn_u32 v{RNK+i}, v{CA+i}, v{ONE} offset:{CNT2}")
        e(f"ds_add_u32 v{T+3}, v{ONE} offset:{DEG}")
        e("s_mov_b64 exec, -1")

    def entry(i):
        key = SKR + 4 * i + 2
        if i == 3:
            e("s_mov_b32 exec_hi, 0")
        e(f"ds_write_b64 v{cSH}, {vr(SKR+4*i,2)} offset:{512*i}")
        if i == 3:
            e("s_mov_b32 exec_hi, -1")
        e(f"v_and_or_b32 v{key}, v{key}, s{sT2}, v{cR21}")
        if i:
            e(f"v_add_u32 v{key}, {64*i << 21}, v{key}")

    for i in range(3):
        vq.wait(f"sk{i}")
        if i == 0:
            ts.stamp("sk")
        count(i)
    e(f"s_cmp_gt_i32 s{sNW}, 192", "s_cbranch_scc1 L_r2")
    e.label("L_r2b")
    ts.stamp("atom")
    e(f"s_or_b32 s{sT}, s2, s3", "s_cbranch_scc0 L_tag")
    e.label("L_tagged")
    bea(1)
    for j in range(1, 5):
        e(f"s_add_u32 s{SK+j}, s{sOFF}, {j}")
    e("s_waitcnt lgkmcnt(0)", "s_barrier")
    ts.stamp("b1")
    CN, CAD = XR, XR + 8
    e(f"s_cmp_lg_u32 s{sROFF}, 0", "s_cbranch_scc1 L_rank2")
    if late_wf:
        e(f"s_lshl_b32 s{sT}, s3, 12", f"v_add_u32 v{T}, s{sT}, v{X16}")
        for t in range(4):
            e(f"ds_write_b128 v{T}, {vr(XR+16+4*t,4)} offset:{WO + 1024*t}")
    e(f"ds_read_b128 {vr(CAD,4)}, v{X16} offset:{DEG}")
    for j in range(5):
        e(f"ds_read_b32 v{CN+j}, v{cROW} offset:{CNT2 + 128*j}")
    e(f"ds_read_b32 v{T+6}, v{T+5} offset:{TOT}")
    if P["ENP"] == 0:
        for i in range(3):
            entry(i)
    e(f"s_waitcnt lgkmcnt({9 if P['ENP'] == 0 else 6})")
    e(f"v_add_u32 v{T+1}, v{CAD}, v{CAD+1}", f"v_add3_u32 v{T+1}, v{T+1}, v{CAD+2}, v{CAD+3}")
    e(f"v_lshl_or_b32 v{T+1}, v{T+1}, 6, v{cTIE}")
    for j in range(5):
        e(f"v_readlane_b32 s{SK+j}, v{T+1}, s{SK+j if j else sOFF}")
    for j in range(5):
        e(f"v_cmp_lt_u32 s[{SK+6+2*j}:{SK+7+2*j}], s{SK+j}, v{T+1}")
    for j in range(5):
        e(f"s_bcnt1_i32_b64 s{SK+j}, s[{SK+6+2*j}:{SK+7+2*j}]")
    e(f"s_waitcnt lgkmcnt({3 if P['ENP'] == 0 else 0})")
    for j in range(5):
        e(f"v_readlane_b32 s{sASG[j]}, v{RT}, s{SK+j}")
    e(f"v_readfirstlane_b32 s{sN}, v{T+6}")
    e.label("L_ranked")
    e("s_mov_b32 exec_hi, 0")
    for j in range(5):
        e(f"v_and_or_b32 v{CAD+j}, s{sASG[j]}, v{c380}, v{cBIN}")
        e(f"ds_add_rtn_u32 v{CN+j}, v{CAD+j}, v{CN+j} offset:{WB}")
    for j in range(5):
        e(f"v_or_b32 v{CAD+j}, s{sASG[j]}, v{cBIN}")
    e(f"s_lshl_b32 s{sT}, s3, 3", f"s_add_u32 s{sOFF}, s{sT}, 7")
    for j in range(5):
        if j in (0, 2):
            e(f"s_waitcnt lgkmcnt({3 if j == 0 else 2})")
        e(f"v_lshl_or_b32 v{CN+j}, v{CN+j}, 16, v{CAD+j}")
        e(f"ds_write_b32 v{cROW}, v{CN+j} offset:{CNT2 + 128*j}")
    e("s_mov_b32 exec_hi, -1")
    ts.stamp("rank")
    bea(2)
    if P["ENP"] == 1:
        for i in range(3):
            entry(i)
    e(f"s_waitcnt lgkmcnt({3 if P['ENP'] == 1 else 0})", "s_barrier")
    ts.stamp("b2")
    e(f"ds_read_b128 {vr(CN,4)}, v{X16} offset:{WB}")
    for i in range(3):
        e(f"ds_read_b32 v{CA+i}, v{CA+i} offset:{CNT2}")
    bea(6)
    e("s_waitcnt lgkmcnt(3)")
    e(f"v_add_u32 v{T+1}, v{CN}, v{CN+1}", f"v_add3_u32 v{T+1}, v{T+1}, v{CN+2}, v{CN+3}", f"v_mov_b32 v{T+2}, v{T+1}")
    e("s_waitcnt lgkmcnt(0)")

    def place(i):
        key = SKR + 4 * i + 2
        return [f"v_bfe_u32 v{T+7}, v{CA+i}, 12, 3", f"v_or_b32 v{key}, v{T+7}, v{key}", f"v_and_b32 v{G1+i}, 0x3ff, v{CA+i}",
                f"v_lshrrev_b32 v{CA+i}, 16, v{CA+i}", f"v_add_u32 v{CA+i}, v{CA+i}, v{RNK+i}"]

    fill = place(0) + place(1) + place(2)
    e(fill.pop(0))
    for mod in ("row_shr:1 row_mask:0xf", "row_shr:2 row_mask:0xf", "row_shr:4 row_mask:0xf", "row_shr:8 row_mask:0xf", "row_bcast:15 row_mask:0xa", "row_bcast:31 row_mask:0xc"):
        e(f"v_add_u32_dpp v{T+2}, v{T+2}, v{T+2} {mod} bank_mask:0xf")
        e(*fill[:2]); fill = fill[2:]
    e(f"v_sub_u32 v{T+1}, v{T+2}, v{T+1}")
    e(f"v_lshl_add_u32 v{CAD}, v{T+1}, 2, v{cLST}")
    for k in range(3):
        e(f"v_lshl_add_u32 v{CAD+1+k}, v{CN+k}, 2, v{CAD+k}")
    e(f"ds_write_b128 v{X16}, {vr(CAD,4)} offset:{START}")
    for i in range(3):
        e(f"ds_read_b32 v{G1+i}, v{G1+i} offset:{START}")
    e(*fill)
    e(f"v_readlane_b32 s{sNV}, v{T+2}, s{sOFF}", f"v_readlane_b32 s{sCNT}, v{T+1}, s{sT}", f"v_readlane_b32 s{sBASE}, v{CAD}, s{sT}")
    e(f"v_mov_b32 v{T+6}, {(0x3fff << 7) | 5}")
    e(f"s_sub_u32 s{sNV}, s{sNV}, s{sCNT}", f"s_lshl2_add_u32 s{sT2}, s{sNV}, s{sBASE}", f"v_add_u32 v{T+1}, s{sT2}, v{LAC}")
    e(f"ds_write_b32 v{T+1}, v{T+6}")
    assert D == 6
    sP0 = sT
    e(f"s_add_u32 s{sCNT}, s{sNV}, 15", f"s_lshr_b32 s{sCNT}, s{sCNT}, 4", f"s_sub_u32 s{sP0}, 0, s{sNV}", f"s_and_b32 s{sP0}, s{sP0}, 14",
      f"s_sub_u32 s{sCNT}, s{sCNT}, 1", f"s_cmp_gt_i32 s{sCNT}, 0", f"s_cselect_b32 s{sP0}, s{sP0}, 0", f"s_lshl_b32 s{sOFF}, s{sP0}, 2",
      f"s_sub_u32 s{sBASE}, s{sBASE}, s{sOFF}")

    def scatter(i):
        e(f"s_mov_b64 exec, s[{sVm[i]}:{sVm[i]+1}]")
        e(f"ds_write_b32 v{CA+i}, v{SKR+4*i+2}")

    e("s_waitcnt lgkmcnt(1)")
    for i in range(3):
        e(f"v_lshl_add_u32 v{CA+i}, v{CA+i}, 2, v{G1+i}")
    for i in range(3):
        scatter(i)
    e("s_mov_b64 exec, -1")
    e(f"s_cmp_gt_i32 s{sNW}, 192", "s_cbranch_scc1 L_r3")
    e.label("L_r3b")
    bea(3)
    ts.stamp("list")
    e(f"v_add_u32 v{LA}, s{sBASE}, v{LAC}", f"v_add_u32 v{LB}, s{sBASE}, v{LBC}",
      f"s_and_b32 s{sOFF}, s{sOFF}, 32", f"v_add_u32 v{T+4}, s{sOFF}, v{LA}", f"s_and_b32 s{SK+8}, s{sP0}, 6")
    e(f"s_mov_b32 s{sT2}, 0x00fffc38", f"s_mov_b32 s{sNR}, 0xffffff00", f"s_mov_b32 s{sBASE}, {SHST}")
    if P["PRIO"] == 1:
        e("s_cmp_lt_u32 s3, 4", "s_cbranch_scc1 L_np", "s_setprio 1")
        e.label("L_np")
    e("s_waitcnt lgkmcnt(0)", "s_barrier")
    ts.stamp("b4")
    if P["B4P"] == 0:
        bea(4)
    e(f"ds_read_b32 v{K}, v{T+4}", f"ds_read_b32 v{ENT+2}, v{LB}", f"ds_read_b32 v{KN}, v{LA} offset:{4*D}", f"ds_read_b32 v{NOD}, v{cNOD} offset:{CNT2}")
    if P["B4P"] == 1:
        bea(4)
    e(f"s_cmp_eq_u32 s{sNV}, 0", "s_cbranch_scc1 L_empty")

    def agaddr():
        e(f"v_lshlrev_b32 v{T+4}, 2, v{LANE}", f"s_lshl_b32 s{sOFF}, s3, 7")
        e(f"v_and_b32 v{NOD}, 0x7380, v{NOD}", f"v_xor_b32 v{NOD}, s{sOFF}, v{NOD}")
        e(f"v_alignbit_b32 v{NOD}, v{NOD}, v{NOD}, 12")
        m = [f"s[{q}:{q+1}]" for q in sVm] + ["vcc"]
        for j in range(5):
            e(f"v_cmp_eq_u32 {m[j]}, {j}, v{NOD}")
        for j in range(5):
            e(f"s_ff1_i32_b64 s{sNODE+j}, {m[j]}", f"s_mul_i32 s{sNODE+j}, s{sNODE+j}, 1152", f"v_add_u32 v{eAG[j]}, s{sNODE+j}, v{T+4}")

    AL = P["ALIGN"]

    def al():
        if AL:
            e(".p2align 3")

    def ea_reads():
        e(f"v_lshrrev_b32 v{T}, 21, v{ENT+2}", f"v_lshl_add_u32 v{T+3}, v{T}, 3, s{sBASE}", f"v_lshl_add_u32 v{T}, v{T}, 5, v{EAC}")
        e(f"ds_read_b64 {vr(ENT,2)}, v{T+3}")
        e(f"ds_read_b128 {vr(EA0,4)}, v{T}")

    def wfr(*qs):
        for q in qs:
            e(f"ds_read_b128 {vr(WF[q],4)}, v{eWF} offset:{1024*q}")

    def zq(q):
        e(f"ds_read_b128 {vr(RW+4*q,4)}, v{ZAD}", f"ds_read_b128 {vr(RW+16+4*q,4)}, v{ZAD}")

    def pq(j):
        p = PQ + 2 * (j % 2)
        if P["PQP"]:
            pr = [f"v_perm_b32 v{p}, v{T+1}, v{T+1}, v{(MP, 254)[j%2]}", f"v_perm_b32 v{p+1}, v{T+1}, v{T+1}, v{(MQ, 255)[j%2]}"]
            return pr if j % 2 else [f"v_cvt_pk_bf16_f32 v{T+1}, v{AGN+j}, v{AGN+j+1}"] + pr
        return [f"v_cvt_pk_bf16_f32 v{T+1+j%2}, v{AGN+j}, v{AGN+j}", f"v_and_b32 v{p}, v{MP}, v{T+1+j%2}", f"v_and_b32 v{p+1}, v{MQ}, v{T+1+j%2}"]

    def head(kind):
        if P["PRIO"] in (4, 5) and kind != "first":
            e("s_setprio 3")
        e(f"s_waitcnt lgkmcnt({0 if kind == 'first' else 2})"); al()
        for q in range(4):
            e(f"v_mfma_f32_4x4x4_16b_bf16 {vr(AGN+4*q,4)}, {vr(ENT,2)}, {vr(CGF,2)}, 0 cbsz:4 abid:{2*q}")
        e(f"v_lshlrev_b32 v{K}, 3, v{KN}", f"v_and_b32 v{K}, s{sT2}, v{K}")
        rd = []
        if kind != "last":
            e(f"v_add_u32 v{LA}, 64, v{LA}", f"v_add_u32 v{LB}, 64, v{LB}")
            rd = [f"ds_read_b32 v{KN}, v{LA} offset:{4*D}", f"ds_read_b32 v{ENT+2}, v{LB}"]
        if kind != "first":
            e("s_waitcnt lgkmcnt(0)"); al()
        groups = [rd + (pq(0) if kind != "first" else []), []]
        for h in range(2):
            e(f"v_smfmac_f32_32x32x32_bf16 {vr(RW+16*h,16)}, {vr(EA0,4)}, {vr(WRF+8*h,8)}, v{SIX}")
            e(*groups[h])

    def pks(j):
        t = TP + 8 * (j % 2)
        for h in range(2):
            r = RW + 16 * h + j
            rp = r & ~1
            sel = "op_sel:[0,1,0] op_sel_hi:[1,1,1]" if r & 1 else "op_sel_hi:[1,0,1]"
            for q in range(2):
                a = ACC + 4 * h + 2 * q
                e(f"v_pk_fma_f32 {vr(a,2)}, {vr(t+4*h+2*q,2)}, {vr(rp,2)}, {vr(a,2)} {sel}")

    def mf(j, h):
        t, p, s = TP + 8 * (j % 2), PQ + 2 * (j % 2), XR + 4 * (j % R)
        e(f"v_mfma_f32_16x16x16_bf16 {vr(t+4*h,4)}, {vr(p,2)}, {vr(s+2*h,2)}, 0")

    def rl(q, lane):
        e(f"v_readlane_b32 s{SK + q % 8}, v{K}, {lane}")

    def sand(q):
        e(f"s_and_b32 s{sOFF}, s{SK + q % 8}, s{sNR}")

    def xl(q):
        e(f"buffer_load_dwordx4 {vr(XR + 4 * (q % R),4)}, v{X16}, {sr(sX)}, s{sOFF} offen {str(P['XPOL']).replace('+', ' ')}".rstrip())

    def body(last):
        for j in range(0, 16, 2):
            ld = not last or j + D < 16
            if not last or j == 0:
                e.label(f"L_{'f' if last else 'j'}{j}")
            nx = pq(j + 1)
            if P["PRIO"] == 4 and j % 4 == 0 and j:
                e(f"s_setprio {3 - j // 4}")
            if P["PRIO"] == 5:
                e(f"s_setprio {3 - (j // 2) % 4}")
            e(f"s_waitcnt vmcnt({D-1 if ld else 15-j})"); al()
            mf(j, 0)
            if ld:
                rl(j + D, j)
            e(*nx[:1]); mf(j, 1); e(*nx[1:])
            if ld and P["SCH"] == 2:
                sand(j + D); e(f"s_waitcnt vmcnt({D-2})"); xl(j + D)
            elif ld:
                sand(j + D); xl(j + D); e(f"s_waitcnt vmcnt({D-1})")
            else:
                e(f"s_waitcnt vmcnt({14-j})"); al()
            nx = pq(j + 2) if j < 14 else []
            mf(j + 1, 0)
            if ld:
                rl(j + 1 + D, j + 1)
            e(*nx[:1]); mf(j + 1, 1); e(*nx[1:])
            if last and j == 2 and P["AGP"] == 2:
                agaddr(); al()
            if j == 2 and not last:
                e("s_waitcnt lgkmcnt(0)")
                ea_reads(); al()
            if ld:
                sand(j + 1 + D)
            e(f"s_set_gpr_idx_on s{SK + j % 8}, gpr_idx(SRC2,DST)")
            xl(j + 1 + D) if ld else al()
            pks(j)
            e(f"s_set_gpr_idx_idx s{SK + (j + 1) % 8}")
            if j == 14 and not last:
                e(f"s_sub_u32 s{sCNT}, s{sCNT}, 1")
            al()
            pks(j + 1)
            if j % 4 == 2 and not last:
                zq(j // 4)
            if last and j >= 6 and P["WFT"]:
                wfr(*((14, 15) if j == 6 else (j - 2, j - 1)))
            e("s_set_gpr_idx_off")

    e("s_waitcnt lgkmcnt(3)")
    e(f"v_lshlrev_b32 v{K}, 3, v{K}", f"v_and_b32 v{K}, s{sT2}, v{K}")
    if late_wf:
        wfr(*range(NK))
    NB5 = P["NB5"]

    def pair(q):
        rl(q, q); rl(q + 1, q + 1)
        sand(q); xl(q); sand(q + 1); xl(q + 1)

    for q in (2, 4, 6):
        e(f"s_cmp_eq_u32 s{SK+8}, {q}", f"s_cbranch_scc1 L_p{q}")
    for q0 in (0, 2, 4, 6):
        e.label(f"L_p{q0}")
        for i in range(NB5):
            pair(q0 + 2 * i)
        if P["AGP"] == 0:
            e("s_waitcnt lgkmcnt(0)")
            agaddr()
        e(f"s_waitcnt vmcnt({2*NB5 + (1 if DH and P['XPF'] and P['XPOS'] == 5 else 0) + (1 if P['XP2'] and ORDER.index(P['XQ']) >= max(ORDER.index(q) for q in bstage) else 0)}) lgkmcnt(0)", "s_barrier")
        ea_reads()
        for i in range(NB5, 3):
            pair(q0 + 2 * i)
        if q0 < 6:
            e("s_branch L_pd")
    e.label("L_pd")
    if P["AGP"] == 1:
        agaddr()
    ts.stamp("b5")
    head("first")
    e(f"s_set_gpr_idx_on s{sP0}, gpr_idx(SRC0,SRC1)")
    e.idx_range, keep = {("v", i) for i in range(AGN, AGN + 16)}, e.idx_range
    e(pq(0)[0])
    e.idx_range = keep
    e("s_set_gpr_idx_off")
    e(*pq(0)[1:])
    e("s_waitcnt lgkmcnt(0)")
    ea_reads()
    e(f"s_cmp_eq_u32 s{sCNT}, 0", "s_cbranch_scc1 L_f0")
    for j in range(0, 14, 2):
        e(f"s_cmp_eq_u32 s{sP0}, {j}", f"s_cbranch_scc1 L_j{j}")
        if j % 4 == 2:
            zq(j // 4)
    e("s_branch L_j14")
    if P["LAL"] < 0:
        e(".p2align 3")
    else:
        e(".p2align 6")
        for _ in range(P["LAL"] // 4):
            e.raw("    s_nop 0")
    e.label("L_loop")
    head("mid")
    body(False)
    e(f"s_cmp_lg_u32 s{sCNT}, 0", "s_cbranch_scc1 L_loop")
    head("last")
    body(True)
    e.label("L_swept")
    ts.stamp("swept")
    e(f"s_add_u32 s{sROFF}, s{sROFF}, {CAPW}", f"s_cmp_lt_u32 s{sROFF}, s{sN}", "s_cbranch_scc1 L_again")
    AF, DD, OB, OT = ACC, 160, 64, 80
    if P["EPRIO"] >= 0:
        e(f"s_setprio {P['EPRIO']}")
    for s in range(5):
        for w in range(4):
            e(f"v_cvt_pk_bf16_f32 v{RW+4*s+w}, v{ACC+8*s+w}, v{ACC+8*s+4+w}")
        for w in (0, 2):
            e(f"ds_write2_b32 v{eAG[s]}, v{RW+4*s+w}, v{RW+4*s+w+1} offset0:{72*w} offset1:{72*w+72}")
    NPRE = 16
    if not P["WFT"]:
        wfr(*range(NK, 16))
    e(f"s_waitcnt lgkmcnt({0 if P['WFT'] else NPRE - NK})", "s_barrier")
    ts.stamp("agb")
    lq = [f"w{q}" for q in range(NPRE)]

    def lop(tag, text):
        e(text); lq.append(tag)

    def lwait(*tags):
        n = len(lq) - 1 - max(lq.index(t) for t in tags)
        e(f"s_waitcnt lgkmcnt({min(n, 15)})")

    def afrag(k, ss=range(4)):
        for s in ss:
            lop(f"a{k}{s}", f"ds_read_b128 {vr(AF+16*k+4*s,4)}, v{eFR} offset:{AGL + 4608*k + 64*s}")

    def post(k, pol=P['OUTPOL']):
        d, o = DD + 16 * (k % 2), OB + 8 * (k % 2)
        x = []
        for r in range(2):
            for c in range(2):
                x.append(f"v_cvt_pk_bf16_f32 v{o+4*r+c}, v{d+8*c+r}, v{d+8*c+4+r}")
                x.append(f"v_cvt_pk_bf16_f32 v{OT+2*r+c}, v{d+8*c+r}, v{d+8*c+4+r}")
                x.append(f"v_cvt_pk_bf16_f32 v{o+4*r+2+c}, v{d+8*c+r+2}, v{d+8*c+4+r+2}")
            for c in range(2):
                x.append(f"v_mov_b32_dpp v{o+4*r+c}, v{o+4*r+2+c} row_ror:8 row_mask:0xf bank_mask:0xc")
            for c in range(2):
                x.append(f"v_mov_b32_dpp v{o+4*r+2+c}, v{OT+2*r+c} row_ror:8 row_mask:0xf bank_mask:0x3")
            x.append(f"buffer_store_dwordx4 {vr(o+4*r,4)}, v{eST}, {sr(sOUT)}, s{sEO} offen offset:{256*r} {pol}")
        x.append(f"s_add_u32 s{sEO}, s{sEO}, 4096")
        return x

    def tile(k, pend):
        d = DD + 16 * (k % 2)
        for s in range(4):
            if k == 0:
                lwait(f"a0{s}", f"w{4*s+3}")
            elif s == 0:
                lwait(f"a{k}3")
            for t in range(4):
                c = "0" if s == 0 else vr(d + 4 * t, 4)
                e(f"v_mfma_f32_16x16x32_bf16 {vr(d+4*t,4)}, {vr(AF+16*k+4*s,4)}, {vr(WF[4*s+t],4)}, {c}")
                if 4 * s + t >= 4:
                    e(*pend[:2]); pend = pend[2:]
            if k == 0 and s == 0:
                afrag(1)
            if k == 0 and s == 1:
                afrag(2)
        e(*pend)

    for s in range(4):
        afrag(0, [s])
        for q in range(max(NPRE, 4 * s), 4 * s + 4):
            lop(f"w{q}", f"ds_read_b128 {vr(WF[q],4)}, v{eWF} offset:{1024*q}")
    tile(0, [])
    tile(1, post(0))
    e("s_cmp_ge_u32 s3, 4", "s_cbranch_scc1 L_two")
    tile(2, post(1))
    e(*post(2, P['LASTPOL']))
    e.label("L_stored")
    ts.stamp("stored")
    if P["DIAGW"] and P["DIAGAT"] == "fin":
        e("s_waitcnt vmcnt(0)")
        ts.stamp("fin")
    if P["DIAGW"]:
        e(f"s_add_u32 s6, s{sTSP+1}, {P['DIAGW']}", "s_min_u32 s6, s6, 30000")
        e.label("L_diag")
        e("s_memrealtime s[4:5]", "s_waitcnt lgkmcnt(0)", f"s_sub_u32 s4, s4, s{sTSP}", "s_cmp_lt_u32 s4, s6", "s_cbranch_scc1 L_diag")
    if P["TS"]:
        e("s_waitcnt vmcnt(0)")
        ts.stamp("end")
        e(f"s_lshl_b32 s{sT}, s2, 3", f"s_add_u32 s{sT}, s{sT}, s3", f"s_lshl_b32 s{sT}, s{sT}, 8", f"s_add_u32 s{sT}, s{sT}, {WS_TS}")
        e(f"v_lshl_add_u32 v{T}, v{LANE}, 2, s{sT}", f"global_store_dword v{T}, v{TSV}, s[14:15]")
        if P["DBG"]:
            e(f"s_cmp_lg_u32 s2, {P['DBG']}", "s_cbranch_scc1 L_done", "s_cmp_lg_u32 s3, 0", "s_cbranch_scc1 L_done")
            e("s_load_dwordx2 s[4:5], s[0:1], 72", f"v_readlane_b32 s{sT}, v{TSV}, 0", f"v_lshlrev_b32 v{T}, 2, v{LANE}")
            e(f"v_subrev_u32 v{TSV}, s{sT}, v{TSV}", "s_waitcnt lgkmcnt(0)", f"global_store_dword v{T}, v{TSV}, s[4:5]")
    e.label("L_done")
    e("s_endpgm")
    e.label("L_again")
    e("s_waitcnt vmcnt(0) lgkmcnt(0)", "s_barrier")
    init_round(False)
    for i in range(32):
        e(f"v_mov_b32 v{RW+i}, 0")
    e(f"v_add_u32 v{RLEN}, v{RLEN}, v{RBASE}", f"v_subrev_u32 v{RLEN}, {CAPW}, v{RLEN}", f"v_max_i32 v{RLEN}, 0, v{RLEN}")
    e(f"v_subrev_u32 v{RBASE}, {CAPW}, v{RBASE}", f"v_max_i32 v{RBASE}, 0, v{RBASE}", f"v_sub_u32 v{RLEN}, v{RLEN}, v{RBASE}")
    e(f"v_add_u32 v{RG0}, {CAPW}, v{RG0}", f"s_sub_i32 s{sNW}, s{sNW}, {CAPW}", f"v_lshl_add_u32 v{T}, v{RBASE}, 2, v{cMAPW}")
    e("s_waitcnt lgkmcnt(0)", "s_barrier")
    e.label("L_clip")
    e(f"v_add_u32 v{T+2}, v{RBASE}, v{RLEN}", f"v_min_i32 v{T+2}, {CAPW}, v{T+2}", f"v_sub_u32 v{T+2}, v{T+2}, v{RBASE}", f"v_add_u32 v{T+2}, v{T+2}, v{cODD}")
    e.label("L_masks")
    e(*cmps)
    e("s_nop 0", "s_branch L_mapw")
    e.label("L_map2")
    e(f"v_add_u32 v{T}, {8*MU}, v{T}", f"v_subrev_u32 v{T+2}, {2*MU}, v{T+2}")
    e("s_branch L_masks")
    e.label("L_r1")
    e(f"ds_read_b32 v{G1+3}, v{cMAP1} offset:768", f"ds_read_b32 v{G2+6}, v{cMAP2} offset:768")
    e("s_waitcnt lgkmcnt(0)")
    skld(3)
    for i in (6,):
        e(f"v_lshl_add_u32 v{G2+i}, v{G2+i}, 5, v{X16}")
        if not (DH and P["FL"]):
            bea1(i)
    e("s_branch L_r1b")
    if DH and P["FL"]:
        e.label("L_r1e")
        bea1(6)
        e("s_branch L_r1eb")
        e.label("L_fpoll")
        e(f"s_mov_b32 s{SK+13}, {SPIN}")
        e.label("L_fpoll2")
        e(f"buffer_load_dwordx2 {vr(PL2,2)}, v{cFLG}, {sr(sTAB)}, s{sFL} offen sc1", f"s_sub_u32 s{SK+13}, s{SK+13}, 1", "s_cbranch_scc1 L_done", "s_waitcnt vmcnt(0)")
        e(f"v_xor_b32 v{T+3}, s{sTAG2}, v{PL2}", f"v_xor_b32 v{T+4}, s{sTAG}, v{PL2+1}", f"v_or_b32 v{T+3}, v{T+3}, v{T+4}")
        e(f"v_cmp_ne_u32 vcc, 0, v{T+3}", "s_cbranch_vccnz L_fpoll2", "s_branch L_flagged")
    e.label("L_r2")
    count(3)
    entry(3)
    e("s_branch L_r2b")
    e.label("L_r3")
    e(f"ds_read_b32 v{CA+3}, v{CA+3} offset:{CNT2}", "s_waitcnt lgkmcnt(0)")
    e(*place(3))
    e(f"ds_read_b32 v{G1+3}, v{G1+3} offset:{START}", "s_waitcnt lgkmcnt(0)")
    e(f"v_lshl_add_u32 v{CA+3}, v{CA+3}, 2, v{G1+3}")
    scatter(3)
    e("s_mov_b64 exec, -1", "s_branch L_r3b")
    e.label("L_tag")
    e(f"v_mov_b32 v{T+3}, s{sTAG}", f"s_mov_b32 s{sT}, {WS_W}")
    e(f"buffer_store_dword v{T+3}, v{cMAP1}, {sr(sTAB)}, s{sT} offen sc1")
    e("s_branch L_tagged")
    e.label("L_empty")
    e("s_waitcnt vmcnt(0) lgkmcnt(0)", "s_barrier")
    agaddr()
    if late_wf:
        wfr(*range(NK))
    if P["WFT"]:
        wfr(*range(NK, 16))
    e("s_branch L_swept")
    e.label("L_two", pad=8)
    e(*post(1, P['LASTPOL']))
    e("s_branch L_stored")
    e.label("L_poll")
    e(poll1, f"s_sub_u32 s{sCNT}, s{sCNT}, 1", "s_cbranch_scc1 L_done", "s_waitcnt vmcnt(0)")
    tagcheck()
    e("s_cbranch_execnz L_poll", "s_branch L_polled")
    e.label("L_rank2")
    for j in range(5):
        e(f"ds_read_b32 v{CN+j}, v{cROW} offset:{CNT2 + 128*j}")
    if P["ENP"] == 0:
        for i in range(3):
            entry(i)
    e("s_waitcnt lgkmcnt(0)")
    e.label("L_end")
    e("s_branch L_ranked")
    return e.text(), LDS, 256, 102


HEADER = """; Kernarg layout for this problem (88 bytes, ptrs only, base s[0:1]):
"""


def generate(**kw):
    P = dict(DEF)
    P.update(kw)
    k, lds, v, s = gen(P)
    n = NAME + "_kernel"
    out = HEADER
    out += f"; @launch grid=(256,1,1) block=(512,1,1) lds={lds}\n"
    out += '.amdgcn_target "amdgcn-amd-amdhsa--gfx950"\n.text\n'
    out += f".globl {n}\n.p2align 8\n.type {n},@function\n{n}:\n{k}"
    out += '.section .rodata,"a"\n'
    out += (f".p2align 6\n.amdhsa_kernel {n}\n  .amdhsa_next_free_vgpr {v}\n  .amdhsa_next_free_sgpr {s}\n"
            f"  .amdhsa_accum_offset {(v+3)//4*4}\n  .amdhsa_group_segment_fixed_size 0\n  .amdhsa_kernarg_size 88\n"
            f"  .amdhsa_user_sgpr_count 2\n  .amdhsa_user_sgpr_kernarg_segment_ptr 1\n  .amdhsa_system_sgpr_workgroup_id_x 1\n"
            f"  .amdhsa_float_denorm_mode_32 3\n.end_amdhsa_kernel\n")
    return out


if __name__ == "__main__":
    kw = {}
    for a in sys.argv[1:]:
        k, v = a.split("=", 1)
        kw[k] = int(v) if v.lstrip("-").isdigit() else v
    sys.stdout.write(generate(**kw))
```
